```python
import torch

def _softmax(x, axis=-1):
    return torch.softmax(x, dim=axis)
def _gelu(x):
    return torch.nn.functional.gelu(x, approximate="tanh")
def _silu(x):
    return torch.nn.functional.silu(x)
def _sigmoid(x):
    return torch.sigmoid(x)
def _layernorm(x, axis=-1, eps=1e-5):
    m = x.mean(dim=axis, keepdim=True)
    v = x.var(dim=axis, keepdim=True, unbiased=False)
    return (x - m) / torch.sqrt(v + eps)
def _scatter_add(tgt, idx, src, axis=0):
    return tgt.clone().index_add_(axis, idx, src)
def _segment_sum(src, seg, n):
    out = torch.zeros((n,) + src.shape[1:], dtype=src.dtype)
    return out.index_add_(0, seg, src)
def _pad(x, pw):
    flat = tuple(v for pair in reversed(pw) for v in pair)
    return torch.nn.functional.pad(x, flat)

kernel_name = 'parallel_sum__spectral_gfnet__dense_activation_gelu__prompt'

def setup_inputs():

    _w = (lambda a: (lambda t: t.to(torch.bfloat16) if t.is_floating_point() else t)(torch.as_tensor(a)))
    def _A_setup():
        B, S, D = 1, 2048, 1024
        Df = D // 2 + 1
        return {
            "x": _w((lambda *s: torch.randn(*s, dtype=torch.bfloat16) * 0.05)(B, S, D)),
            "w_r": _w((lambda *s: torch.randn(*s, dtype=torch.bfloat16) * 0.4)(S, Df) * 0.02),
            "w_i": _w((lambda *s: torch.randn(*s, dtype=torch.bfloat16) * 0.4)(S, Df) * 0.02),
        }
    _A_in = _A_setup()

    def _B_setup():
        B, S, D, F = 1, 2048, 1024, 3584
        return {
            "x": _w((lambda *s: torch.randn(*s, dtype=torch.bfloat16) * 0.05)(B, S, D)),
            "w1": _w((lambda *s: torch.randn(*s, dtype=torch.bfloat16) * 0.4)(D, F) * (D ** -0.5)),
            "b1": _w((lambda *s: torch.randn(*s, dtype=torch.bfloat16) * 12.8)(F) * 0.01),
            "w2": _w((lambda *s: torch.randn(*s, dtype=torch.bfloat16) * 0.1)(F, D) * (F ** -0.5)),
            "b2": _w((lambda *s: torch.randn(*s, dtype=torch.bfloat16) * 1.6)(D) * 0.01),
        }
    _B_in = _B_setup()

    return {
        "A_x": _A_in["x"],
        "A_w_r": _A_in["w_r"],
        "A_w_i": _A_in["w_i"],
        "B_x": _B_in["x"],
        "B_w1": _B_in["w1"],
        "B_b1": _B_in["b1"],
        "B_w2": _B_in["w2"],
        "B_b2": _B_in["b2"],
    }

def reference(A_x, A_w_r, A_w_i, B_x, B_w1, B_b1, B_w2, B_b2):
    def _A_ref(x, w_r, w_i):
        B, S, D = x.shape
        X = (lambda x, axes=(-2,-1): torch.fft.rfft2(x.float(), dim=axes))(x, axes=(-2, -1))
        W = w_r + 1j * w_i
        X = X * W
        y = (lambda x, s, axes=(-2,-1): torch.fft.irfft2(x, s=s, dim=axes).to(torch.bfloat16))(X, (S, D), axes=(-2, -1))
        return y

    def _B_ref(x, w1, b1, w2, b2):
        h = torch.einsum("bsd,df->bsf", x, w1) + b1
        h = _gelu(h)
        return torch.einsum("bsf,fd->bsd", h, w2) + b2

    x = A_x
    xn = _layernorm(x, axis=-1)
    return x + _A_ref(xn, A_w_r, A_w_i) + _B_ref(xn, B_w1, B_b1, B_w2, B_b2)
```

```python
import re, struct

def f2u(x):
    return struct.unpack("<I", struct.pack("<f", x))[0]

def hexf(x):
    return "0x%08x" % f2u(x)

def v(i, n=1):
    return f"v{i}" if n == 1 else f"v[{i}:{i+n-1}]"
def a(i, n=1):
    return f"a{i}" if n == 1 else f"a[{i}:{i+n-1}]"
def s(i, n=1):
    return f"s{i}" if n == 1 else f"s[{i}:{i+n-1}]"
def r(i, n=1):
    return v(i, n) if i < 256 else a(i - 256, n)

_reg_re = re.compile(r"^(-|neg\(|abs\(|\|)?\|?([vas])(\d+|\[(\d+):(\d+)\])\|?\)?$")
TRANS = ("v_exp_f32", "v_log_f32", "v_rcp_f32", "v_rsq_f32", "v_sqrt_f32", "v_sin_f32", "v_cos_f32")

def parse_regs(tok):
    tok = tok.strip()
    if tok in ("vcc",): return [("s", "vcc")]
    if tok in ("exec",): return [("s", "exec")]
    if tok == "m0": return [("s", "m0")]
    if tok in ("vcc_lo", "vcc_hi"): return [("s", "vcc")]
    if tok in ("exec_lo", "exec_hi"): return [("s", "exec")]
    m = _reg_re.match(tok)
    if not m: return []
    k = m.group(2)
    if m.group(4) is not None:
        lo, hi = int(m.group(4)), int(m.group(5))
    else:
        lo = hi = int(m.group(3))
    return [(k, i) for i in range(lo, hi + 1)]

class Ins:
    __slots__ = ("text", "op", "kind", "dst", "src", "srcC", "passes", "dpp", "opsel", "wide", "lds_dma", "tag", "laneSel", "nowait")
    def __init__(self, text):
        self.text = text
        t = text.split(";")[0].strip()
        parts = t.split(None, 1)
        self.op = op = parts[0]
        rest = parts[1] if len(parts) > 1 else ""
        ops = [x.strip() for x in rest.split(",")] if rest else []
        mods = ""
        if ops:
            lp = ops[-1].split(None, 1)
        ops = []; depth = 0; cur = ""
        for ch in rest:
            if ch == "[": depth += 1
            if ch == "]": depth -= 1
            if ch == "," and depth == 0:
                ops.append(cur.strip()); cur = ""
            else: cur += ch
        if cur.strip(): ops.append(cur.strip())
        if ops:
            lp = ops[-1].split(None, 1)
            ops[-1] = lp[0]
            mods = lp[1] if len(lp) > 1 else ""
        self.dst = []; self.src = []; self.srcC = []; self.passes = 0
        self.dpp = ("_dpp" in op) or ("row_" in mods) or ("quad_perm" in mods)
        self.opsel = ("sdwa" in op) or ("dst_sel" in mods)
        self.wide = False; self.lds_dma = False; self.tag = None; self.laneSel = []; self.nowait = False
        R = parse_regs
        if op.startswith("v_mfma"):
            self.kind = "mfma"
            self.dst = R(ops[0]); self.src = R(ops[1]) + R(ops[2]); self.srcC = R(ops[3])
            self.passes = 8 if "32x32x16" in op else 4
            assert "32x32x16" in op or "16x16x32" in op
        elif op.startswith("v_"):
            self.kind = "valu"
            if op.startswith("v_cmp"):
                self.dst = R(ops[0]); self.src = sum((R(x) for x in ops[1:]), [])
                if op.startswith("v_cmpx"): self.dst += [("s", "exec")]
            elif op.startswith("v_permlane"):
                self.dst = R(ops[0]) + R(ops[1]); self.src = R(ops[0]) + R(ops[1])
            elif op in ("v_readlane_b32",):
                self.dst = R(ops[0]); self.src = R(ops[1]); self.laneSel = R(ops[2])
            elif op in ("v_writelane_b32",):
                self.dst = R(ops[0]); self.src = R(ops[0]) + R(ops[1]); self.laneSel = R(ops[2])
            elif op == "v_nop":
                pass
            else:
                self.dst = R(ops[0]); self.src = sum((R(x) for x in ops[1:]), [])
                if "_co_" in op:
                    self.dst += R(ops[1])
                if op.startswith("v_fmac") or op.startswith("v_dot2c") or self.dpp or op.startswith("v_pk_fmac") or op.startswith("v_mac"):
                    self.src += R(ops[0])
                if op.startswith("v_cndmask") and len(ops) == 3:
                    self.src += [("s", "vcc")]
        elif op.startswith("ds_"):
            self.kind = "lds"
            if op.startswith("ds_read") or op.startswith("ds_bpermute") or op.startswith("ds_swizzle"):
                self.dst = R(ops[0]); self.src = sum((R(x) for x in ops[1:]), [])
                if "d16" in op: self.src += R(ops[0])
            else:
                self.src = sum((R(x) for x in ops), [])
        elif op.startswith("buffer_") or op.startswith("global_"):
            self.kind = "vmem"
            islds = re.search(r"\blds\b", mods) is not None
            if "load" in op and not islds:
                self.dst = R(ops[0]); self.src = sum((R(x) for x in ops[1:]), [])
                if "d16" in op: self.src += R(ops[0])
            elif "atomic" in op and "sc0" in mods:
                self.dst = R(ops[0]); self.src = sum((R(x) for x in ops), [])
            else:
                self.src = sum((R(x) for x in ops), [])
                if islds:
                    self.lds_dma = True; self.src += [("s", "m0")]
                if "store" in op and ("x4" in op or "x3" in op):
                    self.wide = R(ops[0]) if op.startswith("buffer_") else R(ops[1])
        elif op.startswith("s_load") or op.startswith("s_buffer_load") or op in ("s_memtime", "s_memrealtime"):
            self.kind = "smem"
            self.dst = R(ops[0]); self.src = sum((R(x) for x in ops[1:]), [])
        elif op in ("s_waitcnt", "s_nop", "s_barrier", "s_endpgm", "s_setprio", "s_sleep") or op.startswith("s_cbranch") or op == "s_branch":
            self.kind = "ctl"
        elif op.startswith("s_"):
            self.kind = "salu"
            if op.startswith("s_cmp") or op.startswith("s_bitcmp"):
                self.src = sum((R(x) for x in ops), [])
            else:
                self.dst = R(ops[0]); self.src = sum((R(x) for x in ops[1:]), [])
                if "saveexec" in op: self.dst += [("s", "exec")]
        else:
            self.kind = "dir"

    def states(self):
        if self.kind == "dir": return 0
        if self.op == "s_nop":
            return int(self.text.split()[1], 0) + 1
        return 1

class Prog:
    def __init__(self):
        self.out = []
        self.reset_state()
        self.nnop = 0
    def reset_state(self):
        self.vm = []
        self.lg = []
    def raw(self, text):
        self.out.append(Ins(text))
    def label(self, name):
        self.out.append(Ins(name + ":"))
    def comment(self, text):
        i = Ins(".c"); i.text = "; " + text; i.kind = "dir"; self.out.append(i)
    def align(self, p):
        i = Ins(".p2align"); i.text = f".p2align {p}"; i.kind = "dir"; self.out.append(i)
    def _emit_wait(self, vm=None, lg=None):
        parts = []
        if vm is not None:
            vm = min(vm, 63)
            if vm < len(self.vm):
                parts.append(f"vmcnt({vm})"); self.vm = self.vm[len(self.vm) - vm:] if vm else []
        if lg is not None:
            lg = min(lg, 15)
            if lg < len(self.lg):
                parts.append(f"lgkmcnt({lg})"); self.lg = self.lg[len(self.lg) - lg:] if lg else []
        if parts:
            self.out.append(Ins("s_waitcnt " + " ".join(parts)))
    def wait(self, vm=None, lg=None, force=False):
        if force:
            parts = []
            if vm is not None:
                parts.append(f"vmcnt({vm})"); self.vm = self.vm[max(0, len(self.vm) - vm):] if vm else []
            if lg is not None:
                parts.append(f"lgkmcnt({lg})"); self.lg = self.lg[max(0, len(self.lg) - lg):] if lg else []
            self.out.append(Ins("s_waitcnt " + " ".join(parts)))
        else:
            self._emit_wait(vm, lg)
    def wait_for(self, ops):
        if not isinstance(ops, (list, tuple)): ops = [ops]
        vm = lg = None
        for o in ops:
            if o in self.vm:
                n = len(self.vm) - 1 - self.vm.index(o)
                vm = n if vm is None else min(vm, n)
            if o in self.lg:
                n = len(self.lg) - 1 - self.lg.index(o)
                if any(x.kind == "smem" for x in self.lg): n = 0
                lg = n if lg is None else min(lg, n)
        self._emit_wait(vm, lg)
    def barrier(self):
        self.out.append(Ins("s_barrier"))
    def __call__(self, text):
        ins = Ins(text)
        touched = set(ins.src) | set(ins.srcC) | set(ins.dst) | set(ins.laneSel)
        need = []
        for o in self.vm + self.lg:
            if o.dst and touched.intersection(o.dst):
                need.append(o)
        if need: self.wait_for(need)
        n = self._hazard(ins)
        while n > 0:
            k = min(n, 16)
            self.out.append(Ins(f"s_nop {k-1}")); n -= k; self.nnop += 1
        self.out.append(ins)
        if ins.kind == "vmem": self.vm.append(ins)
        elif ins.kind in ("lds", "smem"): self.lg.append(ins)
        return ins

    def _hazard(self, c):
        need = 0
        dist = 0
        csrc = set(c.src); cC = set(c.srcC); cdst = set(c.dst)
        call = csrc | cC
        for p in reversed(self.out):
            if dist >= 14: break
            if p.kind == "dir":
                continue
            req = 0
            pd = set(p.dst)
            if p.kind == "valu":
                isdot = p.op.startswith("v_dot")
                vg = {x for x in pd if x[0] in "va"}
                sg = {x for x in pd if x[0] == "s"}
                if c.kind == "mfma" and vg & call: req = max(req, 3 if isdot else 2)
                if c.kind == "mfma" and ("s", "exec") in sg: req = max(req, 4)
                if c.kind == "valu":
                    if c.dpp and vg & csrc: req = max(req, 2)
                    if c.dpp and ("s", "exec") in sg: req = max(req, 5)
                    if c.op.startswith("v_permlane") and vg & csrc: req = max(req, 2)
                    if c.op in ("v_readlane_b32", "v_readfirstlane_b32") and vg & csrc: req = max(req, 1)
                    if sg & csrc: req = max(req, 2)
                    if sg & set(c.laneSel): req = max(req, 4)
                    if ("s", "exec") in sg and c.op in ("v_readlane_b32", "v_readfirstlane_b32", "v_writelane_b32"): req = max(req, 4)
                    if p.op in TRANS and vg & csrc: req = max(req, 1)
                    if p.opsel and vg & (csrc | cdst): req = max(req, 1)
                if isdot and vg & (call | cdst):
                    same = (c.op == p.op)
                    if same and c.dst == p.dst and not (vg & set(c.src[:2])): pass
                    else: req = max(req, 3)
                if c.kind == "vmem" and sg & csrc: req = max(req, 5)
            elif p.kind == "mfma":
                big = 12 if p.passes == 8 else 8
                if c.kind == "mfma":
                    if pd & csrc: req = max(req, big)
                    if pd & cC:
                        if not (p.dst == c.srcC and p.passes == c.passes): req = max(req, big - 2)
                    elif pd & cdst: req = max(req, big)
                elif c.kind in ("valu", "vmem", "lds"):
                    if pd & (csrc | cdst): req = max(req, big)
                    if c.kind == "valu" and set(p.srcC) & cdst: req = max(req, 7 if p.passes == 8 else 3)
            elif p.kind == "salu":
                if ("s", "m0") in pd and c.lds_dma: req = max(req, 1)
            elif p.kind == "vmem":
                if p.wide and set(p.wide) & cdst: req = max(req, 2)
            if req - dist > need: need = req - dist
            dist += p.states()
        return need

    def pad(self, n=13):
        self.out.append(Ins(f"s_nop {n-1}"))

    def text(self):
        return "\n".join(i.text for i in self.out) + "\n"
    def count(self):
        return sum(1 for i in self.out if i.kind != "dir")

def kernel_header(name):
    return f".globl {name}\n.p2align 8\n.type {name},@function\n{name}:\n"

def kernel_desc(name, vgpr=256, accum=256, sgpr=102):
    return f""".p2align 6
.amdhsa_kernel {name}
  .amdhsa_next_free_vgpr {vgpr}
  .amdhsa_next_free_sgpr {sgpr}
  .amdhsa_accum_offset {accum}
  .amdhsa_group_segment_fixed_size 0
  .amdhsa_kernarg_size 88
  .amdhsa_user_sgpr_count 2
  .amdhsa_user_sgpr_kernarg_segment_ptr 1
  .amdhsa_system_sgpr_workgroup_id_x 1
.end_amdhsa_kernel
"""
```

```python
from common import *
from rows import sincos_pack, twiddle, DROW

W0 = 128
TW = 96
D = 64
PK = 48
T = 32
V_XA, V_WRD, V_FL, V_FG = 2, 4, 6, 7
AM = 256
AX = 256 + 128

def col_w_issue(P, SWR, SWI, swave, sf, st):
    P(f"v_lshrrev_b32 v{T}, 2, v0")
    P(f"v_mul_u32_u24 v{T}, 2052, v{T}")
    P(f"v_lshrrev_b32 v{T+1}, 4, v0")
    P(f"v_xor_b32 v{T+1}, v{T+1}, v0")
    P(f"v_and_b32 v{T+1}, 3, v{T+1}")
    P(f"v_lshl_add_u32 v{T}, v{T+1}, 4, v{T}")
    for j in range(1, 4):
        P(f"v_add_u32 v{T+j}, {j*(16*2052-1024)}, v{T}")
    P(f"s_and_b32 s{st}, s{sf}, 1")
    P(f"s_mul_i32 s{st}, s{st}, 1026")
    P(f"s_lshr_b32 s{st+1}, s{sf}, 1")
    P(f"s_lshl_b32 s{st+1}, s{st+1}, 6")
    P(f"s_add_u32 s{st}, s{st}, s{st+1}")
    P(f"s_mul_i32 s{st+1}, s{swave}, {256*2052}")
    P(f"s_add_u32 s{st}, s{st}, s{st+1}")
    P(f"s_add_u32 s{st}, s{st}, 2")
    P(f"s_lshl_b32 s{st+1}, s{swave}, 14")
    h = []
    for u in range(4):
        for arr, S in enumerate((SWR, SWI)):
            P(f"s_add_u32 m0, s{st+1}, {arr*65536+u*4096}")
            P("s_nop 0")
            for j in range(4):
                h.append(P(f"buffer_load_dwordx4 v{T+j}, s[{S}:{S+3}], s{st} offen offset:{j*1024} lds"))
        if u < 3: P(f"s_add_u32 s{st}, s{st}, {64*2052}")
    return h

def col_consts(P, sf, st):
    P(f"s_and_b32 s{st}, s{sf}, 1")
    P(f"v_cvt_f32_u32 v{T+13}, s{st}")
    P(f"v_and_b32 v{T+8}, 31, v0")
    P(f"v_cvt_f32_u32 v{T+8}, v{T+8}")
    P(f"v_lshrrev_b32 v{T+9}, 5, v0")
    P(f"v_cvt_f32_u32 v{T+9}, v{T+9}")
    P(f"v_mul_f32 v{T+9}, 4.0, v{T+9}")
    def two(base, fwd):
        sincos_pack(P, base, T + 11, T + 10, DROW, T, neg_sin=not fwd)
        P(f"v_add_f32 v{T+11}, {hexf(0.25 if fwd else -0.25)}, v{T+11}")
        sincos_pack(P, base + 16, T + 11, T + 10, DROW, T, neg_sin=not fwd)
    P(f"v_fma_f32 v{T+10}, v{T+8}, 2.0, v{T+13}")
    P(f"v_mul_f32 v{T+10}, {hexf(1/64)}, v{T+10}")
    P(f"v_mul_f32 v{T+11}, v{T+10}, v{T+9}")
    two(AM, True)
    P(f"v_mul_f32 v{T+10}, {hexf(1/2048)}, v{T+13}")
    P(f"v_fmac_f32 v{T+10}, {hexf(1/32)}, v{T+8}")
    P(f"v_mul_f32 v{T+11}, v{T+10}, v{T+9}")
    two(AM + 32, True)
    P(f"v_mul_f32 v{T+10}, {hexf(1/32)}, v{T+8}")
    P(f"v_mul_f32 v{T+12}, v{T+10}, v{T+13}")
    P(f"v_mul_f32 v{T+11}, v{T+10}, v{T+9}")
    P(f"v_fmac_f32 v{T+11}, {hexf(1/64)}, v{T+12}")
    two(AM + 64, False)
    P(f"v_mul_f32 v{T+11}, v{T+10}, v{T+9}")
    P(f"v_fmac_f32 v{T+11}, 0.5, v{T+12}")
    two(AM + 96, False)
    P(f"v_mul_f32 v{T+10}, {hexf(1/1024)}, v{T+8}")
    P(f"v_mul_f32 v{T+11}, v{T+10}, v{T+9}")
    for i in range(16):
        t = T + (i % 2)
        if DROW[i] == 0: P(f"v_mov_b32 v{t}, v{T+11}")
        else: P(f"v_fmamk_f32 v{t}, v{T+10}, {hexf(float(DROW[i]))}, v{T+11}")
        P(f"v_cos_f32 v{TW+i}, v{t}"); P(f"v_sin_f32 v{TW+16+i}, v{t}")

def col_w_read(P, h, swave):
    P(f"v_bfe_u32 v{T}, v0, 2, 2")
    P(f"v_xor_b32 v{T}, s{swave}, v{T}")
    P(f"v_lshlrev_b32 v{T}, 4, v{T}")
    P(f"v_and_b32 v{T+1}, 31, v0")
    P(f"v_lshl_add_u32 v{T}, v{T+1}, 6, v{T}")
    P(f"v_lshrrev_b32 v{T+1}, 5, v0")
    P(f"v_lshl_add_u32 v{V_WRD}, v{T+1}, 13, v{T}")
    P(f"v_add_u32 v{V_WRD+1}, 0x10000, v{V_WRD}")
    P.wait_for(h); P.barrier()
    for arr in range(2):
        for i in range(16):
            P(f"ds_read_b128 {v(W0+64*arr+4*i,4)}, v{V_WRD+arr} offset:{DROW[i]*2048}")
    P.wait(lg=0); P.barrier()

def col_x_issue(P, SXB, swave, sf, st, pol=" sc1"):
    P(f"v_lshlrev_b32 v{T}, 4, v0")
    P(f"s_lshl_b32 s{st}, s{sf}, 17")
    P(f"s_lshl_b32 s{st+1}, s{swave}, 15")
    P(f"s_add_u32 s{st}, s{st}, s{st+1}")
    h = []
    for u in range(8):
        P(f"s_add_u32 m0, s{st+1}, {u*4096}")
        P(f"s_add_u32 s{st+2}, s{st}, {u*4096}")
        for j in range(4):
            h.append(P(f"buffer_load_dwordx4 v{T}, s[{SXB}:{SXB+3}], s{st+2} offen offset:{j*1024}{pol} lds"))
    return h

def mm(P, d, data, mat, data_is_a):
    for part in range(2):
        for q in range(4):
            x, m = r(data + 4 * q, 4), r(mat + 16 * part + 4 * q, 4)
            A, B = (x, m) if data_is_a else (m, x)
            dd = v(d + 16 * part, 16)
            P(f"v_mfma_f32_32x32x16_bf16 {dd}, {A}, {B}, {'0' if q == 0 else dd}")

def pack(P):
    for i in range(16):
        P(f"v_cvt_pk_bf16_f32 v{PK+i}, v{D+i}, v{D+16+i}")

def col_main(P, h, SYB, swave, sf, st, pol=""):
    P(f"v_and_b32 v{T}, 15, v0")
    P(f"s_lshl_b32 s{st}, s{swave}, 3")
    P(f"v_xor_b32 v{T}, s{st}, v{T}")
    P(f"v_lshlrev_b32 v{T}, 4, v{T}")
    P(f"v_and_b32 v{T+1}, 31, v0")
    P(f"v_lshl_add_u32 v{T}, v{T+1}, 12, v{T}")
    P(f"v_lshrrev_b32 v{T+1}, 5, v0")
    P(f"v_lshl_add_u32 v{V_XA}, v{T+1}, 9, v{T}")
    P.wait_for(h); P.barrier()
    def xread(jj):
        ad = V_XA + (jj % 2)
        if jj > 0: P(f"v_xor_b32 v{ad}, {16*(jj^(jj-1))}, v{V_XA+((jj-1)%2)}")
        for q in range(4):
            P(f"ds_read_b128 {r(AX+16*(jj%2)+4*q,4)}, v{ad} offset:{q*1024}")
    xread(0)
    for jj in range(8):
        mm(P, D, AX + 16 * (jj % 2), AM, True)
        twiddle(P, D, D + 16, TW, TW + 16, T, False)
        pack(P)
        mm(P, D, PK, AM + 32, False)
        for j in range(0, 16, 2):
            t = T + 4 + 4 * ((j // 2) % 2)
            for e in range(2):
                for arr in range(2):
                    src = W0 + 64 * arr + 4 * (j + e) + jj // 2
                    if jj % 2 == 0: P(f"v_lshlrev_b32 v{t+2*arr+e}, 16, v{src}")
                    else: P(f"v_and_b32 v{t+2*arr+e}, 0xffff0000, v{src}")
            R, I, C, S, TT = v(D + j, 2), v(D + 16 + j, 2), v(t, 2), v(t + 2, 2), v(T + 2 * ((j // 2) % 2), 2)
            P(f"v_pk_mul_f32 {TT}, {R}, {S}")
            P(f"v_pk_mul_f32 {R}, {R}, {C}")
            P(f"v_pk_fma_f32 {R}, {I}, {S}, {R} neg_lo:[1,0,0] neg_hi:[1,0,0]")
            P(f"v_pk_fma_f32 {I}, {I}, {C}, {TT}")
        pack(P)
        mm(P, D, PK, AM + 64, True)
        twiddle(P, D, D + 16, TW, TW + 16, T, True)
        pack(P)
        mm(P, D, PK, AM + 96, False)
        if jj < 7: xread(jj + 1)
        pack(P)
        for q in range(4):
            P(f"ds_write_b128 v{V_XA+(jj%2)}, {v(PK+4*q,4)} offset:{q*1024}")
    P(f"v_lshlrev_b32 v{V_FG}, 4, v0")
    P(f"s_lshl_b32 s{st+1}, s{swave}, 15")
    P(f"v_add_u32 v{V_FL}, s{st+1}, v{V_FG}")
    P(f"s_lshl_b32 s{st}, s{sf}, 17")
    P(f"s_add_u32 s{st}, s{st}, s{st+1}")
    P.wait(lg=0); P.barrier()
    for u in range(32):
        P(f"ds_read_b128 {v(W0+4*u,4)}, v{V_FL} offset:{u*1024}")
    for u in range(32):
        if u and u % 4 == 0: P(f"s_add_u32 s{st}, s{st}, 4096")
        P(f"buffer_store_dwordx4 {v(W0+4*u,4)}, v{V_FG}, s[{SYB}:{SYB+3}], s{st} offen offset:{(u%4)*1024}{pol}")
```

```python
from asmlib import *
import math

WS_STATS = 0x0000000
WS_XBUF  = 0x0100000
WS_YBUF  = 0x0500000
WS_YROW  = 0x0900000
WS_PART  = 0x0D00000
WS_H     = 0x1800000

K_X, K_WR, K_WI, K_W1, K_B1, K_W2, K_B2, K_OUT, K_DBG, K_WS = 0, 8, 16, 32, 40, 48, 56, 64, 72, 80

GELU_C0 = -2.0 * math.sqrt(2.0 / math.pi) * math.log2(math.e)
GELU_C1 = GELU_C0 * 0.044715

def srd(P, d, base, nbytes, off=0):
    if off:
        P(f"s_add_u32 s{d}, s{base}, 0x{off:x}")
        P(f"s_addc_u32 s{d+1}, s{base+1}, 0")
    else:
        P(f"s_mov_b32 s{d}, s{base}")
        P(f"s_mov_b32 s{d+1}, s{base+1}")
    P(f"s_mov_b32 s{d+2}, 0x{nbytes:x}")
    P(f"s_mov_b32 s{d+3}, 0x20000")

COST = {"trans": 8}
def cost(text):
    op = text.split()[0]
    if op in TRANS: return 8
    return 4
```

```python
from common import *

S_X, S_W1, S_H, S_ST, S_B1 = 16, 20, 24, 28, 32
S_WAVE, S_MT, S_NT = 40, 41, 42
S_XB1, S_WB, S_XB2, S_HB, S_T0, S_T1, S_LW, S_LW2, S_XO, S_WO = 43, 44, 45, 46, 47, 48, 49, 50, 51, 52
S_STO, S_ROT, S_KB = 53, 54, 55

V_DX = 2
V_DW = 6
V_RX = 10
V_RW = 18
V_HO = 20
V_SO = 21
V_ONE = 24
V_CS = 28
V_AUG = 32
V_T = 36
V_PK = 48
V_B = 64
V_CT = 112
V_BA = 128
V_ACC = 160
def accreg(t): return V_ACC + 16 * (t % 6)
NB = 12

def gemm1_setup(P, rot=0, pat=0):
    P("v_lshrrev_b32 v1, 6, v0")
    P(f"v_readfirstlane_b32 s{S_WAVE}, v1")
    P("v_and_b32 v0, 63, v0")
    P(f"s_and_b32 s{S_T0}, s2, 1")
    P(f"s_lshl_b32 s{S_T0}, s{S_T0}, 2")
    P(f"s_bfe_u32 s{S_T1}, s2, 0x20003")
    P(f"s_add_u32 s{S_MT}, s{S_T0}, s{S_T1}")
    P(f"s_bfe_u32 s{S_T0}, s2, 0x20001")
    P(f"s_mul_i32 s{S_T0}, s{S_T0}, 7")
    P(f"s_lshr_b32 s{S_T1}, s2, 5")
    P(f"s_add_u32 s{S_NT}, s{S_T0}, s{S_T1}")
    P("v_lshrrev_b32 v1, 3, v0")
    P(f"v_lshrrev_b32 v{V_T}, 4, v0")
    P(f"v_and_b32 v{V_T+1}, 7, v0")
    P(f"v_xor_b32 v{V_T+1}, v{V_T+1}, v{V_T}")
    P(f"v_lshlrev_b32 v1, 11, v1")
    P(f"v_lshl_add_u32 v{V_DX}, v{V_T+1}, 4, v1")
    P(f"v_xor_b32 v{V_DX+1}, 64, v{V_DX}")
    P(f"v_add_u32 v{V_DX+1}, {8*2048-1024}, v{V_DX+1}")
    P(f"v_add_u32 v{V_DX+2}, {16*2048-2048}, v{V_DX}")
    P(f"v_add_u32 v{V_DX+3}, {16*2048-2048}, v{V_DX+1}")
    P(f"v_lshlrev_b32 v{V_T+1}, 2, v{V_T}")
    P(f"v_and_b32 v{V_T+2}, 15, v0")
    P(f"v_xor_b32 v{V_T+1}, v{V_T+1}, v{V_T+2}")
    P(f"v_mul_u32_u24 v{V_T+3}, 7168, v{V_T}")
    P(f"v_lshl_add_u32 v{V_DW}, v{V_T+1}, 4, v{V_T+3}")
    for j in range(1, 4):
        P(f"v_add_u32 v{V_DW+j}, {j*(4*7168-1024)}, v{V_DW}")
    if pat & 1:
        P(f"v_and_b32 v{V_T+1}, 7, v0")
        P(f"v_lshl_add_u32 v{V_DX}, v{V_T+1}, 4, v1")
        for j in range(1, 4): P(f"v_add_u32 v{V_DX+j}, {j*(8*2048-1024)}, v{V_DX}")
    if pat & 2:
        P(f"v_lshlrev_b32 v{V_DX}, 4, v0")
        for j in range(1, 4): P(f"v_add_u32 v{V_DX+j}, {j*(8*2048-1024)}, v{V_DX}")
    if pat & 4:
        P(f"v_lshlrev_b32 v{V_DW}, 4, v0")
        for j in range(1, 4): P(f"v_add_u32 v{V_DW+j}, {j*(4*7168-1024)}, v{V_DW}")
    P(f"v_and_b32 v{V_T+1}, 31, v0")
    P(f"v_bfe_u32 v{V_T+2}, v0, 1, 3")
    P(f"v_lshrrev_b32 v{V_T+3}, 5, v0")
    P(f"v_xor_b32 v{V_T+2}, v{V_T+2}, v{V_T+3}")
    P(f"v_lshlrev_b32 v{V_T+2}, 4, v{V_T+2}")
    P(f"v_lshl_add_u32 v{V_RX}, v{V_T+1}, 7, v{V_T+2}")
    for q in range(1, 4):
        P(f"v_xor_b32 v{V_RX+q}, {32*q}, v{V_RX}")
    for q in range(4):
        P(f"v_add_u32 v{V_RX+4+q}, 0x10000, v{V_RX+q}")
    P(f"v_bfe_u32 v{V_T+4}, v0, 2, 2")
    P(f"v_lshl_add_u32 v{V_T+5}, v{V_T+3}, 3, v{V_T+4}")
    P(f"v_bfe_u32 v{V_T+6}, v0, 4, 1")
    P(f"v_bfe_u32 v{V_T+7}, v0, 1, 1")
    P(f"v_lshl_add_u32 v{V_T+6}, v{V_T+6}, 1, v{V_T+7}")
    P(f"v_xor_b32 v{V_T+4}, s{S_WAVE}, v{V_T+4}")
    P(f"v_lshl_add_u32 v{V_T+6}, v{V_T+4}, 2, v{V_T+6}")
    P(f"v_lshlrev_b32 v{V_T+6}, 4, v{V_T+6}")
    P(f"v_lshl_add_u32 v{V_T+5}, v{V_T+5}, 8, v{V_T+6}")
    P(f"v_and_b32 v{V_T+7}, 1, v0")
    P(f"v_lshl_add_u32 v{V_RW}, v{V_T+7}, 3, v{V_T+5}")
    P(f"v_add_u32 v{V_RW}, 0x4000, v{V_RW}")
    P(f"v_add_u32 v{V_RW+1}, 0x10000, v{V_RW}")
    P(f"v_bfe_u32 v{V_T+6}, v0, 4, 1")
    P(f"v_and_b32 v{V_T+7}, 15, v0")
    P(f"v_lshlrev_b32 v{V_T+7}, 4, v{V_T+7}")
    P(f"v_lshl_add_u32 v{V_T+7}, v{V_T+6}, 10, v{V_T+7}")
    P(f"v_lshl_add_u32 v{V_HO}, v{V_T+3}, 8, v{V_T+7}")
    P(f"v_lshlrev_b32 v{V_SO}, 5, v{V_T+1}")
    P(f"v_bfe_u32 v{V_T+7}, v0, 2, 1")
    P(f"v_cmp_eq_u32 vcc, v{V_T+6}, v{V_T+7}")
    P(f"v_mov_b32 v{V_T+8}, 0x3f803f80")
    for i in range(4):
        P(f"v_cndmask_b32 v{V_ONE+i}, 0, v{V_T+8}, vcc")
    P(f"s_lshl_b32 s{S_XB2}, s{S_MT}, 19")
    P(f"s_lshl_b32 s{S_T0}, s{S_WAVE}, 16")
    P(f"s_add_u32 s{S_XB1}, s{S_XB2}, s{S_T0}")
    P(f"s_add_u32 s{S_XB2}, s{S_XB2}, 0x40000")
    if rot == 0: P(f"s_mov_b32 s{S_ROT}, 0")
    elif rot == 1: P(f"s_lshl_b32 s{S_ROT}, s{S_NT}, 1")
    elif rot == 2: P(f"s_lshl_b32 s{S_ROT}, s{S_MT}, 2")
    elif rot == 3: P(f"s_lshr_b32 s{S_ROT}, s2, 3")
    elif rot == 4:
        P(f"s_lshr_b32 s{S_ROT}, s2, 3"); P(f"s_mul_i32 s{S_ROT}, s{S_ROT}, 5")
    P(f"s_mul_i32 s{S_T0}, s{S_WAVE}, {16*7168}")
    P(f"s_lshl_b32 s{S_T1}, s{S_NT}, 8")
    P(f"s_add_u32 s{S_WB}, s{S_T0}, s{S_T1}")
    P(f"s_lshl_b32 s{S_LW}, s{S_WAVE}, 12")
    P(f"s_lshl_b32 s{S_LW2}, s{S_WAVE}, 13")
    P(f"s_lshl_b32 s{S_T0}, s{S_NT}, 2")
    P(f"s_add_u32 s{S_T0}, s{S_T0}, s{S_WAVE}")
    P(f"s_lshl_b32 s{S_HB}, s{S_T0}, 17")
    P(f"s_lshl_b32 s{S_T1}, s{S_MT}, 14")
    P(f"s_add_u32 s{S_HB}, s{S_HB}, s{S_T1}")
    P(f"s_lshl_b32 s{S_STO}, s{S_MT}, 13")

def dma_list(stage, ldpol=""):
    slot = (stage % 4) * 0x8000
    L = []
    if stage < 16:
        kb = stage
        L.append(f"s_add_u32 m0, s{S_LW}, 0x{slot:x}")
        L.append(f"s_add_u32 s{S_KB}, s{S_ROT}, {kb}")
        L.append(f"s_and_b32 s{S_KB}, s{S_KB}, 15")
        L.append(f"s_lshl_b32 s{S_XO}, s{S_KB}, 7")
        L.append(f"s_add_u32 s{S_XO}, s{S_XO}, s{S_XB1}")
        for j in range(4):
            L.append(f"buffer_load_dwordx4 v{V_DX+j}, s[{S_X}:{S_X+3}], s{S_XO} offen offset:{j*1024}{ldpol} lds")
        L.append(f"s_add_u32 m0, s{S_LW}, 0x{slot+0x4000:x}")
        L.append(f"s_mul_i32 s{S_WO}, s{S_KB}, {64*7168}")
        L.append(f"s_add_u32 s{S_WO}, s{S_WO}, s{S_WB}")
        for j in range(4):
            L.append(f"buffer_load_dwordx4 v{V_DW+j}, s[{S_W1}:{S_W1+3}], s{S_WO} offen offset:{j*1024}{ldpol} lds")
    else:
        u = stage - 16
        tile, half = u // 2, u % 2
        for sb in range(2):
            L.append(f"s_add_u32 m0, s{S_LW2}, 0x{slot+sb*4096:x}")
            if u == 0 and sb == 0:
                L.append(f"s_lshl_b32 s{S_KB}, s{S_WAVE}, 1")
                L.append(f"s_add_u32 s{S_ROT}, s{S_ROT}, s{S_KB}")
            L.append(f"s_add_u32 s{S_KB}, s{S_ROT}, {half*8+sb}")
            L.append(f"s_and_b32 s{S_KB}, s{S_KB}, 15")
            L.append(f"s_lshl_b32 s{S_XO}, s{S_KB}, 7")
            L.append(f"s_add_u32 s{S_XO}, s{S_XO}, s{S_XB2}")
            L.append(f"s_add_u32 s{S_XO}, s{S_XO}, {tile*65536}")
            for j in range(4):
                L.append(f"buffer_load_dwordx4 v{V_DX+j}, s[{S_X}:{S_X+3}], s{S_XO} offen offset:{j*1024}{ldpol} lds")
    return L


def gelu_ops(tile, stpol=""):
    acc = accreg(tile)
    pk = V_PK + 8 * (tile % 2)
    c3, c1, sd = V_CT + 4 * (tile % 4), V_CT + 4 * (tile % 4) + 1, V_CT + 4 * (tile % 4) + 2
    L = []
    for g in range(4):
        A = [acc + 4 * g + i for i in range(4)]
        T = [V_T + 4 * (g % 2) + i for i in range(4)]
        for i in range(4): L.append(f"v_mul_f32 v{T[i]}, v{A[i]}, v{A[i]}")
        for i in range(4): L.append(f"v_fma_f32 v{T[i]}, v{T[i]}, v{c3}, v{c1}")
        for i in range(4): L.append(f"v_mul_f32 v{T[i]}, v{A[i]}, v{T[i]}")
        for i in range(4): L.append(f"v_exp_f32 v{T[i]}, v{T[i]}")
        for i in range(4): L.append(f"v_fma_f32 v{T[i]}, v{T[i]}, v{sd}, v{sd}")
        for i in range(4): L.append(f"v_rcp_f32 v{T[i]}, v{T[i]}")
        for i in range(4): L.append(f"v_mul_f32 v{T[i]}, v{A[i]}, v{T[i]}")
        L.append(f"v_cvt_pk_bf16_f32 v{pk+2*g}, v{T[0]}, v{T[1]}")
        L.append(f"v_cvt_pk_bf16_f32 v{pk+2*g+1}, v{T[2]}, v{T[3]}")
        if g % 2 == 1:
            q = g // 2
            L.append(f"buffer_store_dwordx4 v[{pk+4*q}:{pk+4*q+3}], v{V_HO}, s[{S_H}:{S_H+3}], s{S_HB} offen offset:{(tile%2)*2048+q*512}{stpol}")
    if tile % 2 == 1: L.append(f"s_add_u32 s{S_HB}, s{S_HB}, 4096")
    if tile < 4:
        L.append(f"buffer_load_dwordx4 {v(V_CT+4*tile,4)}, v{V_SO}, s[{S_ST}:{S_ST+3}], s{S_STO} offen offset:{tile*1024+16} sc1")
    return L

def aug_ops():
    T = V_T + 8
    return [
        f"v_cvt_pk_bf16_f32 v{T}, v{V_CS}, v{V_CS}",
        f"v_lshl_or_b32 v{V_AUG}, v{V_AUG}, 16, v{V_AUG}",
        f"v_and_b32 v{T}, 0xffff0000, v{T}",
        f"v_sub_f32 v{T+1}, v{V_CS}, v{T}",
        f"v_cmp_gt_u32 vcc, 32, v0",
        f"v_cvt_pk_bf16_f32 v{T}, v{T}, v{T+1}",
        f"v_mov_b32 v{V_AUG+3}, 0",
        f"v_cndmask_b32 v{V_AUG}, 0, v{V_AUG}, vcc",
        f"v_cndmask_b32 v{V_AUG+1}, 0, v{T}, vcc",
        f"v_cndmask_b32 v{V_AUG+2}, 0, v{T}, vcc",
    ]

def gemm1_prologue(P, ldpol=""):
    dma_h = {}
    for st in range(4):
        dma_h[st] = [h for h in (P(t) for t in dma_list(st, ldpol)) if h.kind == "vmem"]
    P(f"v_lshrrev_b32 v{V_T}, 4, v{V_SO}")
    P(f"s_lshl_b32 s{S_T0}, s{S_NT}, 8")
    P(f"s_lshl_b32 s{S_T1}, s{S_WAVE}, 6")
    P(f"s_add_u32 s{S_T0}, s{S_T0}, s{S_T1}")
    P(f"buffer_load_ushort v{V_AUG}, v{V_T}, s[{S_B1}:{S_B1+3}], s{S_T0} offen")
    return dma_h

def gemm1_main(P, dma_h, budget=24, ldpol="", stpol="", poll=None, LA=9, BOFF=7, dma_gap=2, nogelu=False, WB=3, stamp=None, nodma=False, noread=False, nobar=False, nomfma=False):
    slots = []
    def add(m): slots.append(m); return len(slots) - 1
    bfrag = 0
    reads = []
    first = {}
    for st in range(16):
        for q4 in range(4):
            q = st * 4 + q4
            if q4 == 0: first[st] = len(slots)
            slot = st % 4; hi = slot // 2; base = (slot % 2) * 0x8000
            for t in range(4):
                b = V_B + 4 * (bfrag % NB); bfrag += 1
                acc = accreg(t)
                C = "0" if q == 0 else v(acc, 16)
                i = add(f"v_mfma_f32_32x32x16_bf16 {v(acc,16)}, {a(4*q,4)}, {v(b,4)}, {C}")
                if t == 0:
                    for h in range(2):
                        reads.append((st, i, f"ds_read_b64_tr_b16 {a(4*q+2*h,2)}, v{V_RW+hi} offset:{base+q4*4096+h*1024}"))
                reads.append((st, i, f"ds_read_b128 {v(b,4)}, v{V_RX+4*hi+q4} offset:{base+t*4096}"))
            C = "0" if q == 0 else v(V_CS, 4)
            add(f"v_mfma_f32_16x16x32_bf16 {v(V_CS,4)}, {v(V_ONE,4)}, {a(4*q,4)}, {C}")
    p1_end = len(slots)
    done = {}; start = {}
    def aug(t, init):
        acc = accreg(t)
        return add(f"v_mfma_f32_32x32x16_bf16 {v(acc,16)}, {v(V_AUG,4)}, {v(V_BA+4*t,4)}, {'0' if init else v(acc,16)}")
    for tile in range(4, 8):
        acc = accreg(tile)
        start[tile] = len(slots)
        for q in range(64):
            st = 16 + (tile - 4) * 2 + q // 32
            slot = st % 4; hi = slot // 2; base = (slot % 2) * 0x8000
            if tile > 4 and q == 0: aug(tile, True)
            if tile == 4 and q in (6, 8, 10, 12, 14):
                t = (q - 6) // 2
                i = aug(t, False)
                if t < 4: done[t] = i
            if q % 32 == 0: first[st] = len(slots)
            b = V_B + 4 * (bfrag % NB); bfrag += 1
            C = "0" if (q == 0 and tile == 4) else v(acc, 16)
            i = add(f"v_mfma_f32_32x32x16_bf16 {v(acc,16)}, {a(4*q,4)}, {v(b,4)}, {C}")
            reads.append((st, i, f"ds_read_b128 {v(b,4)}, v{V_RX+4*hi+q%4} offset:{base+((q%32)//4)*4096}"))
        done[tile] = len(slots) - 1
    n = len(slots)
    bar_at = {st: first[st] - BOFF for st in range(1, 24)}
    per_slot = {}
    for (st, cons, text) in reads:
        if noread and "b128" in text and cons % noread != 0: continue
        pos = cons - LA
        if st + 1 in bar_at: pos = min(pos, bar_at[st + 1] - 3)
        if st >= 1: pos = max(pos, bar_at[st])
        per_slot.setdefault(pos, []).append((cons, text))
    barpos = {p: st for st, p in bar_at.items()}
    extra = {}
    L = []
    for t in range(8):
        if t == 4: L.append(f"s_add_u32 s{S_STO}, s{S_STO}, 4096")
        L.append(f"buffer_load_dwordx4 {v(V_BA+4*t,4)}, v{V_SO}, s[{S_ST}:{S_ST+3}], s{S_STO} offen offset:{(t%4)*1024} sc1")
        if t < 4:
            L.append(f"buffer_load_dwordx4 {v(V_CT+4*t,4)}, v{V_SO}, s[{S_ST}:{S_ST+3}], s{S_STO} offen offset:{t*1024+16} sc1")
    pos = p1_end - 60
    for t in L:
        extra.setdefault(pos, []).append(t); pos += 2
    pos = p1_end + 1
    for i, t in enumerate(aug_ops()):
        extra.setdefault(pos + i // 4, []).append(t)

    rd_h = []
    P.wait_for(dma_h[0]); P.barrier()
    if stamp: stamp(P, 0)
    for pos in sorted(k for k in per_slot if k < 0):
        for c, t in per_slot[pos]: rd_h.append((c, P(t)))
    dq = []; gq = []; next_gelu = 0; last_dma = -10
    gelu_end = {}
    for i in range(n):
        for t, s0 in start.items():
            if s0 == i and t >= 6 and not nogelu: assert (t - 6) in gelu_end, "acc reuse before gelu done"
        if poll is not None and i == p1_end - 62: poll(P)
        if stamp and i in (80, 160, p1_end, start[6]): stamp(P, {80: 1, 160: 2, p1_end: 3, start[6]: 4}[i])
        n0 = len(P.out)
        if i % WB == 0:
            hs = [h for (c, h) in rd_h if i <= c < i + WB]
            if hs: P.wait_for(hs)
        if nomfma: P('s_nop 0')
        else: P(slots[i])
        bud = budget if "32x32" in slots[i] else 8
        if i in barpos:
            st = barpos[i]
            assert not dq, "dma queue not drained at barrier"
            P.wait(lg=0)
            P.wait_for(dma_h[st])
            if not nobar: P.barrier()
            if nodma: dma_h[st + 3] = []
            elif st + 3 < 24:
                dq = [(t, st + 3) for t in dma_list(st + 3, ldpol)]; dma_h[st + 3] = []
        for c, t in per_slot.get(i, []): rd_h.append((c, P(t)))
        rd_h = rd_h[-40:]
        for t in extra.get(i, []): P(t)
        if dq and i - last_dma >= dma_gap:
            while dq:
                t, st = dq.pop(0)
                h = P(t)
                if h.kind == "vmem":
                    dma_h[st].append(h); last_dma = i
                    break
        if not gq and next_gelu < 8 and done[next_gelu] + 3 <= i and not nogelu:
            gq = gelu_ops(next_gelu, stpol); next_gelu += 1
        used = sum(cost(x.text) for x in P.out[n0 + 1:])
        while gq and used + cost(gq[0]) <= bud:
            n1 = len(P.out)
            P(gq.pop(0))
            used += sum(cost(x.text) for x in P.out[n1:])
            if not gq:
                gelu_end[next_gelu - 1] = i
                if next_gelu < 8 and done[next_gelu] + 3 <= i:
                    gq = gelu_ops(next_gelu, stpol); next_gelu += 1
    if stamp: stamp(P, 5)
    tail = len(gq)
    for t in gq: P(t)
    while next_gelu < 8:
        g = gelu_ops(next_gelu, stpol); tail += len(g)
        for t in g: P(t)
        next_gelu += 1
    if stamp: stamp(P, 6)
    print("gemm1: slots", n, "tail instrs", tail, "gelu_end", gelu_end, "start", start)
```

```python
from common import *

S_H, S_W2, S_BASE, S_OUT, S_PART, S_DBG = 16, 20, 24, 28, 32, 36
S_WAVE, S_MT, S_NT, S_KH = 40, 41, 42, 43
S_WB, S_HB, S_T0, S_T1, S_LW, S_WO, S_HO, S_T2 = 44, 45, 46, 47, 48, 49, 50, 51

V_DW = 4
V_RA = 8
V_HV = 24
V_T = 26
V_A = 32
NA = 16
V_B = 96
NBK = 12
V_ACC = 192
NKS = 56
SS = 4
NST = NKS // SS

def gemm2_setup(P):
    P("v_lshrrev_b32 v1, 6, v0")
    P(f"v_readfirstlane_b32 s{S_WAVE}, v1")
    P("v_and_b32 v0, 63, v0")
    P(f"s_and_b32 s{S_KH}, s2, 1")
    P(f"s_bfe_u32 s{S_T0}, s2, 0x20001")
    P(f"s_lshl_b32 s{S_T0}, s{S_T0}, 2")
    P(f"s_bfe_u32 s{S_T1}, s2, 0x20003")
    P(f"s_add_u32 s{S_MT}, s{S_T0}, s{S_T1}")
    P(f"s_lshr_b32 s{S_NT}, s2, 5")

def gemm2_setup2(P):
    T = V_T
    P(f"v_lshrrev_b32 v{T}, 4, v0")
    P(f"v_lshlrev_b32 v{T+1}, 1, v{T}")
    P(f"v_and_b32 v{T+2}, 15, v0")
    P(f"v_xor_b32 v{T+1}, v{T+1}, v{T+2}")
    P(f"v_lshlrev_b32 v{T+1}, 4, v{T+1}")
    P(f"v_lshl_add_u32 v{V_DW}, v{T}, 11, v{T+1}")
    P(f"v_xor_b32 v{V_DW+1}, 128, v{V_DW}")
    P(f"v_add_u32 v{V_DW+1}, {4*2048-1024}, v{V_DW+1}")
    P(f"v_add_u32 v{V_DW+2}, {8*2048-2048}, v{V_DW}")
    P(f"v_add_u32 v{V_DW+3}, {8*2048-2048}, v{V_DW+1}")
    P(f"v_bfe_u32 v{T}, v0, 2, 3")
    P(f"v_lshrrev_b32 v{T+1}, 5, v0")
    P(f"v_lshl_add_u32 v{T+1}, v{T+1}, 4, v{T}")
    P(f"v_lshlrev_b32 v{T+1}, 8, v{T+1}")
    P(f"v_lshl_add_u32 v{T+1}, v{T}, 5, v{T+1}")
    P(f"v_and_b32 v{T+2}, 3, v0")
    P(f"v_lshl_add_u32 v{V_RA}, v{T+2}, 3, v{T+1}")
    for t in range(1, 8):
        P(f"v_xor_b32 v{V_RA+t}, {32*t}, v{V_RA}")
    for t in range(8):
        P(f"v_add_u32 v{V_RA+8+t}, 0x10000, v{V_RA+t}")
    P(f"v_lshlrev_b32 v{V_HV}, 4, v0")
    P(f"s_lshl_b32 s{S_T0}, s{S_KH}, 10")
    P(f"v_add_u32 v{V_HV+1}, s{S_T0}, v{V_HV}")
    P(f"v_xor_b32 v{V_DW-1}, 1024, v{V_HV+1}")
    P(f"s_mul_i32 s{S_WB}, s{S_KH}, {1792*2048}")
    P(f"s_lshl_b32 s{S_T0}, s{S_WAVE}, 16")
    P(f"s_add_u32 s{S_WB}, s{S_WB}, s{S_T0}")
    P(f"s_lshl_b32 s{S_T0}, s{S_NT}, 8")
    P(f"s_add_u32 s{S_WB}, s{S_WB}, s{S_T0}")
    P(f"s_lshl_b32 s{S_LW}, s{S_WAVE}, 13")
    P(f"s_mul_i32 s{S_HB}, s{S_KH}, {56*131072}")
    P(f"s_lshl_b32 s{S_T0}, s{S_MT}, 13")
    P(f"s_add_u32 s{S_HB}, s{S_HB}, s{S_T0}")
    P(f"s_lshl_b32 s{S_T0}, s{S_WAVE}, 11")
    P(f"s_add_u32 s{S_HB}, s{S_HB}, s{S_T0}")

def w_dma(st):
    slot = (st % 4) * 0x8000
    L = []
    for hf in range(2):
        L.append(f"s_add_u32 m0, s{S_LW}, 0x{slot+hf*4096:x}")
        L.append(f"s_add_u32 s{S_WO}, s{S_WB}, {(st*128+hf*16)*2048}")
        for j in range(4):
            L.append(f"buffer_load_dwordx4 v{V_DW+j}, s[{S_W2}:{S_W2+3}], s{S_WO} offen offset:{j*1024} lds")
    return L

def h_loads(ks):
    b = V_B + 8 * (ks % NBK)
    return [f"s_add_u32 s{S_HO}, s{S_HB}, {ks*131072}",
            f"buffer_load_dwordx4 {v(b,4)}, v{V_HV+1}, s[{S_H}:{S_H+3}], s{S_HO} offen",
            f"buffer_load_dwordx4 {v(b+4,4)}, v{V_DW-1}, s[{S_H}:{S_H+3}], s{S_HO} offen"]

def gemm2_prologue(P, nst=3, nks=NBK - 1):
    dma_h = {}
    k = 0
    for st in range(nst):
        dma_h[st] = [h for h in (P(t) for t in w_dma(st)) if h.kind == "vmem"]
        for _ in range(SS):
            if k < nks:
                for t in h_loads(k): P(t)
                k += 1
    return dma_h, k

def gemm2_main(P, dma_h, knext, LA=20, BOFF=16, WB=4, stamp=None):
    slots = []; reads = []; first = {}; kfirst = {}
    af = 0
    for ks in range(NKS):
        st = ks // SS
        if ks % SS == 0: first[st] = len(slots)
        kfirst[ks] = len(slots)
        slot = st % 4; hi = slot // 2; base = (slot % 2) * 0x8000 + (ks % SS) * 8192
        for T in range(8):
            A = V_A + 4 * (af % NA); af += 1
            for h in range(2):
                reads.append((st, len(slots), f"ds_read_b64_tr_b16 {v(A+2*h,2)}, v{V_RA+8*hi+T} offset:{base+h*2048}"))
            for tt in range(2):
                acc = V_ACC + 32 * tt + 4 * T
                B = V_B + 8 * (ks % NBK) + 4 * tt
                slots.append(f"v_mfma_f32_16x16x32_bf16 {v(acc,4)}, {v(A,4)}, {v(B,4)}, {'0' if ks == 0 else v(acc,4)}")
    n = len(slots)
    bar_at = {st: first[st] - BOFF for st in range(1, NST)}
    per_slot = {}
    for idx, (st, cons, text) in enumerate(reads):
        pos = cons - LA + (idx % 2)
        if st + 1 in bar_at: pos = min(pos, bar_at[st + 1] - 6)
        if st >= 1: pos = max(pos, bar_at[st])
        per_slot.setdefault(pos, []).append((cons, text))
    barpos = {p: st for st, p in bar_at.items()}
    nd = len(dma_h)
    rd_h = []
    P.wait_for(dma_h[0]); P.barrier()
    if stamp: stamp(P, 0)
    for pos in sorted(k for k in per_slot if k < 0):
        for c, t in per_slot[pos]: rd_h.append((c, P(t)))
    dq = []
    if nd < 4:
        dq = [(t, nd) for t in w_dma(nd)]; dma_h[nd] = []
    hq = []
    kstart = {p: ks for ks, p in kfirst.items()}
    for i in range(n):
        if stamp and i in (224, 448, 672): stamp(P, i // 224)
        if i % WB == 0:
            hs = [h for (c, h) in rd_h if i <= c < i + WB]
            if hs: P.wait_for(hs)
        P(slots[i])
        if i in kstart and knext < NKS and kstart[i] + NBK - 1 >= knext and (kstart[i] >= 1 or knext < NBK):
            hq += h_loads(knext); knext += 1
        if i in barpos:
            st = barpos[i]
            assert not dq
            P.wait(lg=0)
            P.wait_for(dma_h[st]); P.barrier()
            if st + 3 < NST:
                dq = [(t, st + 3) for t in w_dma(st + 3)]; dma_h[st + 3] = []
        for c, t in per_slot.get(i, []): rd_h.append((c, P(t)))
        rd_h = rd_h[-60:]
        if i % 4 == 1 and hq:
            while hq:
                if P(hq.pop(0)).kind == "vmem": break
        elif i % 4 == 3 and dq and (i % 8 == 3 or i < 64):
            while dq:
                t, st = dq.pop(0)
                h = P(t)
                if h.kind == "vmem":
                    dma_h[st].append(h); break
    if stamp: stamp(P, 4)

def gemm2_epilogue(P, name, wait_base=None):
    T = V_T
    P(f"s_lshl_b32 s{S_T0}, s2, 15")
    P(f"s_add_u32 s{S_T0}, s{S_T0}, s{S_LW}")
    P(f"s_add_u32 s{S_T1}, s{S_T0}, 4096")
    for t in range(8):
        P(f"buffer_store_dwordx4 {v(V_ACC+32+4*t,4)}, v{V_HV}, s[{S_PART}:{S_PART+3}], s{S_T0 if t < 4 else S_T1} offen offset:{(t%4)*1024} sc1")
    P(f"v_lshrrev_b32 v{T}, 4, v0")
    P(f"v_and_b32 v{T+1}, 15, v0")
    P(f"v_lshlrev_b32 v{T+2}, 4, v{T+1}")
    P(f"v_lshl_add_u32 v{T+2}, v{T}, 11, v{T+2}")
    P(f"s_lshl_b32 s{S_HO}, s{S_MT}, 18")
    P(f"s_lshl_b32 s{S_T2}, s{S_WAVE}, 16")
    P(f"s_add_u32 s{S_HO}, s{S_HO}, s{S_T2}")
    P(f"s_lshl_b32 s{S_T2}, s{S_KH}, 15")
    P(f"s_add_u32 s{S_HO}, s{S_HO}, s{S_T2}")
    P(f"s_lshl_b32 s{S_T2}, s{S_NT}, 8")
    P(f"s_add_u32 s{S_HO}, s{S_HO}, s{S_T2}")
    P(f"s_mul_i32 s{S_T2}, s{S_WAVE}, {16*528}")
    P(f"v_mul_u32_u24 v{T+3}, 528, v{T+1}")
    P(f"v_lshl_add_u32 v{T+3}, v{T}, 4, v{T+3}")
    P(f"v_add_u32 v{T+3}, s{S_T2}, v{T+3}")
    P(f"v_mul_u32_u24 v{T+4}, 528, v{T}")
    P(f"v_lshl_add_u32 v{T+4}, v{T+1}, 5, v{T+4}")
    P(f"v_add_u32 v{T+4}, s{S_T2}, v{T+4}")
    P.wait(vm=0); P.barrier()
    P(f"s_lshr_b32 s{S_T2}, s2, 5")
    P(f"s_lshl_b32 s{S_T2}, s{S_T2}, 2")
    P(f"s_and_b32 s{S_WO}, s2, 31")
    P(f"s_lshl_b32 s{S_WB}, 1, s{S_WO}")
    P(f"s_xor_b32 s{S_WO}, s{S_WO}, 1")
    P(f"v_mov_b32 v{T}, s{S_WB}")
    P(f"v_mov_b32 v{T+1}, 0")
    P(f"s_cmp_lg_u32 s{S_WAVE}, 0")
    P(f"s_cbranch_scc1 L_{name}_nosig")
    P(f"s_mov_b64 exec, 1")
    P(f"buffer_atomic_or v{T}, v{T+1}, s[{S_DBG}:{S_DBG+3}], s{S_T2} offen sc1")
    P(f"s_mov_b64 exec, -1")
    P.label(f"L_{name}_nosig")
    P.reset_state()
    if wait_base: wait_base(P)
    for u in range(4):
        P(f"buffer_load_dwordx4 {v(V_B+4*u,4)}, v{T+2}, s[{S_BASE}:{S_BASE+3}], s{S_HO} offen sc1")
        P(f"s_add_u32 s{S_HO}, s{S_HO}, 8192")
    P(f"s_sub_u32 s{S_HO}, s{S_HO}, 32768")
    P.label(f"L_{name}_poll")
    P(f"buffer_load_dword v{T+5}, v{T+1}, s[{S_DBG}:{S_DBG+3}], s{S_T2} offen sc1")
    P.wait(vm=0, force=True)
    P(f"v_readfirstlane_b32 s{S_WB}, v{T+5}")
    P(f"s_bitcmp1_b32 s{S_WB}, s{S_WO}")
    P(f"s_cbranch_scc0 L_{name}_poll")
    P(f"s_xor_b32 s{S_T0}, s{S_T0}, 0x8000")
    P(f"s_xor_b32 s{S_T1}, s{S_T1}, 0x8000")
    for t in range(8):
        P(f"buffer_load_dwordx4 {v(V_ACC+32+4*t,4)}, v{V_HV}, s[{S_PART}:{S_PART+3}], s{S_T0 if t < 4 else S_T1} offen offset:{(t%4)*1024} sc1")
    for t in range(8):
        for e in range(0, 4, 2):
            P(f"v_pk_add_f32 {v(V_ACC+4*t+e,2)}, {v(V_ACC+4*t+e,2)}, {v(V_ACC+32+4*t+e,2)}")
        P(f"ds_write_b128 v{T+3}, {v(V_ACC+4*t,4)} offset:{t*64}")
    for u in range(4):
        for e in range(2):
            P(f"ds_read_b128 {v(V_A+8*u+4*e,4)}, v{T+4} offset:{u*4*528+e*16}")
    for u in range(4):
        for j in range(4):
            b = V_B + 4 * u + j
            P(f"v_lshlrev_b32 v{T}, 16, v{b}")
            P(f"v_and_b32 v{T+1}, 0xffff0000, v{b}")
            P(f"v_pk_add_f32 {v(T,2)}, {v(T,2)}, {v(V_A+8*u+2*j,2)}")
            P(f"v_cvt_pk_bf16_f32 v{b}, v{T}, v{T+1}")
        P(f"buffer_store_dwordx4 {v(V_B+4*u,4)}, v{T+2}, s[{S_OUT}:{S_OUT+3}], s{S_HO} offen")
        if u < 3: P(f"s_add_u32 s{S_HO}, s{S_HO}, 8192")
```

```python
from common import *

def sincos_pack(P, dst, arg0, step, idx, tmp, neg_sin=False, scale=None):
    for n, k in enumerate(idx):
        t = tmp + 3 * (n % 2)
        if k == 0: P(f"v_mov_b32 v{t}, v{arg0}")
        else: P(f"v_fmamk_f32 v{t}, v{step}, {hexf(float(k))}, v{arg0}")
        P(f"v_cos_f32 v{t+1}, v{t}")
        P(f"v_sin_f32 v{t+2}, v{t}")
        d = dst(n) if callable(dst) else dst + n
        neg = "-" if neg_sin else ""
        if d < 256:
            P(f"v_cvt_pk_bf16_f32 v{d}, v{t+1}, {neg}v{t+2}")
        else:
            P(f"v_cvt_pk_bf16_f32 v{t}, v{t+1}, {neg}v{t+2}")
            P(f"v_accvgpr_write_b32 a{d-256}, v{t}")

DROW = [(i % 4) + 8 * (i // 4) for i in range(16)]

def twiddle(P, re, im, c, sn, tmp, conj, corr=None):
    for j in range(0, 16, 2):
        R, I, C, S = v(re + j, 2), v(im + j, 2), v(c + j, 2), v(sn + j, 2)
        T = v(tmp + 2 * ((j // 2) % 2), 2)
        P(f"v_pk_mul_f32 {T}, {R}, {S}")
        if corr is None: P(f"v_pk_mul_f32 {R}, {R}, {C}")
        else: P(f"v_pk_fma_f32 {R}, {R}, {C}, {v(corr,2)} op_sel_hi:[1,1,0]")
        if not conj:
            P(f"v_pk_fma_f32 {R}, {I}, {S}, {R}")
            P(f"v_pk_fma_f32 {I}, {I}, {C}, {T} neg_lo:[0,0,1] neg_hi:[0,0,1]")
        else:
            P(f"v_pk_fma_f32 {R}, {I}, {S}, {R} neg_lo:[1,0,0] neg_hi:[1,0,0]")
            P(f"v_pk_fma_f32 {I}, {I}, {C}, {T}")

def wave_reduce(P, regs):
    for mod in ("row_shr:1", "row_shr:2", "row_shr:4", "row_shr:8", "row_bcast:15 row_mask:0xa", "row_bcast:31 row_mask:0xc"):
        for x in regs:
            rm = "" if "row_mask" in mod else " row_mask:0xf"
            bc = " bound_ctrl:0" if "shr" in mod else ""
            P(f"v_add_f32_dpp v{x}, v{x}, v{x} {mod}{rm} bank_mask:0xf{bc}")

def stage_addr(P, A0, A1, sb, swave, base, t):
    P(f"v_add_u32 v{t}, -1, v0")
    P(f"v_and_b32 v{t}, 31, v{t}")
    P(f"s_and_b32 s{sb+1}, s{sb}, 15")
    P(f"v_xor_b32 v{t}, s{sb+1}, v{t}")
    P(f"v_lshlrev_b32 v{t}, 4, v{t}")
    P(f"v_lshrrev_b32 v{t+1}, 5, v0")
    P(f"v_lshl_add_u32 v{t}, v{t+1}, 11, v{t}")
    P(f"s_lshl_b32 s{sb+1}, s{swave}, 2")
    P(f"s_add_u32 s{sb+1}, s{sb+1}, {base}")
    P(f"v_add_u32 v{t}, s{sb+1}, v{t}")
    P(f"v_and_b32 v{t+1}, 31, v0")
    P(f"v_cmp_eq_u32 vcc, 0, v{t+1}")
    P(f"v_add_u32 v{t+1}, -1024, v{t}")
    P(f"v_cndmask_b32 v{A0}, v{t}, v{t+1}, vcc")
    P(f"v_cmp_eq_u32 vcc, 0, v0")
    P(f"v_add_u32 v{t+1}, 16384, v{A0}")
    P(f"v_cndmask_b32 v{A1}, v{A0}, v{t+1}, vcc")

def k2off(j): return ((j % 2) + 4 * (j // 2)) * 1024

def rows_fwd_issue(P, SX, swave, st, lrow):
    P(f"s_lshr_b32 s{st}, s2, 3")
    P(f"s_and_b32 s{st+1}, s2, 7")
    P(f"s_lshl_b32 s{st+1}, s{st+1}, 2")
    P(f"s_add_u32 s{st+1}, s{st+1}, s{swave}")
    P(f"s_lshl_b32 s{st+1}, s{st+1}, 5")
    P(f"s_add_u32 s{st+2}, s{st+1}, s{st}")
    P(f"s_lshl_b32 s{st+3}, s{swave}, 12")
    P(f"s_add_u32 m0, s{st+3}, {lrow}")
    P(f"s_lshl_b32 s{st+1}, s{st+2}, 11")
    P(f"v_lshlrev_b32 v1, 4, v0")
    h = []
    h.append(P(f"buffer_load_dwordx4 v1, s[{SX}:{SX+3}], s{st+1} offen lds"))
    h.append(P(f"buffer_load_dwordx4 v1, s[{SX}:{SX+3}], s{st+1} offen offset:1024 lds"))
    P(f"s_add_u32 s{st+1}, s{st+1}, {1024*2048-2048}")
    h.append(P(f"buffer_load_dwordx4 v1, s[{SX}:{SX+3}], s{st+1} offen offset:2048 lds"))
    h.append(P(f"buffer_load_dwordx4 v1, s[{SX}:{SX+3}], s{st+1} offen offset:3072 lds"))
    return h

def rows_fwd(P, h, SXB, SST, swave, st, lrow, lstage, pol=" sc1"):
    B1, TW, A2, X, D, PK, T = 64, 80, 112, 128, 144, 208, 240
    A0, A1, RA = 236, 237, 238
    A0, A1, RA = 60, 61, 62
    sg = st + 4
    P(f"v_and_b32 v{T+8}, 31, v0")
    P(f"v_cvt_f32_u32 v{T+8}, v{T+8}")
    P(f"v_lshrrev_b32 v{T+9}, 5, v0")
    P(f"v_cvt_f32_u32 v{T+9}, v{T+9}")
    P(f"v_mul_f32 v{T+10}, {hexf(1/32)}, v{T+8}")
    P(f"v_mul_f32 v{T+11}, v{T+10}, v{T+9}")
    P(f"v_mul_f32 v{T+11}, {hexf(8.0)}, v{T+11}")
    for q in range(2):
        for jj in range(4):
            for e in range(2):
                k = 16 * q + 2 * jj + e
                if k == 0: P(f"v_mov_b32 v{T+e}, v{T+11}")
                else: P(f"v_fmamk_f32 v{T+e}, v{T+10}, {hexf(float(k))}, v{T+11}")
            P(f"v_cos_f32 v{T+2}, v{T}"); P(f"v_cos_f32 v{T+3}, v{T+1}")
            P(f"v_sin_f32 v{T+4}, v{T}"); P(f"v_sin_f32 v{T+5}, v{T+1}")
            P(f"v_cvt_pk_bf16_f32 v{B1+4*q+jj}, v{T+2}, v{T+3}")
            P(f"v_cvt_pk_bf16_f32 v{B1+8+4*q+jj}, -v{T+4}, -v{T+5}")
    P(f"v_mul_f32 v{T+10}, {hexf(1/1024)}, v{T+8}")
    P(f"v_mul_f32 v{T+11}, v{T+10}, v{T+9}")
    P(f"v_mul_f32 v{T+11}, 4.0, v{T+11}")
    for i in range(16):
        t = T + (i % 2)
        if DROW[i] == 0: P(f"v_mov_b32 v{t}, v{T+11}")
        else: P(f"v_fmamk_f32 v{t}, v{T+10}, {hexf(float(DROW[i]))}, v{T+11}")
        P(f"v_cos_f32 v{TW+i}, v{t}"); P(f"v_sin_f32 v{TW+16+i}, v{t}")
    P(f"v_bfe_u32 v{T+10}, v0, 1, 4")
    P(f"v_cvt_f32_u32 v{T+10}, v{T+10}")
    P(f"v_mul_f32 v{T+10}, {hexf(1/32)}, v{T+10}")
    P(f"v_and_b32 v{T+12}, 1, v0")
    P(f"v_cvt_f32_u32 v{T+12}, v{T+12}")
    P(f"v_mul_f32 v{T+11}, v{T+10}, v{T+9}")
    P(f"v_mul_f32 v{T+11}, 4.0, v{T+11}")
    P(f"v_fmac_f32 v{T+11}, {hexf(0.25)}, v{T+12}")
    sincos_pack(P, A2, T + 11, T + 10, DROW, T)
    stage_addr(P, A0, A1, st, swave, lstage, T)
    P(f"v_fma_f32 v{T+12}, v{T+12}, -2.0, 1.0")
    P(f"v_bfe_u32 v{T}, v0, 2, 2")
    P(f"v_lshrrev_b32 v{T+1}, 5, v0")
    P(f"v_lshl_add_u32 v{T}, v{T+1}, 3, v{T}")
    P(f"v_lshlrev_b32 v{T}, 6, v{T}")
    P(f"v_bfe_u32 v{T+1}, v0, 4, 1")
    P(f"v_lshl_add_u32 v{T}, v{T+1}, 5, v{T}")
    P(f"v_and_b32 v{T+1}, 3, v0")
    P(f"v_lshl_add_u32 v{T}, v{T+1}, 3, v{T}")
    P(f"s_add_u32 s{st+3}, s{st+3}, {lrow}")
    P(f"v_add_u32 v{RA}, s{st+3}, v{T}")
    P(f"v_mov_b32 v{T+13}, 0x3f803f80")
    P.wait_for(h)
    for rw in range(2):
        for q in range(2):
            for hh in range(2):
                P(f"ds_read_b64_tr_b16 {v(X+8*rw+4*q+2*hh,2)}, v{RA} offset:{rw*2048+q*1024+hh*256}")
    for rw in range(2):
        for j in range(8):
            x = X + 8 * rw + j
            c0 = "0" if j == 0 else f"v{T+3*rw}"
            c1 = "0" if j == 0 else f"v{T+3*rw+1}"
            P(f"v_dot2_f32_bf16 v{T+3*rw}, v{x}, v{T+13}, {c0}")
            P(f"v_dot2_f32_bf16 v{T+3*rw+1}, v{x}, v{x}, {c1}")
    for rw in range(2):
        for part in range(2):
            d = D + 32 * rw + 16 * part
            for q in range(2):
                P(f"v_mfma_f32_32x32x16_bf16 {v(d,16)}, {v(X+8*rw+4*q,4)}, {v(B1+8*part+4*q,4)}, {'0' if q==0 else v(d,16)}")
    for rw in range(2):
        P(f"v_mul_f32 v{T+3*rw+2}, v{T+3*rw}, v{T+12}")
    wave_reduce(P, [T + i for i in range(6)])
    for i in range(6):
        P(f"v_readlane_b32 s{sg+i}, v{T+i}, 63")
    P(f"v_cmp_gt_f32 vcc, 0, v{T+12}")
    P(f"v_mov_b32 v{T}, s{sg}"); P(f"v_mov_b32 v{T+1}, s{sg+3}")
    P(f"v_mov_b32 v{T+2}, s{sg+1}"); P(f"v_mov_b32 v{T+3}, s{sg+4}")
    P(f"v_cndmask_b32 v{T}, v{T}, v{T+1}, vcc")
    P(f"v_cndmask_b32 v{T+2}, v{T+2}, v{T+3}, vcc")
    P(f"v_mul_f32 v{T}, {hexf(-1/1024)}, v{T}")
    P(f"v_mul_f32 v{T+2}, {hexf(1/1024)}, v{T+2}")
    P(f"v_fma_f32 v{T+2}, -v{T}, v{T}, v{T+2}")
    P(f"v_max_f32 v{T+2}, 0, v{T+2}")
    P(f"v_add_f32 v{T+2}, {hexf(1e-5)}, v{T+2}")
    P(f"v_rsq_f32 v{T+3}, v{T+2}")
    P(f"v_cmp_eq_f32 vcc, 0, v{T+8}")
    P(f"v_mov_b32 v{T+4}, {hexf(-1/32)}")
    P(f"v_cndmask_b32 v{T+4}, 0, v{T+4}, vcc")
    P(f"v_mul_f32 v{T+6}, s{sg+3}, v{T+4}")
    P(f"v_mul_f32 v{T+4}, s{sg}, v{T+4}")
    P(f"v_readlane_b32 s{sg+6}, v{T+3}, 0")
    P(f"v_readlane_b32 s{sg+7}, v{T+3}, 1")
    S = B1
    P(f"v_mul_f32 v{S+6}, v{T+2}, v{T+3}")
    P(f"v_cvt_pk_bf16_f32 v{S}, v{S+6}, v{S+6}")
    P(f"v_cvt_pk_bf16_f32 v{S+1}, v{T}, v{T}")
    P(f"v_and_b32 v{S+2}, 0xffff0000, v{S}")
    P(f"v_and_b32 v{S+3}, 0xffff0000, v{S+1}")
    P(f"v_sub_f32 v{S+4}, v{S+6}, v{S+2}")
    P(f"v_sub_f32 v{S+3}, v{T}, v{S+3}")
    P(f"v_cvt_pk_bf16_f32 v{S}, v{S+2}, v{S+4}")
    P(f"v_cvt_pk_bf16_f32 v{S+2}, v{S+3}, v{S+3}")
    P(f"v_mov_b32 v{S+3}, 0")
    P(f"v_mul_f32 v{S+5}, {hexf(GELU_C0)}, v{T+3}")
    P(f"v_mul_f32 v{S+4}, v{T+3}, v{T+3}")
    P(f"v_mul_f32 v{S+4}, v{S+4}, v{S+5}")
    P(f"v_mul_f32 v{S+4}, {hexf(0.044715)}, v{S+4}")
    P(f"v_mov_b32 v{S+7}, 0")
    P(f"v_lshlrev_b32 v{S+8}, 15, v0")
    P(f"s_lshl_b32 s{st+1}, s{st+2}, 5")
    P(f"s_mov_b64 exec, 3")
    P(f"buffer_store_dwordx4 {v(S,4)}, v{S+8}, s[{SST}:{SST+3}], s{st+1} offen{pol}")
    P(f"buffer_store_dwordx4 {v(S+4,4)}, v{S+8}, s[{SST}:{SST+3}], s{st+1} offen offset:16{pol}")
    P(f"s_mov_b64 exec, -1")
    for rw in range(2):
        d = D + 32 * rw
        twiddle(P, d, d + 16, TW, TW + 16, T + 8, False, corr=T + 4 + 2 * rw)
        for i in range(16):
            P(f"v_cvt_pk_bf16_f32 v{PK+16*rw+i}, v{d+i}, v{d+16+i}")
    for rw in range(2):
        d = D + 16 * rw
        for q in range(4):
            P(f"v_mfma_f32_32x32x16_bf16 {v(d,16)}, {v(A2+4*q,4)}, {v(PK+16*rw+4*q,4)}, {'0' if q==0 else v(d,16)}")
    P(f"v_mov_b32 v{T}, s{sg+6}"); P(f"v_mov_b32 v{T+2}, s{sg+7}")
    for rw in range(2):
        P(f"v_writelane_b32 v{D+16*rw}, s{sg+3*rw+2}, 0")
        P(f"v_writelane_b32 v{D+16*rw+1}, 0, 0")
    for j in range(8):
        X0, X1, Q = v(D + 2 * j, 2), v(D + 16 + 2 * j, 2), v(D + 32 + 2 * j, 2)
        P(f"v_pk_mul_f32 {X1}, {X1}, {v(T+2,2)} op_sel_hi:[1,0]")
        P(f"v_pk_fma_f32 {Q}, {X0}, {v(T,2)}, {X1} op_sel_hi:[1,0,1] neg_lo:[0,0,1] neg_hi:[0,0,1]")
        P(f"v_pk_fma_f32 {X0}, {X0}, {v(T,2)}, {X1} op_sel_hi:[1,0,1]")
        P(f"v_cvt_pk_bf16_f32 v{PK+8+j}, v{D+32+2*j}, v{D+33+2*j}")
        P(f"v_cvt_pk_bf16_f32 v{PK+j}, v{D+2*j}, v{D+2*j+1}")
        ad = A1 if j == 0 else A0
        P(f"ds_write_b32 v{ad}, v{PK+8+j} offset:{k2off(j)+512}")
        P(f"ds_write_b32 v{ad}, v{PK+j} offset:{k2off(j)}")
    P(f"v_lshlrev_b32 v{T}, 4, v0")
    P(f"s_lshl_b32 s{st+1}, s{swave}, 12")
    P(f"s_add_u32 s{st+1}, s{st+1}, {lstage}")
    P(f"v_add_u32 v{T}, s{st+1}, v{T}")
    P(f"v_lshrrev_b32 v{T+1}, 5, v0")
    P(f"v_and_b32 v{T+2}, 31, v0")
    P(f"v_lshlrev_b32 v{T+2}, 4, v{T+2}")
    P(f"v_lshl_add_u32 v{T+1}, v{T+1}, 17, v{T+2}")
    P(f"s_lshl_b32 s{st+1}, s{swave}, 20")
    P(f"s_lshl_b32 s{st+3}, s2, 9")
    P(f"s_add_u32 s{st+1}, s{st+1}, s{st+3}")
    P.wait(lg=0); P.barrier()
    for u in range(4):
        P(f"ds_read_b128 {v(D+4*u,4)}, v{T} offset:{u*1024}")
    for u in range(4):
        P(f"buffer_store_dwordx4 {v(D+4*u,4)}, v{T+1}, s[{SXB}:{SXB+3}], s{st+1} offen{pol}")
        if u < 3: P(f"s_add_u32 s{st+1}, s{st+1}, 0x40000")

def rows_inv_issue(P, SX, SYB, SB2, swave, st, lrow, lstage, lb2):
    h = rows_fwd_issue(P, SX, swave, st, lrow)
    P(f"v_lshrrev_b32 v2, 5, v0")
    P(f"v_and_b32 v3, 31, v0")
    P(f"v_lshlrev_b32 v3, 4, v3")
    P(f"v_lshl_add_u32 v2, v2, 17, v3")
    P(f"s_add_u32 m0, s{st+3}, {lstage}")
    P(f"s_lshl_b32 s{st+1}, s{swave}, 20")
    P(f"s_lshl_b32 s{st+4}, s2, 9")
    P(f"s_add_u32 s{st+1}, s{st+1}, s{st+4}")
    hy = []
    for u in range(4):
        hy.append(P(f"buffer_load_dwordx4 v2, s[{SYB}:{SYB+3}], s{st+1} offen offset:{u*1024} lds"))
        if u < 3: P(f"s_add_u32 s{st+1}, s{st+1}, {0x40000-1024}")
    P(f"s_and_b32 s{st+1}, s{swave}, 1")
    P(f"s_lshl_b32 s{st+1}, s{st+1}, 10")
    P(f"s_add_u32 m0, s{st+1}, {lb2}")
    P(f"s_nop 0")
    hy.append(P(f"buffer_load_dwordx4 v1, s[{SB2}:{SB2+3}], s{st+1} offen lds"))
    return h + hy

INV_SCALE = 2.0 / (2048.0 * 1024.0)

def rows_inv(P, h, SBASE, swave, st, lrow, lstage, lb2, pol=" sc1", R=64):
    BA, TW, BB, Y, D, PK, T = R, R + 16, R + 48, R + 64, R + 80, R + 144, R + 176
    A0, A1, RA = R - 4, R - 3, R - 2
    sg = st + 4
    P(f"v_bfe_u32 v{T}, v0, 2, 1")
    P(f"v_and_b32 v{T+1}, 3, v0")
    P(f"v_lshl_add_u32 v{T}, v{T}, 4, v{T+1}")
    P(f"v_bfe_u32 v{T+1}, v0, 3, 2")
    P(f"v_lshl_add_u32 v{T}, v{T+1}, 2, v{T}")
    P(f"v_cvt_f32_u32 v{T+8}, v{T}")
    P(f"v_lshrrev_b32 v{T+9}, 5, v0")
    P(f"v_cvt_f32_u32 v{T+9}, v{T+9}")
    P(f"v_mul_f32 v{T+10}, {hexf(1/32)}, v{T+8}")
    P(f"v_mul_f32 v{T+11}, v{T+10}, v{T+9}")
    P(f"v_add_f32 v{T+11}, v{T+11}, v{T+11}")
    k2 = [(j % 2) + 4 * (j // 2) for j in range(8)]
    sincos_pack(P, BA, T + 11, T + 10, k2, T, neg_sin=True)
    P(f"v_add_f32 v{T+11}, {hexf(-0.25)}, v{T+11}")
    sincos_pack(P, BA + 8, T + 11, T + 10, k2, T, neg_sin=True)
    P(f"v_mul_f32 v{T+10}, {hexf(1/1024)}, v{T+8}")
    P(f"v_mul_f32 v{T+11}, v{T+10}, v{T+9}")
    P(f"v_mul_f32 v{T+11}, 4.0, v{T+11}")
    for i in range(16):
        t = T + (i % 2)
        if DROW[i] == 0: P(f"v_mov_b32 v{t}, v{T+11}")
        else: P(f"v_fmamk_f32 v{t}, v{T+10}, {hexf(float(DROW[i]))}, v{T+11}")
        P(f"v_cos_f32 v{TW+i}, v{t}"); P(f"v_sin_f32 v{TW+16+i}, v{t}")
    P(f"v_mov_b32 v{T}, {hexf(INV_SCALE)}")
    for i in range(0, 32, 2):
        P(f"v_pk_mul_f32 {v(TW+i,2)}, {v(TW+i,2)}, {v(T,2)} op_sel_hi:[1,0]")
    P(f"v_and_b32 v{T+10}, 31, v0")
    P(f"v_cvt_f32_u32 v{T+10}, v{T+10}")
    P(f"v_mul_f32 v{T+10}, {hexf(1/32)}, v{T+10}")
    P(f"v_mul_f32 v{T+11}, v{T+10}, v{T+9}")
    P(f"v_mul_f32 v{T+11}, 4.0, v{T+11}")
    sincos_pack(P, BB, T + 11, T + 10, DROW, T, neg_sin=True)
    stage_addr(P, A0, A1, st, swave, lstage, T)
    P(f"v_and_b32 v{T}, 1, v0")
    P(f"v_cvt_f32_u32 v{T}, v{T}")
    P(f"v_fma_f32 v{T}, v{T}, -2.0, 1.0")
    P(f"v_mul_f32 v{T}, {hexf(INV_SCALE/2)}, v{T}")
    P(f"v_cmp_gt_u32 vcc, 32, v0")
    P(f"v_cndmask_b32 v{T+12}, 0, v{T}, vcc")
    P(f"v_and_b32 v{T}, 31, v0")
    P(f"v_lshlrev_b32 v{T}, 6, v{T}")
    P(f"v_and_b32 v{T+1}, 32, v0")
    P(f"v_add_u32 v{T+13}, v{T}, v{T+1}")
    P(f"s_add_u32 s{st+3}, s{st+3}, {lrow}")
    P(f"v_add_u32 v{RA}, s{st+3}, v{T+13}")
    P.wait_for(h); P.barrier()
    for par in range(2):
        for j in range(8):
            P(f"ds_read_b32 v{Y+8*par+j}, v{A1 if j == 0 else A0} offset:{k2off(j)+512*par}")
    for par in range(2):
        P(f"v_readlane_b32 s{sg+par}, v{Y+8*par}, 0")
        P(f"v_writelane_b32 v{Y+8*par}, 0, 0")
        P(f"s_lshl_b32 s{sg+par}, s{sg+par}, 16")
    for par in range(2):
        for part in range(2):
            d = D + 32 * par + 16 * part
            for q in range(2):
                P(f"v_mfma_f32_32x32x16_bf16 {v(d,16)}, {v(Y+8*par+4*q,4)}, {v(BA+8*part+4*q,4)}, {'0' if q==0 else v(d,16)}")
    for par in range(2):
        d = D + 32 * par
        twiddle(P, d, d + 16, TW, TW + 16, T + 8, True)
        P(f"v_fmac_f32 v{d}, s{sg+par}, v{T+12}")
        for i in range(16):
            P(f"v_cvt_pk_bf16_f32 v{PK+16*par+i}, v{d+i}, v{d+16+i}")
    for rw in range(2):
        for q in range(2):
            P(f"ds_read_b128 {v(Y+8*rw+4*q,4)}, v{RA} offset:{rw*2048+q*16}")
    for q in range(2):
        P(f"ds_read_b128 {v(BA+4*q,4)}, v{T+13} offset:{lb2+q*16}")
    for par in range(2):
        d = D + 16 * par
        for q in range(4):
            P(f"v_mfma_f32_32x32x16_bf16 {v(d,16)}, {v(PK+16*par+4*q,4)}, {v(BB+4*q,4)}, {'0' if q==0 else v(d,16)}")
    for j in range(8):
        P(f"v_lshlrev_b32 v{TW+2*j}, 16, v{BA+j}"); P(f"v_and_b32 v{TW+2*j+1}, 0xffff0000, v{BA+j}")
    for rw in range(2):
        for j in range(8):
            P(f"v_lshlrev_b32 v{D+32+16*rw+2*j}, 16, v{Y+8*rw+j}"); P(f"v_and_b32 v{D+33+16*rw+2*j}, 0xffff0000, v{Y+8*rw+j}")
    for j in range(8):
        E, O, X0, X1, B = v(D+2*j,2), v(D+16+2*j,2), v(D+32+2*j,2), v(D+48+2*j,2), v(TW+2*j,2)
        P(f"v_pk_add_f32 {E}, {E}, {B}")
        P(f"v_pk_add_f32 {X0}, {X0}, {O}")
        P(f"v_pk_add_f32 {X1}, {X1}, {O} neg_lo:[0,1] neg_hi:[0,1]")
        P(f"v_pk_add_f32 {X0}, {X0}, {E}")
        P(f"v_pk_add_f32 {X1}, {X1}, {E}")
        P(f"v_cvt_pk_bf16_f32 v{PK+j}, v{D+32+2*j}, v{D+33+2*j}")
        P(f"v_cvt_pk_bf16_f32 v{PK+8+j}, v{D+48+2*j}, v{D+49+2*j}")
    for rw in range(2):
        for q in range(2):
            P(f"ds_write_b128 v{RA}, {v(PK+8*rw+4*q,4)} offset:{rw*2048+q*16}")
    P(f"v_lshlrev_b32 v{T}, 4, v0")
    P(f"v_add_u32 v{T+1}, s{st+3}, v{T}")
    for u in range(4):
        P(f"ds_read_b128 {v(D+4*u,4)}, v{T+1} offset:{u*1024}")
    P(f"s_lshl_b32 s{st+1}, s{st+2}, 11")
    hs = []
    for u in range(4):
        if u == 2: P(f"s_add_u32 s{st+1}, s{st+1}, {1024*2048}")
        hs.append(P(f"buffer_store_dwordx4 {v(D+4*u,4)}, v{T}, s[{SBASE}:{SBASE+3}], s{st+1} offen offset:{(u%2)*1024}{pol}"))
    return hs
```

```python
import sys
from common import *
import rows, col, gemm1, gemm2
NAME = "parallel_sum__spectral_gfnet__dense_activation_gelu__prompt"
HEAD = open(f"cdna_kernels/{NAME}.s.ref").read().split("; Override launch")[0]

def wave_id(P, sw):
    P("v_lshrrev_b32 v1, 6, v0")
    P(f"v_readfirstlane_b32 s{sw}, v1")
    P("v_and_b32 v0, 63, v0")

def k_rows_fwd(name):
    P = Prog()
    P("s_load_dwordx2 s[4:5], s[0:1], 0")
    P("s_load_dwordx2 s[6:7], s[0:1], 80")
    P("s_cmp_ge_u32 s2, 256")
    P(f"s_cbranch_scc1 L_{name}_end")
    wave_id(P, 40)
    P.wait(lg=0)
    srd(P, 16, 4, 2048*2048)
    h = rows.rows_fwd_issue(P, 16, 40, 56, 0)
    srd(P, 20, 6, 0x400000, WS_XBUF)
    srd(P, 24, 6, 2048*32, WS_STATS)
    rows.rows_fwd(P, h, 20, 24, 40, 56, 0, 16384)
    P.label(f"L_{name}_end")
    P("s_endpgm")
    return P

def k_mid(name):
    P = Prog()
    g = gemm1
    P("s_load_dwordx2 s[4:5], s[0:1], 0")
    P("s_load_dwordx4 s[8:11], s[0:1], 32")
    P("s_load_dwordx2 s[6:7], s[0:1], 80")
    P("s_load_dwordx4 s[12:15], s[0:1], 8")
    P("s_cmp_ge_u32 s2, 256")
    P(f"s_cbranch_scc1 L_{name}_end")
    P("s_cmp_ge_u32 s2, 224")
    P(f"s_cbranch_scc1 L_{name}_fft")
    P.wait(lg=0)
    srd(P, g.S_X, 4, 2048*1024*2)
    srd(P, g.S_W1, 8, 1024*3584*2)
    srd(P, g.S_B1, 10, 3584*2)
    srd(P, g.S_H, 6, 2048*3584*2, WS_H)
    srd(P, g.S_ST, 6, 2048*32, WS_STATS)
    g.gemm1_setup(P, 4)
    d = g.gemm1_prologue(P)
    g.gemm1_main(P, d)
    P("s_endpgm")
    P.label(f"L_{name}_fft")
    P.reset_state()
    P.wait(lg=0, force=True)
    wave_id(P, 40)
    P("s_sub_u32 s41, s2, 224")
    srd(P, 16, 12, 2048*513*2)
    srd(P, 20, 14, 2048*513*2)
    srd(P, 24, 6, 0x400000, WS_XBUF)
    srd(P, 28, 6, 0x400000, WS_YBUF)
    h = col.col_w_issue(P, 16, 20, 40, 41, 44)
    col.col_consts(P, 41, 44)
    col.col_w_read(P, h, 40)
    h = col.col_x_issue(P, 24, 40, 41, 44)
    col.col_main(P, h, 28, 40, 41, 44)
    P.label(f"L_{name}_end")
    P("s_endpgm")
    return P

def k_rows_inv(name):
    P = Prog()
    P("s_load_dwordx2 s[4:5], s[0:1], 0")
    P("s_load_dwordx2 s[6:7], s[0:1], 80")
    P("s_load_dwordx2 s[8:9], s[0:1], 56")
    P("s_cmp_ge_u32 s2, 256")
    P(f"s_cbranch_scc1 L_{name}_end")
    wave_id(P, 40)
    P.wait(lg=0)
    srd(P, 16, 4, 2048*2048)
    srd(P, 20, 6, 0x400000, WS_YBUF)
    srd(P, 24, 8, 2048)
    srd(P, 28, 6, 0x400000, WS_YROW)
    h = rows.rows_inv_issue(P, 16, 20, 24, 40, 56, 0, 16384, 32768)
    rows.rows_inv(P, h, 28, 40, 56, 0, 16384, 32768)
    P.label(f"L_{name}_end")
    P("s_endpgm")
    return P

def k_gemm2(name):
    P = Prog()
    g = gemm2
    P("s_load_dwordx2 s[4:5], s[0:1], 48")
    P("s_load_dwordx4 s[8:11], s[0:1], 64")
    P("s_load_dwordx2 s[6:7], s[0:1], 80")
    P("s_cmp_ge_u32 s2, 256")
    P(f"s_cbranch_scc1 L_{name}_end")
    g.gemm2_setup(P)
    g.gemm2_setup2(P)
    P.wait(lg=0)
    srd(P, g.S_H, 6, 2048*3584*2, WS_H)
    srd(P, g.S_W2, 4, 3584*1024*2)
    srd(P, g.S_BASE, 6, 0x400000, WS_YROW)
    srd(P, g.S_OUT, 8, 0x400000)
    srd(P, g.S_PART, 6, 0x800000, WS_PART)
    srd(P, g.S_DBG, 10, 256)
    d, k = g.gemm2_prologue(P)
    g.gemm2_main(P, d, k)
    g.gemm2_epilogue(P, name)
    P.label(f"L_{name}_end")
    P("s_endpgm")
    return P

ks = [("rowsf_kernel", k_rows_fwd, 32768, 256), ("mid_kernel", k_mid, 131072, 512),
      ("rowsi_kernel", k_rows_inv, 36864, 256), ("gemm2_kernel", k_gemm2, 131072, 256)]
out = [HEAD.rstrip("\n")]
for n, f, lds, vg in ks: out.append(f"; @launch kernel={n} grid=(256,1,1) block=(256,1,1) lds={lds}")
out.append('.amdgcn_target "amdgcn-amd-amdhsa--gfx950"\n.text')
for n, f, lds, vg in ks:
    P = f(n); print(n, P.count(), "instrs", P.nnop, "nops")
    out.append(kernel_header(n) + P.text())
out.append('.section .rodata,"a"')
for n, f, lds, vg in ks: out.append(kernel_desc(n, vg, 256))
dst = sys.argv[1] if len(sys.argv) > 1 else "v1.s"
open(dst, "w").write("\n".join(out) + "\n")
```

```python
import re, struct

def f2u(x):
    return struct.unpack("<I", struct.pack("<f", x))[0]

def hexf(x):
    return "0x%08x" % f2u(x)

def v(i, n=1):
    return f"v{i}" if n == 1 else f"v[{i}:{i+n-1}]"
def a(i, n=1):
    return f"a{i}" if n == 1 else f"a[{i}:{i+n-1}]"
def s(i, n=1):
    return f"s{i}" if n == 1 else f"s[{i}:{i+n-1}]"
def r(i, n=1):
    return v(i, n) if i < 256 else a(i - 256, n)

_reg_re = re.compile(r"^(-|neg\(|abs\(|\|)?\|?([vas])(\d+|\[(\d+):(\d+)\])\|?\)?$")
TRANS = ("v_exp_f32", "v_log_f32", "v_rcp_f32", "v_rsq_f32", "v_sqrt_f32", "v_sin_f32", "v_cos_f32")

def parse_regs(tok):
    tok = tok.strip()
    if tok in ("vcc",): return [("s", "vcc")]
    if tok in ("exec",): return [("s", "exec")]
    if tok == "m0": return [("s", "m0")]
    if tok in ("vcc_lo", "vcc_hi"): return [("s", "vcc")]
    if tok in ("exec_lo", "exec_hi"): return [("s", "exec")]
    m = _reg_re.match(tok)
    if not m: return []
    k = m.group(2)
    if m.group(4) is not None:
        lo, hi = int(m.group(4)), int(m.group(5))
    else:
        lo = hi = int(m.group(3))
    return [(k, i) for i in range(lo, hi + 1)]

class Ins:
    __slots__ = ("text", "op", "kind", "dst", "src", "srcC", "passes", "dpp", "opsel", "wide", "lds_dma", "tag", "laneSel", "nowait", "slot")
    def __init__(self, text):
        self.text = text
        self.slot = -1000
        t = text.split(";")[0].strip()
        parts = t.split(None, 1)
        self.op = op = parts[0]
        rest = parts[1] if len(parts) > 1 else ""
        ops = [x.strip() for x in rest.split(",")] if rest else []
        mods = ""
        if ops:
            lp = ops[-1].split(None, 1)
        ops = []; depth = 0; cur = ""
        for ch in rest:
            if ch == "[": depth += 1
            if ch == "]": depth -= 1
            if ch == "," and depth == 0:
                ops.append(cur.strip()); cur = ""
            else: cur += ch
        if cur.strip(): ops.append(cur.strip())
        if ops:
            lp = ops[-1].split(None, 1)
            ops[-1] = lp[0]
            mods = lp[1] if len(lp) > 1 else ""
        self.dst = []; self.src = []; self.srcC = []; self.passes = 0
        self.dpp = ("_dpp" in op) or ("row_" in mods) or ("quad_perm" in mods)
        self.opsel = ("sdwa" in op) or ("dst_sel" in mods)
        self.wide = False; self.lds_dma = False; self.tag = None; self.laneSel = []; self.nowait = False
        R = parse_regs
        if op.startswith("v_mfma"):
            self.kind = "mfma"
            self.dst = R(ops[0]); self.src = R(ops[1]) + R(ops[2]); self.srcC = R(ops[3])
            self.passes = 8 if "32x32x16" in op else 4
            assert "32x32x16" in op or "16x16x32" in op
        elif op.startswith("v_"):
            self.kind = "valu"
            if op.startswith("v_cmp"):
                self.dst = R(ops[0]); self.src = sum((R(x) for x in ops[1:]), [])
                if op.startswith("v_cmpx"): self.dst += [("s", "exec")]
            elif op.startswith("v_permlane"):
                self.dst = R(ops[0]) + R(ops[1]); self.src = R(ops[0]) + R(ops[1])
            elif op in ("v_readlane_b32",):
                self.dst = R(ops[0]); self.src = R(ops[1]); self.laneSel = R(ops[2])
            elif op in ("v_writelane_b32",):
                self.dst = R(ops[0]); self.src = R(ops[0]) + R(ops[1]); self.laneSel = R(ops[2])
            elif op == "v_nop":
                pass
            else:
                self.dst = R(ops[0]); self.src = sum((R(x) for x in ops[1:]), [])
                if "_co_" in op:
                    self.dst += R(ops[1])
                if op.startswith("v_fmac") or op.startswith("v_dot2c") or self.dpp or op.startswith("v_pk_fmac") or op.startswith("v_mac"):
                    self.src += R(ops[0])
                if op.startswith("v_cndmask") and len(ops) == 3:
                    self.src += [("s", "vcc")]
        elif op.startswith("ds_"):
            self.kind = "lds"
            if op.startswith("ds_read") or op.startswith("ds_bpermute") or op.startswith("ds_swizzle"):
                self.dst = R(ops[0]); self.src = sum((R(x) for x in ops[1:]), [])
                if "d16" in op: self.src += R(ops[0])
            else:
                self.src = sum((R(x) for x in ops), [])
        elif op.startswith("buffer_") or op.startswith("global_"):
            self.kind = "vmem"
            islds = re.search(r"\blds\b", mods) is not None
            if "load" in op and not islds:
                self.dst = R(ops[0]); self.src = sum((R(x) for x in ops[1:]), [])
                if "d16" in op: self.src += R(ops[0])
            elif "atomic" in op and "sc0" in mods:
                self.dst = R(ops[0]); self.src = sum((R(x) for x in ops), [])
            else:
                self.src = sum((R(x) for x in ops), [])
                if islds:
                    self.lds_dma = True; self.src += [("s", "m0")]
                if "store" in op and ("x4" in op or "x3" in op):
                    self.wide = R(ops[0]) if op.startswith("buffer_") else R(ops[1])
        elif op.startswith("s_load") or op.startswith("s_buffer_load") or op in ("s_memtime", "s_memrealtime"):
            self.kind = "smem"
            self.dst = R(ops[0]); self.src = sum((R(x) for x in ops[1:]), [])
        elif op in ("s_waitcnt", "s_nop", "s_barrier", "s_endpgm", "s_setprio", "s_sleep") or op.startswith("s_cbranch") or op == "s_branch":
            self.kind = "ctl"
        elif op.startswith("s_"):
            self.kind = "salu"
            if op.startswith("s_cmp") or op.startswith("s_bitcmp"):
                self.src = sum((R(x) for x in ops), [])
            else:
                self.dst = R(ops[0]); self.src = sum((R(x) for x in ops[1:]), [])
                if "saveexec" in op: self.dst += [("s", "exec")]
        else:
            self.kind = "dir"

    def states(self):
        if self.kind == "dir": return 0
        if self.op == "s_nop":
            return int(self.text.split()[1], 0) + 1
        return 1

class Prog:
    def __init__(self):
        self.out = []
        self.reset_state()
        self.nnop = 0
        self.cur = -1000
        self.tail = []
    def reset_state(self):
        self.vm = []
        self.lg = []
    def raw(self, text):
        self.out.append(Ins(text))
    def label(self, name):
        self.out.append(Ins(name + ":"))
    def comment(self, text):
        i = Ins(".c"); i.text = "; " + text; i.kind = "dir"; self.out.append(i)
    def align(self, p):
        i = Ins(".p2align"); i.text = f".p2align {p}"; i.kind = "dir"; self.out.append(i)
    def _emit_wait(self, vm=None, lg=None):
        parts = []
        if vm is not None:
            vm = min(vm, 63)
            if vm < len(self.vm):
                parts.append(f"vmcnt({vm})"); self.vm = self.vm[len(self.vm) - vm:] if vm else []
        if lg is not None:
            lg = min(lg, 15)
            if lg < len(self.lg):
                parts.append(f"lgkmcnt({lg})"); self.lg = self.lg[len(self.lg) - lg:] if lg else []
        if parts:
            self.out.append(Ins("s_waitcnt " + " ".join(parts)))
    def wait(self, vm=None, lg=None, force=False):
        if force:
            parts = []
            if vm is not None:
                parts.append(f"vmcnt({vm})"); self.vm = self.vm[max(0, len(self.vm) - vm):] if vm else []
            if lg is not None:
                parts.append(f"lgkmcnt({lg})"); self.lg = self.lg[max(0, len(self.lg) - lg):] if lg else []
            self.out.append(Ins("s_waitcnt " + " ".join(parts)))
        else:
            self._emit_wait(vm, lg)
    def wait_for(self, ops):
        if not isinstance(ops, (list, tuple)): ops = [ops]
        vm = lg = None
        for o in ops:
            if o in self.vm:
                n = len(self.vm) - 1 - self.vm.index(o)
                vm = n if vm is None else min(vm, n)
            if o in self.lg:
                n = len(self.lg) - 1 - self.lg.index(o)
                if any(x.kind == "smem" for x in self.lg): n = 0
                lg = n if lg is None else min(lg, n)
        self._emit_wait(vm, lg)
    def barrier(self):
        self.out.append(Ins("s_barrier"))
    def __call__(self, text):
        ins = Ins(text)
        touched = set(ins.src) | set(ins.srcC) | set(ins.dst) | set(ins.laneSel)
        need = []
        for o in self.vm + self.lg:
            if o.dst and touched.intersection(o.dst):
                need.append(o)
        if need: self.wait_for(need)
        n = self._hazard(ins)
        while n > 0:
            k = min(n, 16)
            self.out.append(Ins(f"s_nop {k-1}")); n -= k; self.nnop += 1
        ins.slot = self.cur
        self.out.append(ins)
        if ins.kind == "vmem": self.vm.append(ins)
        elif ins.kind in ("lds", "smem"): self.lg.append(ins)
        return ins

    def peek(self, text):
        ins = Ins(text)
        touched = set(ins.src) | set(ins.srcC) | set(ins.dst) | set(ins.laneSel)
        lg = [o.slot for o in self.lg if o.dst and touched.intersection(o.dst)]
        vm = [o.slot for o in self.vm if o.dst and touched.intersection(o.dst)]
        return self._hazard(ins), max(lg) if lg else None, max(vm) if vm else None

    def _hazard(self, c):
        need = 0
        dist = 0
        csrc = set(c.src); cC = set(c.srcC); cdst = set(c.dst)
        call = csrc | cC
        for p in reversed(self.out):
            if dist >= 14: break
            if p.kind == "dir":
                continue
            req = 0
            pd = set(p.dst)
            if p.kind == "valu":
                isdot = p.op.startswith("v_dot")
                vg = {x for x in pd if x[0] in "va"}
                sg = {x for x in pd if x[0] == "s"}
                if c.kind == "mfma" and vg & call: req = max(req, 3 if isdot else 2)
                if c.kind == "mfma" and ("s", "exec") in sg: req = max(req, 4)
                if c.kind == "valu":
                    if c.dpp and vg & csrc: req = max(req, 2)
                    if c.dpp and ("s", "exec") in sg: req = max(req, 5)
                    if c.op.startswith("v_permlane") and vg & csrc: req = max(req, 2)
                    if c.op in ("v_readlane_b32", "v_readfirstlane_b32") and vg & csrc: req = max(req, 1)
                    if sg & csrc: req = max(req, 2)
                    if sg & set(c.laneSel): req = max(req, 4)
                    if ("s", "exec") in sg and c.op in ("v_readlane_b32", "v_readfirstlane_b32", "v_writelane_b32"): req = max(req, 4)
                    if p.op in TRANS and vg & csrc: req = max(req, 1)
                    if p.opsel and vg & (csrc | cdst): req = max(req, 1)
                if isdot and vg & (call | cdst):
                    same = (c.op == p.op)
                    if same and c.dst == p.dst and not (vg & set(c.src[:2])): pass
                    else: req = max(req, 3)
                if c.kind == "vmem" and sg & csrc: req = max(req, 5)
            elif p.kind == "mfma":
                big = 12 if p.passes == 8 else 8
                if c.kind == "mfma":
                    if pd & csrc: req = max(req, big)
                    if pd & cC:
                        if not (p.dst == c.srcC and p.passes == c.passes): req = max(req, big - 2)
                    elif pd & cdst: req = max(req, big)
                elif c.kind in ("valu", "vmem", "lds"):
                    if pd & (csrc | cdst): req = max(req, big)
                    if c.kind == "valu" and set(p.srcC) & cdst: req = max(req, 7 if p.passes == 8 else 3)
            elif p.kind == "salu":
                if ("s", "m0") in pd and c.lds_dma: req = max(req, 1)
            elif p.kind == "vmem":
                if p.wide and set(p.wide) & cdst: req = max(req, 2)
            if req - dist > need: need = req - dist
            dist += p.states()
        return need

    def pad(self, n=13):
        self.out.append(Ins(f"s_nop {n-1}"))

    def text(self):
        return "\n".join([i.text for i in self.out] + self.tail) + "\n"
    def count(self):
        return sum(1 for i in self.out if i.kind != "dir")

def kernel_header(name):
    return f".globl {name}\n.p2align 8\n.type {name},@function\n{name}:\n"

def kernel_desc(name, vgpr=256, accum=256, sgpr=102):
    return f""".p2align 6
.amdhsa_kernel {name}
  .amdhsa_next_free_vgpr {vgpr}
  .amdhsa_next_free_sgpr {sgpr}
  .amdhsa_accum_offset {accum}
  .amdhsa_group_segment_fixed_size 0
  .amdhsa_kernarg_size 88
  .amdhsa_user_sgpr_count 2
  .amdhsa_user_sgpr_kernarg_segment_ptr 1
  .amdhsa_system_sgpr_workgroup_id_x 1
.end_amdhsa_kernel
"""
```

```python
from common import *
from stream import *
from rows import DROW
from rows2 import angles, twiddle1
import fused as F

T = 24
V_XA, V_FLD, V_G, V_WD = 2, 10, 12, 13
BLK = [[48, 64, 80], [96, 112, 128]]
TW, WQ, FS = 144, 176, 208
AM, AW = 0, 128
S_SF, S_C0, S_C1, S_XG = F.S_XB, F.S_RT, F.S_ROT, F.S_HB

def col_ids(P):
    P(f"s_lshl_b32 s{S_SF}, s{F.S_KQ}, 3")
    P(f"s_bfe_u32 s{S_C0}, s2, 0x20003")
    P(f"s_lshl_b32 s{S_C0}, s{S_C0}, 1")
    P(f"s_add_u32 s{S_SF}, s{S_SF}, s{S_C0}")
    P(f"s_and_b32 s{S_C0}, s2, 1")
    P(f"s_add_u32 s{S_SF}, s{S_SF}, s{S_C0}")

def w_setup(P):
    P(f"v_lshrrev_b32 v{V_WD}, 2, v0")
    P(f"v_mul_u32_u24 v{V_WD}, 2052, v{V_WD}")
    P(f"v_lshrrev_b32 v{V_WD+1}, 4, v0")
    P(f"v_xor_b32 v{V_WD+1}, v{V_WD+1}, v0")
    P(f"v_and_b32 v{V_WD+1}, 3, v{V_WD+1}")
    P(f"v_lshl_add_u32 v{V_WD}, v{V_WD+1}, 4, v{V_WD}")
    for j in range(1, 4): P(f"v_add_u32 v{V_WD+j}, {j*(16*2052-1024)}, v{V_WD}")
    P(f"s_and_b32 s{S_C0}, s{S_SF}, 1")
    P(f"s_mul_i32 s{S_C0}, s{S_C0}, 1026")
    P(f"s_lshr_b32 s{S_C1}, s{S_SF}, 1")
    P(f"s_lshl_b32 s{S_C1}, s{S_C1}, 6")
    P(f"s_add_u32 s{S_C0}, s{S_C0}, s{S_C1}")
    P(f"s_mul_i32 s{S_C1}, s{F.S_WAVE}, {128*2052}")
    P(f"s_add_u32 s{S_C0}, s{S_C0}, s{S_C1}")
    P(f"s_add_u32 s{S_C0}, s{S_C0}, 2")

def w_dma(slot):
    arr, hf = slot // 2, slot % 2
    S = (F.S_W, F.S_B)[arr]
    L = []
    for u in range(2):
        L.append(f"s_add_u32 m0, s{F.S_LW2}, {slot*32768+u*4096}")
        L.append(f"s_add_u32 s{S_C1}, s{S_C0}, {(hf*512+u*64)*2052}")
        for j in range(4): L.append(f"buffer_load_dwordx4 v{V_WD+j}, s[{S}:{S+3}], s{S_C1} offen offset:{j*1024} lds")
    return L

def w_read_setup(P):
    P(f"v_bfe_u32 v{T}, v0, 2, 2")
    P(f"v_xor_b32 v{T}, s{F.S_WAVE}, v{T}")
    P(f"v_lshlrev_b32 v{T}, 4, v{T}")
    P(f"v_and_b32 v{T+1}, 31, v0")
    P(f"v_lshl_add_u32 v{T}, v{T+1}, 6, v{T}")
    P(f"v_lshrrev_b32 v{T+1}, 5, v0")
    P(f"v_lshl_add_u32 v{V_FLD}, v{T+1}, 13, v{T}")
    P(f"v_add_u32 v{V_FLD+1}, 0x10000, v{V_FLD}")
def w_reads(slot):
    arr, hf = slot // 2, slot % 2
    return [f"ds_read_b128 {a(AW+64*arr+4*i,4)}, v{V_FLD+arr} offset:{DROW[i]*2048}" for i in range(8 * hf, 8 * hf + 8)]

def consts(P, parts=False):
    P.parts = []
    def cut():
        P.parts.append(P.L); P.L = []
    P(f"s_and_b32 s{F.S_T0}, s{S_SF}, 1")
    P(f"v_cvt_f32_u32 v{T+13}, s{F.S_T0}")
    P(f"v_and_b32 v{T+8}, 31, v0")
    P(f"v_cvt_f32_u32 v{T+8}, v{T+8}")
    P(f"v_lshrrev_b32 v{T+9}, 5, v0")
    P(f"v_cvt_f32_u32 v{T+9}, v{T+9}")
    P(f"v_mul_f32 v{T+9}, 4.0, v{T+9}")
    cut()
    def two(base, fwd):
        def e(n, c, s, t):
            P(f"v_cvt_pk_bf16_f32 v{t}, v{c}, {'' if fwd else '-'}v{s}"); P(f"v_cvt_pk_bf16_f32 v{c}, {'-' if fwd else ''}v{s}, v{c}")
            P(f"v_accvgpr_write_b32 a{base+n}, v{t}"); P(f"v_accvgpr_write_b32 a{base+16+n}, v{c}")
        angles(P, DROW, T + 11, T + 10, T, e)
        cut()
    P(f"v_fma_f32 v{T+10}, v{T+8}, 2.0, v{T+13}")
    P(f"v_mul_f32 v{T+10}, {hexf(1/64)}, v{T+10}")
    P(f"v_mul_f32 v{T+11}, v{T+10}, v{T+9}")
    two(AM, True)
    P(f"v_mul_f32 v{T+10}, {hexf(1/2048)}, v{T+13}")
    P(f"v_fmac_f32 v{T+10}, {hexf(1/32)}, v{T+8}")
    P(f"v_mul_f32 v{T+11}, v{T+10}, v{T+9}")
    two(AM + 32, True)
    P(f"v_mul_f32 v{T+10}, {hexf(1/32)}, v{T+8}")
    P(f"v_mul_f32 v{T+12}, v{T+10}, v{T+13}")
    P(f"v_mul_f32 v{T+11}, v{T+10}, v{T+9}")
    P(f"v_fmac_f32 v{T+11}, {hexf(1/64)}, v{T+12}")
    two(AM + 64, False)
    P(f"v_mul_f32 v{T+11}, v{T+10}, v{T+9}")
    P(f"v_fmac_f32 v{T+11}, 0.5, v{T+12}")
    two(AM + 96, False)
    P(f"v_mul_f32 v{T+10}, {hexf(1/1024)}, v{T+8}")
    P(f"v_mul_f32 v{T+11}, v{T+10}, v{T+9}")
    for i in range(16):
        t = T + (i % 2)
        if DROW[i] == 0: P(f"v_mov_b32 v{t}, v{T+11}")
        else: P(f"v_fmamk_f32 v{t}, v{T+10}, {hexf(float(DROW[i]))}, v{T+11}")
        P(f"v_cos_f32 v{TW+i}, v{t}"); P(f"v_sin_f32 v{TW+16+i}, v{t}")
    cut()

def x_setup(P):
    P(f"s_and_b32 s{S_C1}, s{F.S_WAVE}, 1")
    P(f"v_lshrrev_b32 v{T}, 3, v0")
    P(f"v_xor_b32 v{T}, s{S_C1}, v{T}")
    P(f"v_and_b32 v{T+1}, 7, v0")
    P(f"v_lshlrev_b32 v{T+1}, 4, v{T+1}")
    P(f"v_lshl_add_u32 v{V_G}, v{T}, 9, v{T+1}")
    for j in range(1, 4): P(f"v_add_u32 v{V_G+j}, {j*3072}, v{V_G}")
    P(f"s_lshl_b32 s{S_XG}, s{S_SF}, 17")
    P(f"s_lshl_b32 s{S_C1}, s{F.S_WAVE}, 15")
    P(f"s_add_u32 s{S_XG}, s{S_XG}, s{S_C1}")
    P(f"s_lshl_b32 s{S_C1}, s{F.S_WAVE}, 1")
    P(f"v_and_b32 v{T}, 7, v0")
    P(f"v_xor_b32 v{T}, s{S_C1}, v{T}")
    P(f"v_lshlrev_b32 v{T}, 4, v{T}")
    P(f"v_lshrrev_b32 v{T+1}, 2, v0")
    P(f"v_xor_b32 v{T+1}, v{T+1}, v0")
    P(f"v_bfe_u32 v{T+1}, v{T+1}, 3, 1")
    P(f"v_lshl_add_u32 v{T}, v{T+1}, 7, v{T}")
    P(f"v_and_b32 v{T+1}, 31, v0")
    P(f"v_lshl_add_u32 v{V_XA}, v{T+1}, 10, v{T}")
    P(f"v_xor_b32 v{V_XA+1}, 16, v{V_XA}")
    P(f"v_add_u32 v{V_XA+2}, 0x10000, v{V_XA}")
    P(f"v_add_u32 v{V_XA+3}, 0x10000, v{V_XA+1}")

def flush_setup(P):
    P(f"v_add_u32 v{V_FLD}, s{F.S_LW2}, v{F.V_L16}")
    P(f"v_add_u32 v{V_FLD+1}, 0x10000, v{V_FLD}")

def x_dma(q):
    L = []
    for u in range(2):
        L.append(f"s_add_u32 m0, s{F.S_LW2}, {q*32768+u*4096}")
        L.append(f"s_add_u32 s{S_C1}, s{S_XG}, {F.W_XBUF+q*128+u*16384}")
        for j in range(4): L.append(f"buffer_load_dwordx4 v{V_G+j}, {F.WS}, s{S_C1} offen offset:{j*1024} sc1 lds")
    return L

def flush_reads(q):
    return [f"ds_read_b128 {v(FS+4*j,4)}, v{V_FLD+q//2} offset:{(q%2)*32768+j*1024}" for j in range(8)]
def flush_stores(q):
    L = []
    for u in range(2):
        L.append(f"s_add_u32 s{S_C1}, s{S_XG}, {F.W_YBUF+q*128+u*16384}")
        for j in range(4): L.append(f"buffer_store_dwordx4 {v(FS+16*u+4*j,4)}, v{V_G+j}, {F.WS}, s{S_C1} offen offset:{j*1024} sc1")
    return L

def mm(re, im, data, mat, data_is_a):
    L = []
    for q in range(4):
        for part, d in enumerate((re, im)):
            x, m = v(data + 4 * q, 4), a(mat + 16 * part + 4 * q, 4)
            A, B = (x, m) if data_is_a else (m, x)
            L.append(f"v_mfma_f32_32x32x16_bf16 {v(d,16)}, {A}, {B}, {'0' if q == 0 else v(d,16)}")
    return L
def pack(re, im): return [f"v_cvt_pk_bf16_f32 v{im+i}, v{re+i}, v{im+i}" for i in range(16)]
def v_tw(re, im, conj):
    R = Rec(); twiddle1(R, re, im, TW, TW + 16, T, conj); return R.L + pack(re, im)
def v_filter(re, im, e):
    L = []
    for j0 in range(0, 16, 2):
        t = T + 2 + 4 * ((j0 // 2) % 2)
        for k in range(2):
            for arr in range(2):
                src = WQ + 16 * arr + j0 + k
                L.append(f"v_lshlrev_b32 v{t+2*arr+k}, 16, v{src}" if e == 0 else f"v_and_b32 v{t+2*arr+k}, 0xffff0000, v{src}")
        for k in range(2): L.append(f"v_mul_f32 v{T+k}, v{re+j0+k}, v{t+2+k}")
        for k in range(2): L.append(f"v_mul_f32 v{re+j0+k}, v{re+j0+k}, v{t+k}")
        for k in range(2): L.append(f"v_fma_f32 v{re+j0+k}, -v{im+j0+k}, v{t+2+k}, v{re+j0+k}")
        for k in range(2): L.append(f"v_fma_f32 v{im+j0+k}, v{im+j0+k}, v{t+k}, v{T+k}")
    return L + pack(re, im)
def w_fill(q): return [f"v_accvgpr_read_b32 v{WQ+16*arr+i}, a{AW+64*arr+4*i+q}" for arr in range(2) for i in range(16)]
def xreads(q, e, dst): return [f"ds_read_b128 {v(dst+4*k,4)}, v{V_XA+e+2*(q//2)} offset:{(q%2)*32768+k*256}" for k in range(4)]
def xwrites(q, e, src): return [f"ds_write_b128 v{V_XA+e+2*(q//2)}, {v(src+4*k,4)} offset:{(q%2)*32768+k*256}" for k in range(4)]

def step(P, M, V, per=7):
    V = list(V)
    def run(n):
        k = 0
        while V and k < n:
            it = V.pop(0)
            if isinstance(it, Fn): it.f(P)
            else: P(it); k += 1
    for m in M:
        P(m); run(per)
    run(10**9)

def spread(V, X, gap):
    out = []; X = list(X); k = 0
    for it in V:
        out.append(it); k += 1
        if k % gap == 0:
            while X:
                t = X.pop(0); out.append(t)
                if not (isinstance(t, str) and t.startswith("s_")): break
    return out + X

def main(P, hx, extra, stamp=lambda P, k: None):
    blk = [list(BLK[0]), list(BLK[1])]
    def bar(hs):
        def f(P):
            P.wait(lg=0)
            if hs: P.wait_for(hs)
            P.barrier()
        return Fn(f)
    for e in range(2):
        for t in xreads(0, e, blk[e][2]): P(t)
    carry = w_fill(0)
    for q in range(4):
        stamp(P, 5 + q)
        (pa, qa, ra), (pb, qb, rb) = blk
        ex = lambda s, V, gap=8: spread(V, extra.get((q, s), []), gap)
        step(P, mm(pa, qa, ra, AM, True), carry)
        V = v_tw(pa, qa, False)
        if q > 0: V = [bar(hx[3] if q == 1 else None)] + flush_reads(q - 1) + spread(V, flush_stores(q - 1), 9)
        step(P, mm(pb, qb, rb, AM, True), ex(1, V))
        step(P, mm(pa, ra, qa, AM + 32, False), ex(2, v_tw(pb, qb, False)))
        step(P, mm(pb, rb, qb, AM + 32, False), ex(3, v_filter(pa, ra, 0)))
        step(P, mm(pa, qa, ra, AM + 64, True), ex(4, v_filter(pb, rb, 1)))
        V = v_tw(pa, qa, True)
        if q == 0: V = [bar(hx[1])] + V
        step(P, mm(pb, qb, rb, AM + 64, True), ex(5, V))
        step(P, mm(pa, ra, qa, AM + 96, False), ex(6, v_tw(pb, qb, True)))
        nx = q < 3
        wf = w_fill(q + 1) if nx else []
        step(P, mm(pb, rb, qb, AM + 96, False), (xreads(q + 1, 0, qa) if nx else []) + pack(pa, ra) + xwrites(q, 0, ra) + wf[:12], per=5)
        carry = (xreads(q + 1, 1, qb) if nx else []) + wf[12:] + pack(pb, rb) + xwrites(q, 1, rb)
        blk = [[pa, ra, qa], [pb, rb, qb]]
    for t in carry: P(t)
    P.wait(lg=0); P.barrier()
```

```python
from asmlib import *
import math

WS_STATS = 0x0000000
WS_XBUF  = 0x0100000
WS_YBUF  = 0x0500000
WS_YROW  = 0x0900000
WS_PART  = 0x0D00000
WS_H     = 0x1800000

K_X, K_WR, K_WI, K_W1, K_B1, K_W2, K_B2, K_OUT, K_DBG, K_WS = 0, 8, 16, 32, 40, 48, 56, 64, 72, 80

GELU_C0 = -2.0 * math.sqrt(2.0 / math.pi) * math.log2(math.e)
GELU_C1 = GELU_C0 * 0.044715

def srd(P, d, base, nbytes, off=0):
    if off:
        P(f"s_add_u32 s{d}, s{base}, 0x{off:x}")
        P(f"s_addc_u32 s{d+1}, s{base+1}, 0")
    else:
        P(f"s_mov_b32 s{d}, s{base}")
        P(f"s_mov_b32 s{d+1}, s{base+1}")
    P(f"s_mov_b32 s{d+2}, 0x{nbytes:x}")
    P(f"s_mov_b32 s{d+3}, 0x20000")

COST = {"trans": 8}
def cost(text):
    op = text.split()[0]
    if op in TRANS: return 8
    return 4

WS_STAMP = 0x3000000
class Stamps:
    def __init__(self, on, kidx): self.on = on; self.kidx = kidx
    def begin(self, P):
        if not self.on: return
        P("s_memrealtime s[98:99]")
        P("s_memtime s[68:69]")
        for k in range(70, 98): P(f"s_mov_b32 s{k}, 0")
    def __call__(self, P, k):
        if self.on: P(f"s_memtime s[{70+2*k}:{71+2*k}]")
    def end(self, P, swave, ws=6):
        if not self.on: return
        P.wait(vm=0, lg=0, force=True)
        P("s_memrealtime s[100:101]")
        P("s_memtime s[96:97]")
        P.wait(lg=0, force=True)
        srd(P, 60, ws, 1 << 20, WS_STAMP + self.kidx * 0x40000)
        P("v_mov_b32 v4, s98"); P("v_mov_b32 v5, s100")
        for k in range(14):
            P(f"s_sub_u32 s{70+2*k}, s{70+2*k}, s68")
            P(f"v_mov_b32 v{6+k}, s{70+2*k}")
        P("s_lshl_b32 s3, s2, 8"); P(f"s_lshl_b32 s4, s{swave}, 6"); P("s_add_u32 s3, s3, s4")
        P("v_mov_b32 v0, 0")
        P("s_mov_b64 exec, 1")
        for u in range(4):
            P(f"buffer_store_dwordx4 v[{4+4*u}:{7+4*u}], v0, s[60:63], s3 offen offset:{16*u}")
```

```python
from common import *
from stream import *

W_EPOCH = 0x0
W_F1 = 0x1000
W_F3 = 0x2000
W_F4 = 0x3000
W_F5 = 0x4000
W_F6 = 0x8000
W_STATS = 0x10000
W_DUMMY = 0x40000
W_XBUF, W_YBUF, W_YROW, W_PART, W_H = 0x100000, 0x500000, 0x900000, 0xD00000, 0x1900000
HT = 57344
TOKINC = 0x9E3779B0
L_AUX = 0x20000
L_ST = L_AUX
L_Y = L_AUX + 0x4000

S_X, S_W, S_WS, S_B, S_OUT = 16, 20, 24, 28, 32
(S_WAVE, S_MT, S_KQ, S_J, S_RT, S_XB, S_XB1, S_WB, S_HB, S_T0, S_T1, S_LW, S_LW2, S_XO, S_WO, S_ROT, S_KB, S_TOK,
 S_H1, S_HA, S_HB0, S_HB1, S_HB2, S_F3, S_NEED, S_E0, S_E1, S_FX) = range(36, 64)
S_RS = 64
P_X, P_WS, P_W1, P_W2, P_OUT = 4, 6, 8, 12, 102

V_DX, V_DW, V_RX, V_RW, V_L16, V_SO, V_FL = 2, 6, 10, 18, 20, 22, 23
V_ONE, V_CS, V_AUG, V_T, V_PK, V_B, V_CT, V_BA, V_FREE, V_ACC = 24, 28, 32, 36, 48, 64, 112, 120, 128, 160
NB = 12
def acc1(t): return V_ACC + 16 * (t % 6)
def acc2(t): return V_ACC + 16 * [2, 3, 4, 5, 0, 2, 3, 4][t]
WS = f"s[{S_WS}:{S_WS+3}]"

def ids(P):
    P("v_lshrrev_b32 v1, 6, v0")
    P(f"v_readfirstlane_b32 s{S_WAVE}, v1")
    P("v_and_b32 v0, 63, v0")
    P(f"s_and_b32 s{S_T0}, s2, 1")
    P(f"s_lshl_b32 s{S_T0}, s{S_T0}, 2")
    P(f"s_bfe_u32 s{S_T1}, s2, 0x20003")
    P(f"s_add_u32 s{S_MT}, s{S_T0}, s{S_T1}")
    P(f"s_bfe_u32 s{S_KQ}, s2, 0x20001")
    P(f"s_lshr_b32 s{S_J}, s2, 5")
    P(f"s_lshl_b32 s{S_LW}, s{S_WAVE}, 12")
    P(f"s_lshl_b32 s{S_LW2}, s{S_WAVE}, 13")
    P(f"v_lshlrev_b32 v{V_L16}, 4, v0")

def w_dma_voff(P, stride, T):
    P(f"v_lshrrev_b32 v{T}, 4, v0")
    P(f"v_lshlrev_b32 v{T+1}, 2, v{T}")
    P(f"v_and_b32 v{T+2}, 15, v0")
    P(f"v_xor_b32 v{T+1}, v{T+1}, v{T+2}")
    P(f"v_mul_u32_u24 v{T}, {stride}, v{T}")
    P(f"v_lshl_add_u32 v{V_DW}, v{T+1}, 4, v{T}")
    for j in range(1, 4):
        P(f"v_add_u32 v{V_DW+j}, {j*(4*stride-1024)}, v{V_DW}")

ROTC = [f"s_lshr_b32 s{S_ROT}, s2, 3", f"s_mul_i32 s{S_ROT}, s{S_ROT}, 5"]
def g1_setup_dma(P):
    T = V_T
    P(f"s_lshl_b32 s{S_RT}, s{S_KQ}, 1")
    P(f"s_add_u32 s{S_RT}, s{S_RT}, 2")
    P("v_lshrrev_b32 v1, 3, v0")
    P(f"v_lshrrev_b32 v{T}, 4, v0")
    P(f"v_and_b32 v{T+1}, 7, v0")
    P(f"v_xor_b32 v{T+1}, v{T+1}, v{T}")
    P(f"v_lshlrev_b32 v1, 11, v1")
    P(f"v_lshl_add_u32 v{V_DX}, v{T+1}, 4, v1")
    P(f"v_xor_b32 v{V_DX+1}, 64, v{V_DX}")
    P(f"v_add_u32 v{V_DX+1}, {8*2048-1024}, v{V_DX+1}")
    P(f"v_add_u32 v{V_DX+2}, {16*2048-2048}, v{V_DX}")
    P(f"v_add_u32 v{V_DX+3}, {16*2048-2048}, v{V_DX+1}")
    w_dma_voff(P, 7168, T)
    P(f"s_lshl_b32 s{S_XB}, s{S_MT}, 19")
    P(f"s_add_u32 s{S_T0}, s{S_WAVE}, s{S_RT}")
    P(f"s_and_b32 s{S_T0}, s{S_T0}, 7")
    P(f"s_lshl_b32 s{S_T0}, s{S_T0}, 16")
    P(f"s_add_u32 s{S_XB1}, s{S_XB}, s{S_T0}")
    for t_ in ROTC: P(t_)
    P(f"s_mul_i32 s{S_T0}, s{S_KQ}, 7")
    P(f"s_add_u32 s{S_T0}, s{S_T0}, s{S_J}")
    P(f"s_lshl_b32 s{S_HB}, s{S_T0}, 8")
    P(f"s_mul_i32 s{S_T0}, s{S_WAVE}, {16*7168}")
    P(f"s_add_u32 s{S_WB}, s{S_T0}, s{S_HB}")

def hbase(P):
    P(f"s_lshl_b32 s{S_T0}, s{S_MT}, 2")
    P(f"s_add_u32 s{S_T0}, s{S_T0}, s{S_KQ}")
    P(f"s_lshl_b32 s{S_F3}, s{S_T0}, 7")
    P(f"s_add_u32 s{S_F3}, s{S_F3}, {W_F3}")
    P(f"s_mul_i32 s{S_HA}, s{S_T0}, {8*HT}")
    P(f"s_add_u32 s{S_HA}, s{S_HA}, {W_H}")

def g1_setup_rest(P):
    T = V_T
    P(f"v_and_b32 v{T+1}, 31, v0")
    P(f"v_bfe_u32 v{T+2}, v0, 1, 3")
    P(f"v_lshrrev_b32 v{T+3}, 5, v0")
    P(f"v_xor_b32 v{T+2}, v{T+2}, v{T+3}")
    P(f"v_lshlrev_b32 v{T+2}, 4, v{T+2}")
    P(f"v_lshl_add_u32 v{V_RX}, v{T+1}, 7, v{T+2}")
    for q in range(1, 4): P(f"v_xor_b32 v{V_RX+q}, {32*q}, v{V_RX}")
    for q in range(4): P(f"v_add_u32 v{V_RX+4+q}, 0x10000, v{V_RX+q}")
    P(f"v_bfe_u32 v{T+4}, v0, 2, 2")
    P(f"v_lshl_add_u32 v{T+5}, v{T+3}, 3, v{T+4}")
    P(f"v_bfe_u32 v{T+6}, v0, 4, 1")
    P(f"v_bfe_u32 v{T+7}, v0, 1, 1")
    P(f"v_lshl_add_u32 v{T+8}, v{T+6}, 1, v{T+7}")
    P(f"v_xor_b32 v{T+4}, s{S_WAVE}, v{T+4}")
    P(f"v_lshl_add_u32 v{T+8}, v{T+4}, 2, v{T+8}")
    P(f"v_lshlrev_b32 v{T+8}, 4, v{T+8}")
    P(f"v_lshl_add_u32 v{T+5}, v{T+5}, 8, v{T+8}")
    P(f"v_and_b32 v{T+7}, 1, v0")
    P(f"v_lshl_add_u32 v{V_RW}, v{T+7}, 3, v{T+5}")
    P(f"v_add_u32 v{V_RW}, 0x4000, v{V_RW}")
    P(f"v_add_u32 v{V_RW+1}, 0x10000, v{V_RW}")
    P(f"v_lshlrev_b32 v{V_SO}, 5, v{T+1}")
    P(f"v_add_u32 v{V_SO}, {L_ST}, v{V_SO}")
    P(f"v_bfe_u32 v{T+7}, v0, 2, 1")
    P(f"v_cmp_eq_u32 vcc, v{T+6}, v{T+7}")
    P(f"v_mov_b32 v{T+8}, 0x3f803f80")
    for i in range(4): P(f"v_cndmask_b32 v{V_ONE+i}, 0, v{T+8}, vcc")
    P(f"v_lshlrev_b32 v{T+1}, 1, v{T+1}")
    P(f"s_lshl_b32 s{S_T1}, s{S_WAVE}, 6")
    P(f"s_add_u32 s{S_T0}, s{S_HB}, s{S_T1}")
    P(f"buffer_load_ushort v{V_AUG}, v{T+1}, s[{S_B}:{S_B+3}], s{S_T0} offen")

def g1_setup_scal(P):
    hbase(P)
    P(f"s_lshl_b32 s{S_T0}, s{S_J}, 2")
    P(f"s_add_u32 s{S_T0}, s{S_T0}, s{S_WAVE}")
    P(f"s_lshl_b32 s{S_T1}, s{S_T0}, 11")
    P(f"s_add_u32 s{S_HB}, s{S_HA}, s{S_T1}")
    P(f"s_lshl_b32 s{S_T0}, s{S_T0}, 2")
    P(f"s_add_u32 s{S_FX}, s{S_F3}, s{S_T0}")

def g2_setup(P):
    T = V_T + 8
    srd(P, S_W, P_W2, 3584 * 1024 * 2)
    srd(P, S_B, P_W2 + 2, 2048)
    w_dma_voff(P, 2048, T)
    P(f"v_bfe_u32 v{T}, v0, 2, 2")
    P(f"v_lshrrev_b32 v{T+1}, 5, v0")
    P(f"v_lshl_add_u32 v{T+1}, v{T+1}, 2, v{T}")
    P(f"v_xor_b32 v{T}, s{S_WAVE}, v{T}")
    P(f"v_bfe_u32 v{T+2}, v0, 4, 1")
    P(f"v_lshl_add_u32 v{T}, v{T}, 1, v{T+2}")
    P(f"v_and_b32 v{T+2}, 1, v0")
    P(f"v_lshl_add_u32 v{T}, v{T}, 1, v{T+2}")
    P(f"v_bfe_u32 v{T+2}, v0, 1, 1")
    P(f"v_lshl_add_u32 v{T}, v{T}, 1, v{T+2}")
    P(f"v_lshlrev_b32 v{T}, 3, v{T}")
    P(f"v_lshl_add_u32 v{V_BA}, v{T+1}, 8, v{T}")
    P(f"v_add_u32 v{V_L16+1}, 0x10000, v{V_L16}")
    P(f"s_mul_i32 s{S_WB}, s{S_KQ}, {896*2048}")
    P(f"s_lshl_b32 s{S_T0}, s{S_WAVE}, 15")
    P(f"s_add_u32 s{S_WB}, s{S_WB}, s{S_T0}")
    P(f"s_lshl_b32 s{S_T0}, s{S_J}, 8")
    P(f"s_add_u32 s{S_WB}, s{S_WB}, s{S_T0}")
    P(f"s_mul_i32 s{S_H1}, s{S_WAVE}, {HT}")
    P(f"s_add_u32 s{S_H1}, s{S_H1}, s{S_HA}")
    P(f"s_lshl_b32 s{S_T0}, s{S_J}, 3")
    P(f"s_mul_i32 s{S_T1}, s{S_WAVE}, 6")
    P(f"s_add_u32 s{S_T1}, s{S_T1}, s{S_T0}")
    for u in range(3):
        d = S_HB0 + u
        P(f"s_add_u32 s{d}, s{S_T1}, {32+2*u}")
        P(f"s_sub_u32 s{S_NEED}, s{d}, 56")
        P(f"s_min_u32 s{d}, s{d}, s{S_NEED}")
        P(f"s_lshl_b32 s{d}, s{d}, 10")
        P(f"s_add_u32 s{d}, s{d}, s{S_HA}")
        if u == 1: P(f"s_sub_u32 s{d}, s{d}, 2048")
    P(f"s_add_u32 s{S_T1}, s{S_J}, s{S_WAVE}")
    P(f"s_sub_u32 s{S_NEED}, s{S_T1}, 7")
    P(f"s_min_u32 s{S_T1}, s{S_T1}, s{S_NEED}")
    P(f"s_lshl_b32 s{S_T1}, s{S_T1}, 13")
    P(f"s_add_u32 s{S_HA}, s{S_HA}, s{S_T1}")
    P(f"s_mul_i32 s{S_XB1}, s{S_WAVE}, 6144")

def g2_setup_b(P):
    P(f"v_add_u32 v{V_RW}, 0x4000, v{V_BA}")
    P(f"v_add_u32 v{V_RW+1}, 0x14000, v{V_BA}")

def dma1(stage):
    slot = (stage % 4) * 0x8000
    L = []
    if stage < 16:
        L += [f"s_add_u32 m0, s{S_LW}, 0x{slot:x}", f"s_add_u32 s{S_KB}, s{S_ROT}, {stage}", f"s_and_b32 s{S_KB}, s{S_KB}, 15",
              f"s_lshl_b32 s{S_XO}, s{S_KB}, 7", f"s_add_u32 s{S_XO}, s{S_XO}, s{S_XB1}"]
        for j in range(4): L.append(f"buffer_load_dwordx4 v{V_DX+j}, s[{S_X}:{S_X+3}], s{S_XO} offen offset:{j*1024} lds")
        L += [f"s_add_u32 m0, s{S_LW}, 0x{slot+0x4000:x}", f"s_mul_i32 s{S_WO}, s{S_KB}, {64*7168}", f"s_add_u32 s{S_WO}, s{S_WO}, s{S_WB}"]
        for j in range(4): L.append(f"buffer_load_dwordx4 v{V_DW+j}, s[{S_W}:{S_W+3}], s{S_WO} offen offset:{j*1024} lds")
    else:
        u = stage - 16
        tile, half = u // 2, u % 2
        if u == 0:
            L += [f"s_lshl_b32 s{S_KB}, s{S_WAVE}, 1", f"s_add_u32 s{S_ROT}, s{S_ROT}, s{S_KB}"]
        if half == 0:
            L += [f"s_add_u32 s{S_WO}, s{S_RT}, {4+tile}", f"s_and_b32 s{S_WO}, s{S_WO}, 7", f"s_lshl_b32 s{S_WO}, s{S_WO}, 16",
                  f"s_add_u32 s{S_WO}, s{S_WO}, s{S_XB}"]
        for sb in range(2):
            L += [f"s_add_u32 m0, s{S_LW2}, 0x{slot+sb*4096:x}", f"s_add_u32 s{S_KB}, s{S_ROT}, {half*8+sb}", f"s_and_b32 s{S_KB}, s{S_KB}, 15",
                  f"s_lshl_b32 s{S_XO}, s{S_KB}, 7", f"s_add_u32 s{S_XO}, s{S_XO}, s{S_WO}"]
            for j in range(4): L.append(f"buffer_load_dwordx4 v{V_DX+j}, s[{S_X}:{S_X+3}], s{S_XO} offen offset:{j*1024} lds")
    return L

def kb2(s):
    return [f"s_lshl_b32 s{S_KB}, s{S_J}, 1", f"s_add_u32 s{S_KB}, s{S_KB}, {s}", f"s_sub_u32 s{S_XO}, s{S_KB}, 14",
            f"s_min_u32 s{S_KB}, s{S_KB}, s{S_XO}"]

def dma2_w(stage, kb=True):
    slot = (stage % 4) * 0x8000; s = stage - 24
    L = (kb2(s) if kb else []) + [f"s_add_u32 m0, s{S_LW}, 0x{slot+0x4000:x}", f"s_lshl_b32 s{S_WO}, s{S_KB}, 17", f"s_add_u32 s{S_WO}, s{S_WO}, s{S_WB}"]
    for j in range(4): L.append(f"buffer_load_dwordx4 v{V_DW+j}, s[{S_W}:{S_W+3}], s{S_WO} offen offset:{j*1024} lds")
    return L

def dma2_h(stage, kb=True, pol=" sc1"):
    slot = (stage % 4) * 0x8000
    L = []
    if stage < 38:
        s = stage - 24
        L += (kb2(s) if kb else []) + [f"s_add_u32 m0, s{S_LW}, 0x{slot:x}", f"s_lshl_b32 s{S_XO}, s{S_KB}, 12", f"s_add_u32 s{S_XO}, s{S_XO}, s{S_H1}"]
        for j in range(4): L.append(f"buffer_load_dwordx4 v{V_L16}, {WS}, s{S_XO} offen offset:{j*1024}{pol} lds")
    else:
        u = stage - 38
        pos, half = 4 + u // 2, u % 2
        if half == 0:
            for sb in range(2):
                L += [f"s_add_u32 m0, s{S_LW2}, 0x{slot+sb*4096:x}", f"s_add_u32 s{S_XO}, s{S_HA}, {pos*HT+sb*4096}"]
                for j in range(4): L.append(f"buffer_load_dwordx4 v{V_L16}, {WS}, s{S_XO} offen offset:{j*1024}{pol} lds")
        else:
            for un in range(3):
                if un != 1: L.append(f"s_add_u32 m0, s{S_XB1}, 0x{slot+(4096 if un == 2 else 0):x}")
                L.append(f"s_add_u32 s{S_XO}, s{S_HB0+un}, {pos*HT}")
                for j in range(2):
                    L.append(f"buffer_load_dwordx4 v{V_L16}, {WS}, s{S_XO} offen offset:{(2048 if un == 1 else 0)+j*1024}{pol} lds")
    return L

def flag_store(sval, soff, imm=0, add=0):
    def f(P):
        if add: P(f"s_add_u32 s{S_NEED}, s{sval}, {add}")
        P(f"v_mov_b32 v{V_FL}, s{S_NEED if add else sval}")
        P("s_mov_b64 exec, 1")
        P(f"buffer_store_dword v{V_FL}, off, {WS}, s{soff} offset:{imm} sc1")
        P("s_mov_b64 exec, -1")
    return Fn(f, 16)

def gelu_ops(t):
    acc = acc1(t)
    pk = V_PK + 8 * (t % 2)
    c3, c1, sd = V_CT + 4 * (t % 2), V_CT + 4 * (t % 2) + 1, V_CT + 4 * (t % 2) + 2
    L = []
    if t + 1 < 8: L.append(f"ds_read_b128 {v(V_CT+4*((t+1)%2),4)}, v{V_SO} offset:{(t+1)*1024+16}")
    for g in range(4):
        A = [acc + 4 * g + i for i in range(4)]
        T = [V_T + 4 * (g % 2) + i for i in range(4)]
        for i in range(4): L.append(f"v_mul_f32 v{T[i]}, v{A[i]}, v{A[i]}")
        for i in range(4): L.append(f"v_fma_f32 v{T[i]}, v{T[i]}, v{c3}, v{c1}")
        for i in range(4): L.append(f"v_mul_f32 v{T[i]}, v{A[i]}, v{T[i]}")
        for i in range(4): L.append(f"v_exp_f32 v{T[i]}, v{T[i]}")
        for i in range(4): L.append(f"v_fma_f32 v{T[i]}, v{T[i]}, v{sd}, v{sd}")
        for i in range(4): L.append(f"v_rcp_f32 v{T[i]}, v{T[i]}")
        for i in range(4): L.append(f"v_mul_f32 v{T[i]}, v{A[i]}, v{T[i]}")
        L.append(f"v_cvt_pk_bf16_f32 v{pk+2*g}, v{T[0]}, v{T[1]}")
        L.append(f"v_cvt_pk_bf16_f32 v{pk+2*g+1}, v{T[2]}, v{T[3]}")
        if g % 2 == 1:
            q = g // 2
            L.append((f"buffer_store_dwordx4 v[{pk+4*q}:{pk+4*q+3}], v{V_L16}, {WS}, s{S_HB} offen offset:{q*1024} sc1", f"h{t//4}"))
    if t < 7: L.append(f"s_add_u32 s{S_HB}, s{S_HB}, {HT}")
    L.append(Mark(f"gelu{t}"))
    return L

def aug_ops():
    T = V_T + 8
    return [f"v_cvt_pk_bf16_f32 v{T}, v{V_CS}, v{V_CS}",
            f"v_lshl_or_b32 v{V_AUG}, v{V_AUG}, 16, v{V_AUG}",
            f"v_and_b32 v{T}, 0xffff0000, v{T}",
            f"v_sub_f32 v{T+1}, v{V_CS}, v{T}",
            f"v_cmp_gt_u32 vcc, 32, v0",
            f"v_cvt_pk_bf16_f32 v{T}, v{T}, v{T+1}",
            f"v_mov_b32 v{V_AUG+3}, 0",
            f"v_cndmask_b32 v{V_AUG}, 0, v{V_AUG}, vcc",
            f"v_cndmask_b32 v{V_AUG+1}, 0, v{T}, vcc",
            f"v_cndmask_b32 v{V_AUG+2}, 0, v{T}, vcc"]

def f3_reload():
    return [f"buffer_load_dword v{V_FL}, v1, {WS}, s{S_F3} offen sc1"]
def f3_addr(P):
    P("v_and_b32 v1, 31, v0"); P("v_min_u32 v1, 27, v1"); P("v_lshlrev_b32 v1, 2, v1")
def f3_check(n):
    def f(P):
        P(f"s_add_u32 s{S_NEED}, s{S_TOK}, {n}")
        poll_check(P, [V_FL], S_NEED, f3_reload())
    return Fn(f, 20)

INV_SCALE = 2.0 / (2048.0 * 1024.0)

def unpack_add(R, S, src, first=False, scale=None):
    for i in range(8):
        t = V_T + 8 + 2 * (i % 2)
        if first:
            R(f"v_lshlrev_b32 v{S+2*i}, 16, v{src+i}"); R(f"v_and_b32 v{S+2*i+1}, 0xffff0000, v{src+i}")
        else:
            R(f"v_lshlrev_b32 v{t}, 16, v{src+i}"); R(f"v_and_b32 v{t+1}, 0xffff0000, v{src+i}")
            for e in range(2):
                if scale is None: R(f"v_add_f32 v{S+2*i+e}, v{S+2*i+e}, v{t+e}")
                else: R(f"v_fmac_f32 v{S+2*i+e}, {hexf(scale)}, v{t+e}")

def build_stream(P, S, opt, stamp=None):
    o = dict(budget=24, LA=9, BOFF=7, WB=3, dma_gap=2, pollF1=False, pollF5=False, rows_inv=None, ack=24,
             tA=352, tB=384, tC=410)
    o.update(opt)
    bf = [0]
    def bfrag():
        b = V_B + 4 * (bf[0] % NB); bf[0] += 1; return b
    for st in range(16):
        for q4 in range(4):
            q = st * 4 + q4
            if q4 == 0: S.first[st] = len(S.slots)
            slot = st % 4; hi = slot // 2; base = (slot % 2) * 0x8000
            for t in range(4):
                b = bfrag(); acc = acc1(t)
                i = S.add(f"v_mfma_f32_32x32x16_bf16 {v(acc,16)}, {a(4*q,4)}, {v(b,4)}, {'0' if q == 0 else v(acc,16)}")
                if t == 0:
                    for h in range(2):
                        S.read(st, i, f"ds_read_b64_tr_b16 {a(4*q+2*h,2)}, v{V_RW+hi} offset:{base+q4*4096+h*1024}")
                S.read(st, i, f"ds_read_b128 {v(b,4)}, v{V_RX+4*hi+q4} offset:{base+t*4096}")
            S.add(f"v_mfma_f32_16x16x32_bf16 {v(V_CS,4)}, {v(V_ONE,4)}, {a(4*q,4)}, {'0' if q == 0 else v(V_CS,4)}")
    p1 = len(S.slots)
    done = {}; start = {}
    def aug(t, init):
        acc = acc1(t); b = bfrag()
        i = S.add(f"v_mfma_f32_32x32x16_bf16 {v(acc,16)}, {v(V_AUG,4)}, {v(b,4)}, {'0' if init else v(acc,16)}")
        S.read(None, i, f"ds_read_b128 {v(b,4)}, v{V_SO} offset:{t*1024}")
        return i
    for t in range(4, 8):
        acc = acc1(t); start[t] = len(S.slots)
        for q in range(64):
            st = 16 + (t - 4) * 2 + q // 32
            slot = st % 4; hi = slot // 2; base = (slot % 2) * 0x8000
            if t > 4 and q == 0: aug(t, True)
            if t == 4 and q in (6, 8, 10, 12, 14):
                tt = (q - 6) // 2
                i = aug(tt, False)
                if tt < 4: done[tt] = i
            if q % 32 == 0: S.first[st] = len(S.slots)
            b = bfrag()
            i = S.add(f"v_mfma_f32_32x32x16_bf16 {v(acc,16)}, {a(4*q,4)}, {v(b,4)}, {'0' if (q == 0 and t == 4) else v(acc,16)}")
            S.read(st, i, f"ds_read_b128 {v(b,4)}, v{V_RX+4*hi+q%4} offset:{base+((q%32)//4)*4096}")
        done[t] = len(S.slots) - 1
    g0 = len(S.slots)
    for s in range(14):
        st = 24 + s
        slot = st % 4; hi = slot // 2; base = (slot % 2) * 0x8000
        for q4 in range(4):
            q = s * 4 + q4
            if q4 == 0: S.first[st] = len(S.slots)
            for t in range(4):
                b = bfrag(); acc = acc2(t)
                i = S.add(f"v_mfma_f32_32x32x16_bf16 {v(acc,16)}, {a(4*q,4)}, {v(b,4)}, {'0' if q == 0 else v(acc,16)}")
                if t == 0:
                    for h in range(2):
                        S.read(st, i, f"ds_read_b64_tr_b16 {a(4*q+2*h,2)}, v{V_RW+hi} offset:{base+q4*4096+h*2048}")
                S.read(st, i, f"ds_read_b128 {v(b,4)}, v{V_L16+hi} offset:{base+t*4096+q4*1024}")
    done2 = {t: len(S.slots) - 4 + t for t in range(4)}; start2 = {}
    for t in range(4, 8):
        acc = acc2(t); start2[t] = len(S.slots)
        for q in range(56):
            st = 38 + (t - 4) * 2 + (q >= 32)
            slot = st % 4; hi = slot // 2; base = (slot % 2) * 0x8000
            if q in (0, 32): S.first[st] = len(S.slots)
            b = bfrag()
            i = S.add(f"v_mfma_f32_32x32x16_bf16 {v(acc,16)}, {a(4*q,4)}, {v(b,4)}, {'0' if q == 0 else v(acc,16)}")
            S.read(st, i, f"ds_read_b128 {v(b,4)}, v{V_L16+hi} offset:{base+(q%32)*1024}")
        done2[t] = len(S.slots) - 1
    n = len(S.slots)
    bar = {st: S.first[st] - o["BOFF"] for st in S.first}
    for st in range(1, 21): S.dma_at_bar[st] = [(dma1(st + 3), st + 3)]
    S.dma_at_bar[21] = [(dma2_w(24), 24)]
    S.dma_at_bar[22] = [(dma2_h(24), 24), (dma2_w(25), 25), (dma2_h(25, kb=False), 25)]
    S.dma_at_bar[23] = [(dma2_w(26), 26)]
    for st in range(24, 35): S.dma_at_bar[st] = [(dma2_w(st + 3), st + 3), (dma2_h(st + 3, kb=False), st + 3)]
    for st in range(35, 43): S.dma_at_bar[st] = [(dma2_h(st + 3), st + 3)]
    L = [f"s_lshl_b32 s{S_T0}, s{S_WAVE}, 1", f"s_add_u32 s{S_T1}, s{S_T0}, s{S_RT}", f"s_and_b32 s{S_T1}, s{S_T1}, 7",
         f"s_lshl_b32 s{S_T1}, s{S_T1}, 10", f"s_lshl_b32 s{S_T0}, s{S_T0}, 10", f"s_add_u32 m0, s{S_T0}, {L_ST}",
         f"s_lshl_b32 s{S_T0}, s{S_MT}, 13", f"s_add_u32 s{S_T1}, s{S_T1}, s{S_T0}", f"s_add_u32 s{S_T1}, s{S_T1}, {W_STATS}"]
    L += [f"buffer_load_dwordx4 v{V_L16}, {WS}, s{S_T1} offen offset:{j*1024} sc1 lds" for j in range(2)]
    S.dma_at_bar[13].insert(0, (L, 15))
    if o["pollF1"]:
        rl = [f"buffer_load_dword v{V_FL}, v1, {WS}, s{S_E1} offen sc1"]
        for t_ in [f"v_lshlrev_b32 v1, 2, v0", f"s_and_b32 s{S_E1}, s{S_MT}, 3", f"s_lshl_b32 s{S_E1}, s{S_E1}, 8", f"s_lshl_b32 s{S_T0}, s{S_WAVE}, 10",
                   f"s_add_u32 s{S_E1}, s{S_E1}, s{S_T0}", f"s_add_u32 s{S_E1}, s{S_E1}, {W_F1}"] + rl:
            S.event(bar[12] - 12, t_)
        S.pre_bar.setdefault(13, []).append(Fn(lambda P: poll_check(P, [V_FL], S_TOK, rl)))
    for i, t in enumerate(aug_ops()): S.event(p1 + 1 + i // 4, t)
    S.event(p1 + 2, f"ds_read_b128 {v(V_CT,4)}, v{V_SO} offset:16")
    G = []
    for t in range(8):
        G.append(At(done[t] + 3)); G += gelu_ops(t)
    qg = S.queue(G)
    F = []
    if o.get("f1"):
        Rr = Rec(); g1_setup_scal(Rr)
        F = [At(o.get("tF1", 16)), Fn(lambda P: P.wait_for(o["f1"])), flag_store(S_TOK, S_RS), Mark("f1")] + Rr.L
    F += [After("gelu3", o["ack"]), S.wait_tag("h0"), flag_store(S_TOK, S_FX, add=1), Mark("f3a"),
         At(bar[23] - 6), Fn(f3_addr, 12)] + f3_reload() + [At(bar[23] + 16), f3_check(1), Fn(lambda P: S.push_dma(dma2_h(26), 26), 0), Mark("f3c"),
         After("gelu7", o["ack"]), S.wait_tag("h1"), flag_store(S_TOK, S_FX, add=2),
         At(bar[35] - 26), Fn(f3_addr, 12)] + f3_reload() + [At(bar[35] - 3), f3_check(2), Mark("f3d")]
    qf = S.queue(F, vmlat=0)
    S.queues = [qf, qg]
    R = Rec(); R.add(At(bar[13] + 8)); g2_setup(R); R.add(Mark("g2setup")); R.add(At(p1 + 4)); g2_setup_b(R)
    S.queues.insert(1, {"L": R.L, "hold": -1, "vmlat": 0})
    S.pre_bar.setdefault(24, []).append(Fn(lambda P: P.label("L_g2_entry")))
    if o["rows_inv"]: o["rows_inv"](S, g0, bar)
    E = Rec()
    E.add(At(done2[0] - 30))
    def target(d):
        E(f"s_add_u32 s{S_T0}, s{S_KQ}, {d}"); E(f"s_and_b32 s{S_T0}, s{S_T0}, 3"); E(f"s_lshl_b32 s{S_T0}, s{S_T0}, 1")
        E(f"s_andn2_b32 s{S_T1}, s2, 6"); E(f"s_or_b32 s{S_T0}, s{S_T0}, s{S_T1}")
        E(f"s_lshl_b32 s{S_T0}, s{S_T0}, 2"); E(f"s_add_u32 s{S_T0}, s{S_T0}, s{S_WAVE}")
    SP = [S_XB, S_RT, S_ROT, S_H1]
    SF = [S_E0, S_E1, S_HB, S_FX]
    E.add(After("f3d"))
    for d in range(1, 5):
        if d == 4: E.add(At(bar[35] + 4))
        target(d)
        E(f"s_mul_i32 s{SP[d-1]}, s{S_T0}, 12288"); E(f"s_add_u32 s{SP[d-1]}, s{SP[d-1]}, {W_PART + (0 if d == 4 else (d-1)*4096)}")
        E(f"s_lshl_b32 s{SF[d-1]}, s{S_T0}, 4"); E(f"s_add_u32 s{SF[d-1]}, s{SF[d-1]}, {W_F6}")
    for t in range(6):
        E.add(At(done2[t] + 3))
        acc = acc2(t); pk = V_PK + 8 * (t % 2)
        for q in range(2):
            for i in range(4): E(f"v_cvt_pk_bf16_f32 v{pk+4*q+i}, v{acc+8*q+2*i}, v{acc+8*q+2*i+1}")
            E(f"buffer_store_dwordx4 {v(pk+4*q,4)}, v{V_L16}, {WS}, s{SP[t//2]} offen offset:{(t%2)*2048+q*1024} sc1", f"p{max(t,3)}")
        E.add(Mark(f"pack{t}"))
        if t >= 3:
            E.add(Gap(o["ack"])); E.add(S.wait_tag(f"p{t}"))
            if t == 3:
                E.add(flag_store(S_TOK, SF[0], 0)); E.add(flag_store(S_TOK, SF[1], 4))
            else: E.add(flag_store(S_TOK, SF[2], 4 * (t - 2)))
    S.queue(E.L, vmlat=0)
    S0, S1 = V_FREE, V_FREE + 16
    STG = [112, 120, 24, 32, 176, 184, 240, 248]
    V_XO = V_DX; V_F2 = V_DX + 2
    I = Rec()
    I.add(After("pack3"));
    if o["rows_inv"]: I.add(After("rows_inv_done"))
    I(f"v_and_b32 v{V_XO}, 31, v0"); I(f"v_lshlrev_b32 v{V_XO}, 11, v{V_XO}")
    I(f"v_lshrrev_b32 v{V_XO+1}, 5, v0"); I(f"v_lshlrev_b32 v{V_XO+1}, 4, v{V_XO+1}"); I(f"v_add_u32 v{V_XO}, v{V_XO}, v{V_XO+1}")
    I(f"s_lshl_b32 s{S_WB}, s{S_MT}, 2"); I(f"s_add_u32 s{S_WB}, s{S_WB}, s{S_KQ}"); I(f"s_lshl_b32 s{S_WB}, s{S_WB}, 17")
    I(f"s_lshl_b32 s{S_KB}, s{S_J}, 2"); I(f"s_add_u32 s{S_KB}, s{S_KB}, s{S_WAVE}"); I(f"s_lshl_b32 s{S_KB}, s{S_KB}, 5")
    I(f"s_add_u32 s{S_WO}, s{S_WB}, s{S_KB}"); I(f"s_add_u32 s{S_WO}, s{S_WO}, {W_YROW}")
    I(f"s_lshl_b32 s{S_KB}, s{S_KB}, 1"); I(f"s_add_u32 s{S_WB}, s{S_WB}, s{S_KB}")
    I(f"s_add_u32 s{S_LW}, s{S_WB}, 0x10000")
    for q in range(2): I(f"buffer_load_dwordx4 {v(STG[0]+4*q,4)}, v{V_XO+1}, s[{S_B}:{S_B+3}], s{S_KB} offen offset:{q*32}")
    for k in range(2):
        for q in range(2): I(f"buffer_load_dwordx4 {v(STG[1+k]+4*q,4)}, v{V_XO}, s[{S_X}:{S_X+3}], s{S_LW if k else S_WB} offen offset:{q*32}")
    unpack_add(I, S0, STG[1], first=True); unpack_add(I, S1, STG[2], first=True)
    unpack_add(I, S0, STG[0]); unpack_add(I, S1, STG[0])
    rlA = [f"buffer_load_dwordx2 {v(V_F2,2)}, off, {WS}, s{SF[3]} sc1"]
    regsA = [V_F2, V_F2 + 1]
    if o["pollF5"]:
        I(f"v_lshlrev_b32 v1, 2, v0")
        I(f"s_lshr_b32 s{S_KB}, s{S_WB}, 9"); I(f"s_and_b32 s{S_KB}, s{S_KB}, 0xf00"); I(f"s_add_u32 s{S_KB}, s{S_KB}, {W_F5}")
        rlA.append(f"buffer_load_dword v{V_XO+1}, v1, {WS}, s{S_KB} offen sc1"); regsA.append(V_XO + 1)
    I.add(At(g0 + o["tA"] - 20))
    for t_ in rlA: I(t_)
    I.add(At(g0 + o["tA"])); I.add(Fn(lambda P: poll_check(P, regsA, S_TOK, rlA), 24))
    I(f"s_add_u32 s{S_T0}, s{SP[3]}, 4096")
    for k in range(4):
        for q in range(2): I(f"buffer_load_dwordx4 {v(STG[k]+4*q,4)}, v{V_L16}, {WS}, s{S_T0 if k >= 2 else SP[3]} offen offset:{(k%2)*2048+q*1024} sc1")
    I(f"s_add_u32 s{S_T1}, s{S_WO}, 0x10000")
    for k in range(2):
        for q in range(2): I(f"buffer_load_dwordx4 {v(STG[4+k]+4*q,4)}, v{V_XO}, {WS}, s{S_T1 if k else S_WO} offen offset:{q*1024} sc1")
    I(f"s_add_u32 s{SP[3]}, s{SP[3]}, 8192")
    rlB = [f"buffer_load_dword v{V_F2}, off, {WS}, s{SF[3]} offset:8 sc1"]
    rlC = [f"buffer_load_dword v{V_F2+1}, off, {WS}, s{SF[3]} offset:12 sc1"]
    I2 = Rec()
    I2.add(After("A_issued")); I2.add(At(g0 + o["tB"] - 20)); I2(rlB[0])
    I2.add(At(g0 + o["tB"])); I2.add(Fn(lambda P: poll_check(P, [V_F2], S_TOK, rlB), 16))
    for q in range(2): I2(f"buffer_load_dwordx4 {v(STG[6]+4*q,4)}, v{V_L16}, {WS}, s{SP[3]} offen offset:{q*1024} sc1")
    I2.add(Mark("B_issued"))
    I2.add(At(g0 + o["tC"] - 20)); I2(rlC[0])
    I2.add(At(g0 + o["tC"])); I2.add(Fn(lambda P: poll_check(P, [V_F2 + 1], S_TOK, rlC), 16))
    for q in range(2): I2(f"buffer_load_dwordx4 {v(STG[7]+4*q,4)}, v{V_L16}, {WS}, s{SP[3]} offen offset:{2048+q*1024} sc1")
    I2.add(Mark("C_issued"))
    I.add(Mark("A_issued"))
    unpack_add(I, S0, STG[0]); unpack_add(I, S0, STG[2]); unpack_add(I, S0, STG[4], scale=INV_SCALE)
    I.add(After("B_issued"))
    unpack_add(I, S1, STG[1])
    unpack_add(I, S0, STG[6])
    def final(t, Sx, so):
        acc = acc2(t); pk = V_PK + 8 * (t % 2)
        I.add(At(done2[t] + 3))
        for q in range(2):
            for i in range(8): I(f"v_add_f32 v{Sx+8*q+i}, v{Sx+8*q+i}, v{acc+8*q+i}")
            for i in range(4): I(f"v_cvt_pk_bf16_f32 v{pk+4*q+i}, v{Sx+8*q+2*i}, v{Sx+8*q+2*i+1}")
            I(f"buffer_store_dwordx4 {v(pk+4*q,4)}, v{V_XO}, s[{S_OUT}:{S_OUT+3}], s{so} offen offset:{q*32}{o.get('outpol','')}")
    final(6, S0, S_WB); I.add(Mark("final6"))
    unpack_add(I, S1, STG[3]); unpack_add(I, S1, STG[5], scale=INV_SCALE)
    I.add(After("C_issued"))
    unpack_add(I, S1, STG[7]); I.add(Mark("sum7"))
    final(7, S1, S_LW)
    S.queue(I2.L, vmlat=0)
    S.queue(I.L, vmlat=o.get("vmlat", 24))
    st_ = None
    if stamp:
        pts = {-1: 0, 160: 1, p1: 2, start[6]: 3, g0: 4, g0 + 64: 5, g0 + 128: 6, start2[4]: 7, start2[6]: 8, start2[7]: 9, n: 10}
        if "pts" in o: pts = {k: j for j, k in enumerate(o["pts"])}
        st_ = {k: (lambda P, j=j: stamp(P, j)) for k, j in pts.items()}
    left = S.run(budget=o["budget"], LA=o["LA"], BOFF=o["BOFF"], WB=o["WB"], dma_gap=o["dma_gap"], stamps=st_)
    m = S.marks
    print("stream: slots", n, "p1", p1, "g0", g0, "left", left, "bars", bar[21], bar[22], bar[23], bar[24], bar[35], "marks", m)
    assert m["gelu0"] < start[6] and m["gelu1"] < start[7] and m["gelu5"] < g0 and m["gelu6"] < start2[4]
    assert m["f3a"] < bar[22] and m["g2setup"] < p1 and m["f3c"] + 10 < bar[24] and m["f3d"] < bar[35]
    assert m["pack0"] < start2[5] and m["pack1"] < start2[6] and m["pack2"] < start2[7]
```

```python
from common import *

def sincos_pack(P, dst, arg0, step, idx, tmp, neg_sin=False, scale=None):
    for n, k in enumerate(idx):
        t = tmp + 3 * (n % 2)
        if k == 0: P(f"v_mov_b32 v{t}, v{arg0}")
        else: P(f"v_fmamk_f32 v{t}, v{step}, {hexf(float(k))}, v{arg0}")
        P(f"v_cos_f32 v{t+1}, v{t}")
        P(f"v_sin_f32 v{t+2}, v{t}")
        d = dst(n) if callable(dst) else dst + n
        neg = "-" if neg_sin else ""
        if d < 256:
            P(f"v_cvt_pk_bf16_f32 v{d}, v{t+1}, {neg}v{t+2}")
        else:
            P(f"v_cvt_pk_bf16_f32 v{t}, v{t+1}, {neg}v{t+2}")
            P(f"v_accvgpr_write_b32 a{d-256}, v{t}")

DROW = [(i % 4) + 8 * (i // 4) for i in range(16)]

def twiddle(P, re, im, c, sn, tmp, conj, corr=None):
    for j in range(0, 16, 2):
        R, I, C, S = v(re + j, 2), v(im + j, 2), v(c + j, 2), v(sn + j, 2)
        T = v(tmp + 2 * ((j // 2) % 2), 2)
        P(f"v_pk_mul_f32 {T}, {R}, {S}")
        if corr is None: P(f"v_pk_mul_f32 {R}, {R}, {C}")
        else: P(f"v_pk_fma_f32 {R}, {R}, {C}, {v(corr,2)} op_sel_hi:[1,1,0]")
        if not conj:
            P(f"v_pk_fma_f32 {R}, {I}, {S}, {R}")
            P(f"v_pk_fma_f32 {I}, {I}, {C}, {T} neg_lo:[0,0,1] neg_hi:[0,0,1]")
        else:
            P(f"v_pk_fma_f32 {R}, {I}, {S}, {R} neg_lo:[1,0,0] neg_hi:[1,0,0]")
            P(f"v_pk_fma_f32 {I}, {I}, {C}, {T}")

def wave_reduce(P, regs):
    for mod in ("row_shr:1", "row_shr:2", "row_shr:4", "row_shr:8", "row_bcast:15 row_mask:0xa", "row_bcast:31 row_mask:0xc"):
        for x in regs:
            rm = "" if "row_mask" in mod else " row_mask:0xf"
            bc = " bound_ctrl:0" if "shr" in mod else ""
            P(f"v_add_f32_dpp v{x}, v{x}, v{x} {mod}{rm} bank_mask:0xf{bc}")

def stage_addr(P, A0, A1, sb, swave, base, t):
    P(f"v_add_u32 v{t}, -1, v0")
    P(f"v_and_b32 v{t}, 31, v{t}")
    P(f"s_and_b32 s{sb+1}, s{sb}, 15")
    P(f"v_xor_b32 v{t}, s{sb+1}, v{t}")
    P(f"v_lshlrev_b32 v{t}, 4, v{t}")
    P(f"v_lshrrev_b32 v{t+1}, 5, v0")
    P(f"v_lshl_add_u32 v{t}, v{t+1}, 11, v{t}")
    P(f"s_lshl_b32 s{sb+1}, s{swave}, 2")
    P(f"s_add_u32 s{sb+1}, s{sb+1}, {base}")
    P(f"v_add_u32 v{t}, s{sb+1}, v{t}")
    P(f"v_and_b32 v{t+1}, 31, v0")
    P(f"v_cmp_eq_u32 vcc, 0, v{t+1}")
    P(f"v_add_u32 v{t+1}, -1024, v{t}")
    P(f"v_cndmask_b32 v{A0}, v{t}, v{t+1}, vcc")
    P(f"v_cmp_eq_u32 vcc, 0, v0")
    P(f"v_add_u32 v{t+1}, 16384, v{A0}")
    P(f"v_cndmask_b32 v{A1}, v{A0}, v{t+1}, vcc")

def k2off(j): return ((j % 2) + 4 * (j // 2)) * 1024

def rows_fwd_issue(P, SX, swave, st, lrow):
    P(f"s_lshr_b32 s{st}, s2, 3")
    P(f"s_and_b32 s{st+1}, s2, 7")
    P(f"s_lshl_b32 s{st+1}, s{st+1}, 2")
    P(f"s_add_u32 s{st+1}, s{st+1}, s{swave}")
    P(f"s_lshl_b32 s{st+1}, s{st+1}, 5")
    P(f"s_add_u32 s{st+2}, s{st+1}, s{st}")
    P(f"s_lshl_b32 s{st+3}, s{swave}, 12")
    P(f"s_add_u32 m0, s{st+3}, {lrow}")
    P(f"s_lshl_b32 s{st+1}, s{st+2}, 11")
    P(f"v_lshlrev_b32 v1, 4, v0")
    h = []
    h.append(P(f"buffer_load_dwordx4 v1, s[{SX}:{SX+3}], s{st+1} offen lds"))
    h.append(P(f"buffer_load_dwordx4 v1, s[{SX}:{SX+3}], s{st+1} offen offset:1024 lds"))
    P(f"s_add_u32 s{st+1}, s{st+1}, {1024*2048-2048}")
    h.append(P(f"buffer_load_dwordx4 v1, s[{SX}:{SX+3}], s{st+1} offen offset:2048 lds"))
    h.append(P(f"buffer_load_dwordx4 v1, s[{SX}:{SX+3}], s{st+1} offen offset:3072 lds"))
    return h

def rows_fwd(P, h, SXB, SST, swave, st, lrow, lstage, pol=" sc1", stamp=lambda P, k: None):
    stamp(P, 0)
    B1, TW, A2, X, D, PK, T = 64, 80, 112, 128, 144, 208, 240
    A0, A1, RA = 236, 237, 238
    A0, A1, RA = 60, 61, 62
    sg = st + 4
    P(f"v_and_b32 v{T+8}, 31, v0")
    P(f"v_cvt_f32_u32 v{T+8}, v{T+8}")
    P(f"v_lshrrev_b32 v{T+9}, 5, v0")
    P(f"v_cvt_f32_u32 v{T+9}, v{T+9}")
    P(f"v_mul_f32 v{T+10}, {hexf(1/32)}, v{T+8}")
    P(f"v_mul_f32 v{T+11}, v{T+10}, v{T+9}")
    P(f"v_mul_f32 v{T+11}, {hexf(8.0)}, v{T+11}")
    for q in range(2):
        for jj in range(4):
            for e in range(2):
                k = 16 * q + 2 * jj + e
                if k == 0: P(f"v_mov_b32 v{T+e}, v{T+11}")
                else: P(f"v_fmamk_f32 v{T+e}, v{T+10}, {hexf(float(k))}, v{T+11}")
            P(f"v_cos_f32 v{T+2}, v{T}"); P(f"v_cos_f32 v{T+3}, v{T+1}")
            P(f"v_sin_f32 v{T+4}, v{T}"); P(f"v_sin_f32 v{T+5}, v{T+1}")
            P(f"v_cvt_pk_bf16_f32 v{B1+4*q+jj}, v{T+2}, v{T+3}")
            P(f"v_cvt_pk_bf16_f32 v{B1+8+4*q+jj}, -v{T+4}, -v{T+5}")
    P(f"v_mul_f32 v{T+10}, {hexf(1/1024)}, v{T+8}")
    P(f"v_mul_f32 v{T+11}, v{T+10}, v{T+9}")
    P(f"v_mul_f32 v{T+11}, 4.0, v{T+11}")
    for i in range(16):
        t = T + (i % 2)
        if DROW[i] == 0: P(f"v_mov_b32 v{t}, v{T+11}")
        else: P(f"v_fmamk_f32 v{t}, v{T+10}, {hexf(float(DROW[i]))}, v{T+11}")
        P(f"v_cos_f32 v{TW+i}, v{t}"); P(f"v_sin_f32 v{TW+16+i}, v{t}")
    P(f"v_bfe_u32 v{T+10}, v0, 1, 4")
    P(f"v_cvt_f32_u32 v{T+10}, v{T+10}")
    P(f"v_mul_f32 v{T+10}, {hexf(1/32)}, v{T+10}")
    P(f"v_and_b32 v{T+12}, 1, v0")
    P(f"v_cvt_f32_u32 v{T+12}, v{T+12}")
    P(f"v_mul_f32 v{T+11}, v{T+10}, v{T+9}")
    P(f"v_mul_f32 v{T+11}, 4.0, v{T+11}")
    P(f"v_fmac_f32 v{T+11}, {hexf(0.25)}, v{T+12}")
    sincos_pack(P, A2, T + 11, T + 10, DROW, T)
    stage_addr(P, A0, A1, st, swave, lstage, T)
    P(f"v_fma_f32 v{T+12}, v{T+12}, -2.0, 1.0")
    P(f"v_bfe_u32 v{T}, v0, 2, 2")
    P(f"v_lshrrev_b32 v{T+1}, 5, v0")
    P(f"v_lshl_add_u32 v{T}, v{T+1}, 3, v{T}")
    P(f"v_lshlrev_b32 v{T}, 6, v{T}")
    P(f"v_bfe_u32 v{T+1}, v0, 4, 1")
    P(f"v_lshl_add_u32 v{T}, v{T+1}, 5, v{T}")
    P(f"v_and_b32 v{T+1}, 3, v0")
    P(f"v_lshl_add_u32 v{T}, v{T+1}, 3, v{T}")
    P(f"s_add_u32 s{st+3}, s{st+3}, {lrow}")
    P(f"v_add_u32 v{RA}, s{st+3}, v{T}")
    P(f"v_mov_b32 v{T+13}, 0x3f803f80")
    stamp(P, 1)
    P.wait_for(h)
    stamp(P, 2)
    for rw in range(2):
        for q in range(2):
            for hh in range(2):
                P(f"ds_read_b64_tr_b16 {v(X+8*rw+4*q+2*hh,2)}, v{RA} offset:{rw*2048+q*1024+hh*256}")
    for rw in range(2):
        for j in range(8):
            x = X + 8 * rw + j
            c0 = "0" if j == 0 else f"v{T+3*rw}"
            c1 = "0" if j == 0 else f"v{T+3*rw+1}"
            P(f"v_dot2_f32_bf16 v{T+3*rw}, v{x}, v{T+13}, {c0}")
            P(f"v_dot2_f32_bf16 v{T+3*rw+1}, v{x}, v{x}, {c1}")
    for rw in range(2):
        for part in range(2):
            d = D + 32 * rw + 16 * part
            for q in range(2):
                P(f"v_mfma_f32_32x32x16_bf16 {v(d,16)}, {v(X+8*rw+4*q,4)}, {v(B1+8*part+4*q,4)}, {'0' if q==0 else v(d,16)}")
    for rw in range(2):
        P(f"v_mul_f32 v{T+3*rw+2}, v{T+3*rw}, v{T+12}")
    wave_reduce(P, [T + i for i in range(6)])
    for i in range(6):
        P(f"v_readlane_b32 s{sg+i}, v{T+i}, 63")
    P(f"v_cmp_gt_f32 vcc, 0, v{T+12}")
    P(f"v_mov_b32 v{T}, s{sg}"); P(f"v_mov_b32 v{T+1}, s{sg+3}")
    P(f"v_mov_b32 v{T+2}, s{sg+1}"); P(f"v_mov_b32 v{T+3}, s{sg+4}")
    P(f"v_cndmask_b32 v{T}, v{T}, v{T+1}, vcc")
    P(f"v_cndmask_b32 v{T+2}, v{T+2}, v{T+3}, vcc")
    P(f"v_mul_f32 v{T}, {hexf(-1/1024)}, v{T}")
    P(f"v_mul_f32 v{T+2}, {hexf(1/1024)}, v{T+2}")
    P(f"v_fma_f32 v{T+2}, -v{T}, v{T}, v{T+2}")
    P(f"v_max_f32 v{T+2}, 0, v{T+2}")
    P(f"v_add_f32 v{T+2}, {hexf(1e-5)}, v{T+2}")
    P(f"v_rsq_f32 v{T+3}, v{T+2}")
    P(f"v_cmp_eq_f32 vcc, 0, v{T+8}")
    P(f"v_mov_b32 v{T+4}, {hexf(-1/32)}")
    P(f"v_cndmask_b32 v{T+4}, 0, v{T+4}, vcc")
    P(f"v_mul_f32 v{T+6}, s{sg+3}, v{T+4}")
    P(f"v_mul_f32 v{T+4}, s{sg}, v{T+4}")
    P(f"v_readlane_b32 s{sg+6}, v{T+3}, 0")
    P(f"v_readlane_b32 s{sg+7}, v{T+3}, 1")
    S = B1
    P(f"v_mul_f32 v{S+6}, v{T+2}, v{T+3}")
    P(f"v_cvt_pk_bf16_f32 v{S}, v{S+6}, v{S+6}")
    P(f"v_cvt_pk_bf16_f32 v{S+1}, v{T}, v{T}")
    P(f"v_and_b32 v{S+2}, 0xffff0000, v{S}")
    P(f"v_and_b32 v{S+3}, 0xffff0000, v{S+1}")
    P(f"v_sub_f32 v{S+4}, v{S+6}, v{S+2}")
    P(f"v_sub_f32 v{S+3}, v{T}, v{S+3}")
    P(f"v_cvt_pk_bf16_f32 v{S}, v{S+2}, v{S+4}")
    P(f"v_cvt_pk_bf16_f32 v{S+2}, v{S+3}, v{S+3}")
    P(f"v_mov_b32 v{S+3}, 0")
    P(f"v_mul_f32 v{S+5}, {hexf(GELU_C0)}, v{T+3}")
    P(f"v_mul_f32 v{S+4}, v{T+3}, v{T+3}")
    P(f"v_mul_f32 v{S+4}, v{S+4}, v{S+5}")
    P(f"v_mul_f32 v{S+4}, {hexf(0.044715)}, v{S+4}")
    P(f"v_mov_b32 v{S+7}, 0")
    P(f"v_lshlrev_b32 v{S+8}, 15, v0")
    P(f"s_lshl_b32 s{st+1}, s{st+2}, 5")
    P(f"s_mov_b64 exec, 3")
    P(f"buffer_store_dwordx4 {v(S,4)}, v{S+8}, s[{SST}:{SST+3}], s{st+1} offen{pol}")
    P(f"buffer_store_dwordx4 {v(S+4,4)}, v{S+8}, s[{SST}:{SST+3}], s{st+1} offen offset:16{pol}")
    P(f"s_mov_b64 exec, -1")
    for rw in range(2):
        d = D + 32 * rw
        twiddle(P, d, d + 16, TW, TW + 16, T + 8, False, corr=T + 4 + 2 * rw)
        for i in range(16):
            P(f"v_cvt_pk_bf16_f32 v{PK+16*rw+i}, v{d+i}, v{d+16+i}")
    for rw in range(2):
        d = D + 16 * rw
        for q in range(4):
            P(f"v_mfma_f32_32x32x16_bf16 {v(d,16)}, {v(A2+4*q,4)}, {v(PK+16*rw+4*q,4)}, {'0' if q==0 else v(d,16)}")
    P(f"v_mov_b32 v{T}, s{sg+6}"); P(f"v_mov_b32 v{T+2}, s{sg+7}")
    for rw in range(2):
        P(f"v_writelane_b32 v{D+16*rw}, s{sg+3*rw+2}, 0")
        P(f"v_writelane_b32 v{D+16*rw+1}, 0, 0")
    for j in range(8):
        X0, X1, Q = v(D + 2 * j, 2), v(D + 16 + 2 * j, 2), v(D + 32 + 2 * j, 2)
        P(f"v_pk_mul_f32 {X1}, {X1}, {v(T+2,2)} op_sel_hi:[1,0]")
        P(f"v_pk_fma_f32 {Q}, {X0}, {v(T,2)}, {X1} op_sel_hi:[1,0,1] neg_lo:[0,0,1] neg_hi:[0,0,1]")
        P(f"v_pk_fma_f32 {X0}, {X0}, {v(T,2)}, {X1} op_sel_hi:[1,0,1]")
        P(f"v_cvt_pk_bf16_f32 v{PK+8+j}, v{D+32+2*j}, v{D+33+2*j}")
        P(f"v_cvt_pk_bf16_f32 v{PK+j}, v{D+2*j}, v{D+2*j+1}")
        ad = A1 if j == 0 else A0
        P(f"ds_write_b32 v{ad}, v{PK+8+j} offset:{k2off(j)+512}")
        P(f"ds_write_b32 v{ad}, v{PK+j} offset:{k2off(j)}")
    P(f"v_lshlrev_b32 v{T}, 4, v0")
    P(f"s_lshl_b32 s{st+1}, s{swave}, 12")
    P(f"s_add_u32 s{st+1}, s{st+1}, {lstage}")
    P(f"v_add_u32 v{T}, s{st+1}, v{T}")
    P(f"v_lshrrev_b32 v{T+1}, 5, v0")
    P(f"v_and_b32 v{T+2}, 31, v0")
    P(f"v_lshlrev_b32 v{T+2}, 4, v{T+2}")
    P(f"v_lshl_add_u32 v{T+1}, v{T+1}, 17, v{T+2}")
    P(f"s_lshl_b32 s{st+1}, s{swave}, 20")
    P(f"s_lshl_b32 s{st+3}, s2, 9")
    P(f"s_add_u32 s{st+1}, s{st+1}, s{st+3}")
    stamp(P, 3)
    P.wait(lg=0); P.barrier()
    stamp(P, 4)
    for u in range(4):
        P(f"ds_read_b128 {v(D+4*u,4)}, v{T} offset:{u*1024}")
    for u in range(4):
        P(f"buffer_store_dwordx4 {v(D+4*u,4)}, v{T+1}, s[{SXB}:{SXB+3}], s{st+1} offen{pol}")
        if u < 3: P(f"s_add_u32 s{st+1}, s{st+1}, 0x40000")

def rows_inv_issue(P, SX, SYB, SB2, swave, st, lrow, lstage, lb2):
    h = rows_fwd_issue(P, SX, swave, st, lrow)
    P(f"v_lshrrev_b32 v2, 5, v0")
    P(f"v_and_b32 v3, 31, v0")
    P(f"v_lshlrev_b32 v3, 4, v3")
    P(f"v_lshl_add_u32 v2, v2, 17, v3")
    P(f"s_add_u32 m0, s{st+3}, {lstage}")
    P(f"s_lshl_b32 s{st+1}, s{swave}, 20")
    P(f"s_lshl_b32 s{st+4}, s2, 9")
    P(f"s_add_u32 s{st+1}, s{st+1}, s{st+4}")
    hy = []
    for u in range(4):
        hy.append(P(f"buffer_load_dwordx4 v2, s[{SYB}:{SYB+3}], s{st+1} offen offset:{u*1024} lds"))
        if u < 3: P(f"s_add_u32 s{st+1}, s{st+1}, {0x40000-1024}")
    P(f"s_and_b32 s{st+1}, s{swave}, 1")
    P(f"s_lshl_b32 s{st+1}, s{st+1}, 10")
    P(f"s_add_u32 m0, s{st+1}, {lb2}")
    P(f"s_nop 0")
    hy.append(P(f"buffer_load_dwordx4 v1, s[{SB2}:{SB2+3}], s{st+1} offen lds"))
    return h + hy

INV_SCALE = 2.0 / (2048.0 * 1024.0)

def rows_inv(P, h, SBASE, swave, st, lrow, lstage, lb2, pol=" sc1", R=64, stamp=lambda P, k: None):
    stamp(P, 0)
    BA, TW, BB, Y, D, PK, T = R, R + 16, R + 48, R + 64, R + 80, R + 144, R + 176
    A0, A1, RA = R - 4, R - 3, R - 2
    sg = st + 4
    P(f"v_bfe_u32 v{T}, v0, 2, 1")
    P(f"v_and_b32 v{T+1}, 3, v0")
    P(f"v_lshl_add_u32 v{T}, v{T}, 4, v{T+1}")
    P(f"v_bfe_u32 v{T+1}, v0, 3, 2")
    P(f"v_lshl_add_u32 v{T}, v{T+1}, 2, v{T}")
    P(f"v_cvt_f32_u32 v{T+8}, v{T}")
    P(f"v_lshrrev_b32 v{T+9}, 5, v0")
    P(f"v_cvt_f32_u32 v{T+9}, v{T+9}")
    P(f"v_mul_f32 v{T+10}, {hexf(1/32)}, v{T+8}")
    P(f"v_mul_f32 v{T+11}, v{T+10}, v{T+9}")
    P(f"v_add_f32 v{T+11}, v{T+11}, v{T+11}")
    k2 = [(j % 2) + 4 * (j // 2) for j in range(8)]
    sincos_pack(P, BA, T + 11, T + 10, k2, T, neg_sin=True)
    P(f"v_add_f32 v{T+11}, {hexf(-0.25)}, v{T+11}")
    sincos_pack(P, BA + 8, T + 11, T + 10, k2, T, neg_sin=True)
    P(f"v_mul_f32 v{T+10}, {hexf(1/1024)}, v{T+8}")
    P(f"v_mul_f32 v{T+11}, v{T+10}, v{T+9}")
    P(f"v_mul_f32 v{T+11}, 4.0, v{T+11}")
    for i in range(16):
        t = T + (i % 2)
        if DROW[i] == 0: P(f"v_mov_b32 v{t}, v{T+11}")
        else: P(f"v_fmamk_f32 v{t}, v{T+10}, {hexf(float(DROW[i]))}, v{T+11}")
        P(f"v_cos_f32 v{TW+i}, v{t}"); P(f"v_sin_f32 v{TW+16+i}, v{t}")
    P(f"v_mov_b32 v{T}, {hexf(INV_SCALE)}")
    for i in range(0, 32, 2):
        P(f"v_pk_mul_f32 {v(TW+i,2)}, {v(TW+i,2)}, {v(T,2)} op_sel_hi:[1,0]")
    P(f"v_and_b32 v{T+10}, 31, v0")
    P(f"v_cvt_f32_u32 v{T+10}, v{T+10}")
    P(f"v_mul_f32 v{T+10}, {hexf(1/32)}, v{T+10}")
    P(f"v_mul_f32 v{T+11}, v{T+10}, v{T+9}")
    P(f"v_mul_f32 v{T+11}, 4.0, v{T+11}")
    sincos_pack(P, BB, T + 11, T + 10, DROW, T, neg_sin=True)
    stage_addr(P, A0, A1, st, swave, lstage, T)
    P(f"v_and_b32 v{T}, 1, v0")
    P(f"v_cvt_f32_u32 v{T}, v{T}")
    P(f"v_fma_f32 v{T}, v{T}, -2.0, 1.0")
    P(f"v_mul_f32 v{T}, {hexf(INV_SCALE/2)}, v{T}")
    P(f"v_cmp_gt_u32 vcc, 32, v0")
    P(f"v_cndmask_b32 v{T+12}, 0, v{T}, vcc")
    P(f"v_and_b32 v{T}, 31, v0")
    P(f"v_lshlrev_b32 v{T}, 6, v{T}")
    P(f"v_and_b32 v{T+1}, 32, v0")
    P(f"v_add_u32 v{T+13}, v{T}, v{T+1}")
    P(f"s_add_u32 s{st+3}, s{st+3}, {lrow}")
    P(f"v_add_u32 v{RA}, s{st+3}, v{T+13}")
    stamp(P, 1)
    P.wait_for(h); P.barrier()
    stamp(P, 2)
    for par in range(2):
        for j in range(8):
            P(f"ds_read_b32 v{Y+8*par+j}, v{A1 if j == 0 else A0} offset:{k2off(j)+512*par}")
    for par in range(2):
        P(f"v_readlane_b32 s{sg+par}, v{Y+8*par}, 0")
        P(f"v_writelane_b32 v{Y+8*par}, 0, 0")
        P(f"s_lshl_b32 s{sg+par}, s{sg+par}, 16")
    for par in range(2):
        for part in range(2):
            d = D + 32 * par + 16 * part
            for q in range(2):
                P(f"v_mfma_f32_32x32x16_bf16 {v(d,16)}, {v(Y+8*par+4*q,4)}, {v(BA+8*part+4*q,4)}, {'0' if q==0 else v(d,16)}")
    for par in range(2):
        d = D + 32 * par
        twiddle(P, d, d + 16, TW, TW + 16, T + 8, True)
        P(f"v_fmac_f32 v{d}, s{sg+par}, v{T+12}")
        for i in range(16):
            P(f"v_cvt_pk_bf16_f32 v{PK+16*par+i}, v{d+i}, v{d+16+i}")
    for rw in range(2):
        for q in range(2):
            P(f"ds_read_b128 {v(Y+8*rw+4*q,4)}, v{RA} offset:{rw*2048+q*16}")
    for q in range(2):
        P(f"ds_read_b128 {v(BA+4*q,4)}, v{T+13} offset:{lb2+q*16}")
    for par in range(2):
        d = D + 16 * par
        for q in range(4):
            P(f"v_mfma_f32_32x32x16_bf16 {v(d,16)}, {v(PK+16*par+4*q,4)}, {v(BB+4*q,4)}, {'0' if q==0 else v(d,16)}")
    for j in range(8):
        P(f"v_lshlrev_b32 v{TW+2*j}, 16, v{BA+j}"); P(f"v_and_b32 v{TW+2*j+1}, 0xffff0000, v{BA+j}")
    for rw in range(2):
        for j in range(8):
            P(f"v_lshlrev_b32 v{D+32+16*rw+2*j}, 16, v{Y+8*rw+j}"); P(f"v_and_b32 v{D+33+16*rw+2*j}, 0xffff0000, v{Y+8*rw+j}")
    for j in range(8):
        E, O, X0, X1, B = v(D+2*j,2), v(D+16+2*j,2), v(D+32+2*j,2), v(D+48+2*j,2), v(TW+2*j,2)
        P(f"v_pk_add_f32 {E}, {E}, {B}")
        P(f"v_pk_add_f32 {X0}, {X0}, {O}")
        P(f"v_pk_add_f32 {X1}, {X1}, {O} neg_lo:[0,1] neg_hi:[0,1]")
        P(f"v_pk_add_f32 {X0}, {X0}, {E}")
        P(f"v_pk_add_f32 {X1}, {X1}, {E}")
        P(f"v_cvt_pk_bf16_f32 v{PK+j}, v{D+32+2*j}, v{D+33+2*j}")
        P(f"v_cvt_pk_bf16_f32 v{PK+8+j}, v{D+48+2*j}, v{D+49+2*j}")
    for rw in range(2):
        for q in range(2):
            P(f"ds_write_b128 v{RA}, {v(PK+8*rw+4*q,4)} offset:{rw*2048+q*16}")
    P(f"v_lshlrev_b32 v{T}, 4, v0")
    P(f"v_add_u32 v{T+1}, s{st+3}, v{T}")
    for u in range(4):
        P(f"ds_read_b128 {v(D+4*u,4)}, v{T+1} offset:{u*1024}")
    P(f"s_lshl_b32 s{st+1}, s{st+2}, 11")
    stamp(P, 3)
    hs = []
    for u in range(4):
        if u == 2: P(f"s_add_u32 s{st+1}, s{st+1}, {1024*2048}")
        hs.append(P(f"buffer_store_dwordx4 {v(D+4*u,4)}, v{T}, s[{SBASE}:{SBASE+3}], s{st+1} offen offset:{(u%2)*1024}{pol}"))
    return hs
```

```python
from common import *
from stream import *
from rows import DROW, k2off
import fused as F

def angles(R, idx, arg0, step, T, emit):
    for n0 in range(0, len(idx), 2):
        pr = list(range(n0, min(n0 + 2, len(idx))))
        for e, n in enumerate(pr):
            k = idx[n]
            if k == 0: R(f"v_mov_b32 v{T+e}, v{arg0}")
            else: R(f"v_fmamk_f32 v{T+e}, v{step}, {hexf(float(k))}, v{arg0}")
        for e, n in enumerate(pr):
            R(f"v_cos_f32 v{T+2+2*e}, v{T+e}"); R(f"v_sin_f32 v{T+3+2*e}, v{T+e}")
        for e, n in enumerate(pr): emit(n, T + 2 + 2 * e, T + 3 + 2 * e, T + e)

def twiddle1(R, re, im, c, sn, tmp, conj):
    for j0 in range(0, 16, 2):
        for e in range(2): R(f"v_mul_f32 v{tmp+e}, v{re+j0+e}, v{sn+j0+e}")
        for e in range(2): R(f"v_mul_f32 v{re+j0+e}, v{re+j0+e}, v{c+j0+e}")
        for e in range(2):
            j = j0 + e
            R(f"v_fma_f32 v{re+j}, {'-' if conj else ''}v{im+j}, v{sn+j}, v{re+j}")
        for e in range(2):
            j = j0 + e
            R(f"v_fma_f32 v{im+j}, v{im+j}, v{c+j}, {'' if conj else '-'}v{tmp+e}")

def stage_addr2(R, A0, A1, s0, swave, base, t):
    R(f"v_add_u32 v{t}, -1, v0")
    R(f"v_and_b32 v{t}, 31, v{t}")
    R(f"s_bfe_u32 s{s0}, s2, 0x40003")
    R(f"v_xor_b32 v{t}, s{s0}, v{t}")
    R(f"v_lshlrev_b32 v{t}, 4, v{t}")
    R(f"v_lshrrev_b32 v{t+1}, 5, v0")
    R(f"v_lshl_add_u32 v{t}, v{t+1}, 11, v{t}")
    R(f"s_lshl_b32 s{s0}, s{swave}, 2")
    R(f"s_add_u32 s{s0}, s{s0}, {base}")
    R(f"v_add_u32 v{t}, s{s0}, v{t}")
    R(f"v_and_b32 v{t+1}, 31, v0")
    R(f"v_cmp_eq_u32 vcc, 0, v{t+1}")
    R(f"v_add_u32 v{t+1}, -1024, v{t}")
    R(f"v_cndmask_b32 v{A0}, v{t}, v{t+1}, vcc")
    R(f"v_cmp_eq_u32 vcc, 0, v0")
    R(f"v_add_u32 v{t+1}, 16384, v{A0}")
    R(f"v_cndmask_b32 v{A1}, v{A0}, v{t+1}, vcc")

TW, D1, D0, D2, Y0, Y1 = 128, 112, 176, 24, 10, 40
TT, A0, A1, VS = 2, 4, 5, 22
BA, BB = 224, 240
NQ = 18

def inv_consts(R, sa=stage_addr2):
    T = D0
    s0 = F.S_RS
    R(f"v_and_b32 v{T+8}, 0x13, v0")
    R(f"v_bfe_u32 v{T+9}, v0, 2, 1")
    R(f"v_lshl_add_u32 v{T+8}, v{T+9}, 3, v{T+8}")
    R(f"v_bfe_u32 v{T+9}, v0, 3, 1")
    R(f"v_lshl_add_u32 v{T+8}, v{T+9}, 2, v{T+8}")
    R(f"v_cvt_f32_u32 v{T+8}, v{T+8}")
    R(f"v_lshrrev_b32 v{T+9}, 5, v0")
    R(f"v_cvt_f32_u32 v{T+9}, v{T+9}")
    R(f"v_mul_f32 v{T+10}, {hexf(1/32)}, v{T+8}")
    R(f"v_mul_f32 v{T+11}, v{T+10}, v{T+9}")
    R(f"v_add_f32 v{T+11}, v{T+11}, v{T+11}")
    def eA(n, c, s, t):
        R(f"v_cvt_pk_bf16_f32 v{t}, v{c}, -v{s}"); R(f"v_cvt_pk_bf16_f32 v{c}, v{s}, v{c}")
        R(f"v_accvgpr_write_b32 a{BA+n}, v{t}"); R(f"v_accvgpr_write_b32 a{BA+8+n}, v{c}")
    angles(R, [(j % 2) + 4 * (j // 2) for j in range(8)], T + 11, T + 10, T, eA)
    R(f"v_mul_f32 v{T+9}, 4.0, v{T+9}")
    R(f"v_mul_f32 v{T+10}, {hexf(1/1024)}, v{T+8}")
    R(f"v_mul_f32 v{T+11}, v{T+10}, v{T+9}")
    for i in range(16):
        t = T + (i % 2)
        if DROW[i] == 0: R(f"v_mov_b32 v{t}, v{T+11}")
        else: R(f"v_fmamk_f32 v{t}, v{T+10}, {hexf(float(DROW[i]))}, v{T+11}")
        R(f"v_cos_f32 v{TW+i}, v{t}"); R(f"v_sin_f32 v{TW+16+i}, v{t}")
    R(f"v_and_b32 v{T+12}, 31, v0")
    R(f"v_cvt_f32_u32 v{T+10}, v{T+12}")
    R(f"v_mul_f32 v{T+10}, {hexf(1/32)}, v{T+10}")
    R(f"v_mul_f32 v{T+11}, v{T+10}, v{T+9}")
    def eB(n, c, s, t):
        R(f"v_cvt_pk_bf16_f32 v{t}, v{c}, -v{s}"); R(f"v_accvgpr_write_b32 a{BB+n}, v{t}")
    angles(R, DROW, T + 11, T + 10, T, eB)
    R(f"v_lshrrev_b32 v{T+13}, 5, v0")
    R(f"v_lshlrev_b32 v{T+13}, 4, v{T+13}")
    R(f"v_lshl_add_u32 v{VS}, v{T+12}, 5, v{T+13}")
    sa(R, A0, A1, s0, F.S_WAVE, F.L_Y, T)

def inv_dma(pol=" sc1"):
    s0 = F.S_RS
    L = [f"v_lshrrev_b32 v{TT}, 5, v0", f"v_and_b32 v{TT+1}, 31, v0", f"v_lshlrev_b32 v{TT+1}, 4, v{TT+1}",
         f"v_lshl_add_u32 v{TT}, v{TT}, 17, v{TT+1}",
         f"s_lshl_b32 s{s0}, s{F.S_WAVE}, 20", f"s_lshl_b32 s{s0+1}, s2, 9", f"s_add_u32 s{s0}, s{s0}, s{s0+1}",
         f"s_add_u32 s{s0}, s{s0}, {F.W_YBUF}", f"s_lshl_b32 s{s0+1}, s{F.S_WAVE}, 12", f"s_add_u32 m0, s{s0+1}, {F.L_Y}"]
    for u in range(4):
        L.append(f"buffer_load_dwordx4 v{TT}, {F.WS}, s{s0} offen offset:{u*1024}{pol} lds")
        if u < 3: L.append(f"s_add_u32 s{s0}, s{s0}, {0x40000-1024}")
    return L

def inv_data(R):
    s0 = F.S_RS
    for par, Y in enumerate((Y0, Y1)):
        for j in range(8):
            R(f"ds_read_b32 v{Y+j}, v{A1 if j == 0 else A0} offset:{k2off(j)+512*par}")
    R(f"v_lshlrev_b32 v{A1}, 31, v0")
    R(f"v_or_b32 v{A1}, 0.5, v{A1}")
    R(f"v_cmp_gt_u32 vcc, 32, v0")
    for par, Y in enumerate((Y0, Y1)):
        R(f"v_readlane_b32 s{s0+par}, v{Y}, 0")
        R(f"v_writelane_b32 v{Y}, 0, 0")
    R(f"v_cndmask_b32 v{A0}, 0, v{A1}, vcc")
    for par in range(2): R(f"s_lshl_b32 s{s0+par}, s{s0+par}, 16")
    for par, (Y, d) in enumerate(((Y0, D0), (Y1, D2))):
        for q in range(2):
            for part, dd in enumerate((d, D1)):
                R(f"v_mfma_f32_32x32x16_bf16 {v(dd,16)}, {v(Y+4*q,4)}, {a(BA+8*part+4*q,4)}, {'0' if q==0 else v(dd,16)}")
        twiddle1(R, d, D1, TW, TW + 16, TT, True)
        R(f"v_fmac_f32 v{d}, s{s0+par}, v{A0}")
        for i in range(16): R(f"v_cvt_pk_bf16_f32 v{D1+i}, v{d+i}, v{D1+i}")
        for q in range(4):
            R(f"v_mfma_f32_32x32x16_bf16 {v(d,16)}, {v(D1+4*q,4)}, {a(BB+4*q,4)}, {'0' if q==0 else v(d,16)}")
    R(f"s_and_b32 s{s0}, s2, 7"); R(f"s_lshl_b32 s{s0}, s{s0}, 2"); R(f"s_add_u32 s{s0}, s{s0}, s{F.S_WAVE}")
    R(f"s_lshl_b32 s{s0}, s{s0}, 5"); R(f"s_lshr_b32 s{s0+1}, s2, 3"); R(f"s_add_u32 s{s0+1}, s{s0}, s{s0+1}")
    R(f"s_lshl_b32 s{s0}, s{s0+1}, 11"); R(f"s_add_u32 s{s0}, s{s0}, {F.W_YROW}")
    for rw in range(2):
        for q in range(2):
            for i in range(4):
                j = 8 * q + 2 * i
                t = Y0 + 2 * i
                for e in range(2): R(f"v_{'sub' if rw else 'add'}_f32 v{t+e}, v{D0+j+e}, v{D2+j+e}")
            for i in range(4): R(f"v_cvt_pk_bf16_f32 v{D1+8*rw+4*q+i}, v{Y0+2*i}, v{Y0+2*i+1}")
            R(f"buffer_store_dwordx4 {v(D1+8*rw+4*q,4)}, v{VS}, {F.WS}, s{s0} offen offset:{q*1024} sc1", "yst")
        if rw == 0: R(f"s_add_u32 s{s0}, s{s0}, {1024*2048}")
    R(f"s_lshl_b32 s{s0+1}, s{s0+1}, 2"); R(f"s_add_u32 s{s0+1}, s{s0+1}, {F.W_F5}")

def plain(P, L):
    for it in L:
        if isinstance(it, str): P(it)
        elif isinstance(it, tuple): P(it[0])
```

```python
from common import *
from stream import *
from rows import DROW, k2off, sincos_pack, twiddle, wave_reduce
import fused as F

class Inter:
    def __init__(s, P): s.P = P; s.side = []; s.gap = 8; s.n = 0; s.lock = False
    def push(s, L, sink): s.side += [(t, sink) for t in L]
    def one(s):
        while s.side:
            t, sink = s.side.pop(0)
            h = s.P(t)
            if h.kind == "vmem":
                sink.append(h); break
    def flush(s):
        while s.side: s.one()
    def __call__(s, text):
        h = s.P(text)
        s.n += 2 if text.split()[0] in TRANS else (8 if text.startswith("v_mfma") else 1)
        if s.side and not s.lock and s.n >= s.gap:
            s.n = 0; s.one()
        return h
    def __getattr__(s, k): return getattr(s.P, k)

def stage_addr3(R, A0, A1, s0, swave, base, t):
    R(f"v_add_u32 v{t}, -1, v0")
    R(f"v_bfe_u32 v{t+1}, v{t}, 1, 2")
    R(f"v_bfe_u32 v{A0}, v{t}, 3, 2")
    R(f"v_and_b32 v{t}, 1, v{t}")
    R(f"v_lshl_add_u32 v{t}, v{A0}, 1, v{t}")
    R(f"v_lshl_add_u32 v{t}, v{t+1}, 3, v{t}")
    R(f"s_bfe_u32 s{s0}, s2, 0x30003")
    R(f"v_xor_b32 v{t}, s{s0}, v{t}")
    R(f"v_lshlrev_b32 v{t}, 4, v{t}")
    R(f"v_lshrrev_b32 v{t+1}, 5, v0")
    R(f"v_lshl_add_u32 v{t}, v{t+1}, 11, v{t}")
    R(f"s_lshl_b32 s{s0}, s{swave}, 2")
    R(f"s_add_u32 s{s0}, s{s0}, {base}")
    R(f"v_add_u32 v{t}, s{s0}, v{t}")
    R(f"v_and_b32 v{t+1}, 31, v0")
    R(f"v_cmp_eq_u32 vcc, 0, v{t+1}")
    R(f"v_add_u32 v{t+1}, -1024, v{t}")
    R(f"v_cndmask_b32 v{A0}, v{t}, v{t+1}, vcc")
    R(f"v_cmp_eq_u32 vcc, 0, v0")
    R(f"v_add_u32 v{t+1}, 16384, v{A0}")
    R(f"v_cndmask_b32 v{A1}, v{A0}, v{t+1}, vcc")

ST = 54
LROW, LSTAGE = F.L_AUX, F.L_AUX + 0x4000

def fwd_issue(P):
    st = ST
    P(f"s_lshr_b32 s{st}, s2, 3")
    P(f"s_and_b32 s{st+1}, s2, 7")
    P(f"s_lshl_b32 s{st+1}, s{st+1}, 2")
    P(f"s_add_u32 s{st+1}, s{st+1}, s{F.S_WAVE}")
    P(f"s_lshl_b32 s{st+1}, s{st+1}, 5")
    P(f"s_add_u32 s{st+2}, s{st+1}, s{st}")
    P(f"s_add_u32 m0, s{F.S_LW}, {LROW}")
    P(f"s_lshl_b32 s{st+1}, s{st+2}, 11")
    P(f"s_add_u32 s{st+3}, s{st+1}, {1024*2048-2048}")
    return [f"buffer_load_dwordx4 v{F.V_L16}, s[{F.S_X}:{F.S_X+3}], s{st+1+2*(j//2)} offen offset:{j*1024} lds" for j in range(4)]

B1, TW, A2, X, D, PK, T = 64, 80, 112, 128, 144, 208, 240
A0, A1, RA = 60, 61, 62

def fwd_consts(P):
    st = ST
    P(f"v_and_b32 v{T+8}, 31, v0")
    P(f"v_cvt_f32_u32 v{T+8}, v{T+8}")
    P(f"v_lshrrev_b32 v{T+9}, 5, v0")
    P(f"v_cvt_f32_u32 v{T+9}, v{T+9}")
    P(f"v_mul_f32 v{T+10}, {hexf(1/32)}, v{T+8}")
    P(f"v_mul_f32 v{T+11}, v{T+10}, v{T+9}")
    P(f"v_mul_f32 v{T+11}, {hexf(8.0)}, v{T+11}")
    for q in range(2):
        for jj in range(4):
            for e in range(2):
                k = 16 * q + 2 * jj + e
                if k == 0: P(f"v_mov_b32 v{T+e}, v{T+11}")
                else: P(f"v_fmamk_f32 v{T+e}, v{T+10}, {hexf(float(k))}, v{T+11}")
            P(f"v_cos_f32 v{T+2}, v{T}"); P(f"v_cos_f32 v{T+3}, v{T+1}")
            P(f"v_sin_f32 v{T+4}, v{T}"); P(f"v_sin_f32 v{T+5}, v{T+1}")
            P(f"v_cvt_pk_bf16_f32 v{B1+4*q+jj}, v{T+2}, v{T+3}")
            P(f"v_cvt_pk_bf16_f32 v{B1+8+4*q+jj}, -v{T+4}, -v{T+5}")
    P(f"v_bfe_u32 v{T}, v0, 2, 2")
    P(f"v_lshrrev_b32 v{T+1}, 5, v0")
    P(f"v_lshl_add_u32 v{T}, v{T+1}, 3, v{T}")
    P(f"v_lshlrev_b32 v{T}, 6, v{T}")
    P(f"v_bfe_u32 v{T+1}, v0, 4, 1")
    P(f"v_lshl_add_u32 v{T}, v{T+1}, 5, v{T}")
    P(f"v_and_b32 v{T+1}, 3, v0")
    P(f"v_lshl_add_u32 v{T}, v{T+1}, 3, v{T}")
    P(f"s_add_u32 s{st+3}, s{F.S_LW}, {LROW}")
    P(f"v_add_u32 v{RA}, s{st+3}, v{T}")
    P(f"v_mov_b32 v{T+13}, 0x3f803f80")
    P(f"v_mul_f32 v{T+10}, {hexf(1/1024)}, v{T+8}")
    P(f"v_mul_f32 v{T+11}, v{T+10}, v{T+9}")
    P(f"v_mul_f32 v{T+11}, 4.0, v{T+11}")
    for i in range(16):
        t = T + (i % 2)
        if DROW[i] == 0: P(f"v_mov_b32 v{t}, v{T+11}")
        else: P(f"v_fmamk_f32 v{t}, v{T+10}, {hexf(float(DROW[i]))}, v{T+11}")
        P(f"v_cos_f32 v{TW+i}, v{t}"); P(f"v_sin_f32 v{TW+16+i}, v{t}")
    P(f"v_bfe_u32 v{T+10}, v0, 1, 4")
    P(f"v_cvt_f32_u32 v{T+10}, v{T+10}")
    P(f"v_mul_f32 v{T+10}, {hexf(1/32)}, v{T+10}")
    P(f"v_and_b32 v{T+12}, 1, v0")
    P(f"v_cvt_f32_u32 v{T+12}, v{T+12}")
    P(f"v_mul_f32 v{T+11}, v{T+10}, v{T+9}")
    P(f"v_mul_f32 v{T+11}, 4.0, v{T+11}")
    P(f"v_fmac_f32 v{T+11}, {hexf(0.25)}, v{T+12}")
    sincos_pack(P, A2, T + 11, T + 10, DROW, T)
    stage_addr3(P, A0, A1, st + 1, F.S_WAVE, LSTAGE, T)
    P(f"v_fma_f32 v{T+12}, v{T+12}, -2.0, 1.0")

def fwd_data(P, h, stamp=lambda P, k: None):
    st = ST; sg = st + 4; WS = F.WS
    P.wait_for(h)
    stamp(P, 11)
    for rw in range(2):
        for q in range(2):
            for hh in range(2):
                P(f"ds_read_b64_tr_b16 {v(X+8*rw+4*q+2*hh,2)}, v{RA} offset:{rw*2048+q*1024+hh*256}")
    for rw in range(2):
        for j in range(8):
            x = X + 8 * rw + j
            P(f"v_dot2_f32_bf16 v{T+3*rw}, v{x}, v{T+13}, {'0' if j == 0 else v(T+3*rw)}")
            P(f"v_dot2_f32_bf16 v{T+3*rw+1}, v{x}, v{x}, {'0' if j == 0 else v(T+3*rw+1)}")
    mf = []
    for rw in range(2):
        for q in range(2):
            for part in range(2):
                d = D + 32 * rw + 16 * part
                mf.append(f"v_mfma_f32_32x32x16_bf16 {v(d,16)}, {v(X+8*rw+4*q,4)}, {v(B1+8*part+4*q,4)}, {'0' if q==0 else v(d,16)}")
    R = Rec()
    for rw in range(2): R(f"v_mul_f32 v{T+3*rw+2}, v{T+3*rw}, v{T+12}")
    wave_reduce(R, [T + i for i in range(6)])
    for i in range(6): R(f"v_readlane_b32 s{sg+i}, v{T+i}, 63")
    L = R.L
    for i, m in enumerate(mf):
        P(m)
        for t_ in L[6 * i: 6 * i + 6]: P(t_)
    P(f"v_cmp_gt_f32 vcc, 0, v{T+12}")
    P(f"v_mov_b32 v{T}, s{sg}"); P(f"v_mov_b32 v{T+1}, s{sg+3}")
    P(f"v_mov_b32 v{T+2}, s{sg+1}"); P(f"v_mov_b32 v{T+3}, s{sg+4}")
    P(f"v_cndmask_b32 v{T}, v{T}, v{T+1}, vcc")
    P(f"v_cndmask_b32 v{T+2}, v{T+2}, v{T+3}, vcc")
    P(f"v_cmp_eq_f32 vcc, 0, v{T+8}")
    P(f"v_mov_b32 v{T+4}, {hexf(-1/32)}")
    P(f"v_mul_f32 v{T}, {hexf(-1/1024)}, v{T}")
    P(f"v_mul_f32 v{T+2}, {hexf(1/1024)}, v{T+2}")
    P(f"v_cndmask_b32 v{T+4}, 0, v{T+4}, vcc")
    P(f"v_fma_f32 v{T+2}, -v{T}, v{T}, v{T+2}")
    P(f"v_mul_f32 v{T+6}, s{sg+3}, v{T+4}")
    P(f"v_max_f32 v{T+2}, 0, v{T+2}")
    P(f"v_mul_f32 v{T+4}, s{sg}, v{T+4}")
    P(f"v_add_f32 v{T+2}, {hexf(1e-5)}, v{T+2}")
    P(f"v_rsq_f32 v{T+3}, v{T+2}")
    for rw in range(2):
        d = D + 32 * rw
        twiddle(P, d, d + 16, TW, TW + 16, T + 8, False, corr=T + 4 + 2 * rw)
        for i in range(16): P(f"v_cvt_pk_bf16_f32 v{PK+16*rw+i}, v{d+i}, v{d+16+i}")
    S = B1
    R = Rec()
    R(f"v_readlane_b32 s{sg+6}, v{T+3}, 0")
    R(f"v_readlane_b32 s{sg+7}, v{T+3}, 1")
    R(f"v_mul_f32 v{S+6}, v{T+2}, v{T+3}")
    R(f"v_cvt_pk_bf16_f32 v{S+1}, v{T}, v{T}")
    R(f"v_cvt_pk_bf16_f32 v{S}, v{S+6}, v{S+6}")
    R(f"v_and_b32 v{S+3}, 0xffff0000, v{S+1}")
    R(f"v_and_b32 v{S+2}, 0xffff0000, v{S}")
    R(f"v_sub_f32 v{S+3}, v{T}, v{S+3}")
    R(f"v_sub_f32 v{S+4}, v{S+6}, v{S+2}")
    R(f"v_mul_f32 v{S+5}, {hexf(GELU_C0)}, v{T+3}")
    R(f"v_cvt_pk_bf16_f32 v{S}, v{S+2}, v{S+4}")
    R(f"v_cvt_pk_bf16_f32 v{S+2}, v{S+3}, v{S+3}")
    R(f"v_mov_b32 v{S+3}, 0")
    R(f"v_mul_f32 v{S+4}, v{T+3}, v{T+3}")
    R(f"v_mov_b32 v{S+7}, 0")
    R(f"v_mul_f32 v{S+4}, v{S+4}, v{S+5}")
    R(f"v_lshlrev_b32 v{S+8}, 15, v0")
    R(f"v_mul_f32 v{S+4}, {hexf(0.044715)}, v{S+4}")
    R(f"s_lshl_b32 s{st+1}, s{st+2}, 5")
    R(f"s_add_u32 s{st+1}, s{st+1}, {F.W_STATS}")
    R(f"v_mov_b32 v{T}, s{sg+6}"); R(f"v_mov_b32 v{T+2}, s{sg+7}")
    R(f"s_add_u32 s{st+3}, s{F.S_LW}, {LSTAGE}")
    R(f"v_add_u32 v{T+8}, s{st+3}, v{F.V_L16}")
    R(f"v_lshrrev_b32 v{T+9}, 5, v0")
    R(f"v_and_b32 v{T+10}, 31, v0")
    R(f"v_lshlrev_b32 v{T+10}, 4, v{T+10}")
    R(f"v_lshl_add_u32 v{T+9}, v{T+9}, 17, v{T+10}")
    R(f"s_lshl_b32 s{st+3}, s{F.S_WAVE}, 20")
    R(f"s_lshl_b32 s{st}, s2, 9")
    R(f"s_add_u32 s{st+3}, s{st+3}, s{st}")
    R(f"s_add_u32 s{st+3}, s{st+3}, {F.W_XBUF}")
    L = R.L
    k = 0
    for q in range(4):
        for rw in range(2):
            d = D + 16 * rw
            P(f"v_mfma_f32_32x32x16_bf16 {v(d,16)}, {v(A2+4*q,4)}, {v(PK+16*rw+4*q,4)}, {'0' if q==0 else v(d,16)}")
            for t_ in L[k:k + 5]: P(t_)
            k += 5
    assert k >= len(L)
    hs = []
    P.lock = True
    P(f"s_mov_b64 exec, 3")
    hs.append(P(f"buffer_store_dwordx4 {v(S,4)}, v{S+8}, {WS}, s{st+1} offen sc1"))
    hs.append(P(f"buffer_store_dwordx4 {v(S+4,4)}, v{S+8}, {WS}, s{st+1} offen offset:16 sc1"))
    P(f"s_mov_b64 exec, -1")
    P.lock = False
    for rw in range(2):
        P(f"v_writelane_b32 v{D+16*rw}, s{sg+3*rw+2}, 0")
        P(f"v_writelane_b32 v{D+16*rw+1}, 0, 0")
    for j0 in range(0, 8, 2):
        for j in (j0, j0 + 1): P(f"v_pk_mul_f32 {v(D+16+2*j,2)}, {v(D+16+2*j,2)}, {v(T+2,2)} op_sel_hi:[1,0]")
        for j in (j0, j0 + 1): P(f"v_pk_fma_f32 {v(D+32+2*j,2)}, {v(D+2*j,2)}, {v(T,2)}, {v(D+16+2*j,2)} op_sel_hi:[1,0,1] neg_lo:[0,0,1] neg_hi:[0,0,1]")
        for j in (j0, j0 + 1): P(f"v_pk_fma_f32 {v(D+2*j,2)}, {v(D+2*j,2)}, {v(T,2)}, {v(D+16+2*j,2)} op_sel_hi:[1,0,1]")
        for j in (j0, j0 + 1): P(f"v_cvt_pk_bf16_f32 v{PK+8+j}, v{D+32+2*j}, v{D+33+2*j}")
        for j in (j0, j0 + 1): P(f"v_cvt_pk_bf16_f32 v{PK+j}, v{D+2*j}, v{D+2*j+1}")
        for j in (j0, j0 + 1):
            ad = A1 if j == 0 else A0
            P(f"ds_write2st64_b32 v{ad}, v{PK+j}, v{PK+8+j} offset0:{k2off(j)//256} offset1:{k2off(j)//256+2}")
    P(f"s_and_b32 s{st}, s2, 7"); P(f"s_lshl_b32 s{st}, s{st}, 5"); P(f"s_lshr_b32 s{st+1}, s2, 3"); P(f"s_add_u32 s{st}, s{st}, s{st+1}")
    P(f"s_lshl_b32 s{st}, s{st}, 2"); P(f"s_lshl_b32 s{st+1}, s{F.S_WAVE}, 10"); P(f"s_add_u32 s{st}, s{st}, s{st+1}")
    P(f"s_add_u32 s{F.S_RS}, s{st}, {F.W_F1}")
    P.wait(lg=0); P.barrier()
    for u in range(4): P(f"ds_read_b128 {v(D+4*u,4)}, v{T+8} offset:{u*1024}")
    for u in range(4):
        hs.append(P(f"buffer_store_dwordx4 {v(D+4*u,4)}, v{T+9}, {WS}, s{st+3} offen sc1"))
        if u < 3: P(f"s_add_u32 s{st+3}, s{st+3}, 0x40000")
    stamp(P, 12)
    return hs
```

```python
from common import *

class Gap:
    def __init__(s, n): s.n = n
class At:
    def __init__(s, slot): s.slot = slot
class Bar:
    def __init__(s): s.seen = None
class Fn:
    def __init__(s, f, c=4): s.f = f; s.c = c
class Mark:
    def __init__(s, name): s.name = name
class After:
    def __init__(s, name, d=0): s.name = name; s.d = d

class Rec:
    def __init__(s): s.L = []
    def __call__(s, text, tag=None): s.L.append(text if tag is None else (text, tag))
    def add(s, x): s.L.append(x)

class Stream:
    def __init__(s, P):
        s.P = P; s.slots = []; s.reads = []; s.first = {}; s.ev = {}; s.queues = []; s.tags = {}; s.marks = {}
        s.dma_at_bar = {}
        s.dma_h = {}; s.pre_bar = {}; s.post_bar = {}; s.dq = []; s.nbar = 0
    def add(s, m): s.slots.append(m); return len(s.slots) - 1
    def read(s, st, cons, text): s.reads.append((st, cons, text))
    def event(s, slot, item): s.ev.setdefault(slot, []).append(item)
    def emit(s, it):
        P = s.P
        if isinstance(it, str): return P(it)
        if isinstance(it, tuple):
            h = P(it[0]); s.tags.setdefault(it[1], []).append(h); return h
        if isinstance(it, Fn): return it.f(P)
        if isinstance(it, Mark): s.marks[it.name] = P.cur; return None
        raise ValueError(it)
    def wait_tag(s, tag): return Fn(lambda P: P.wait_for(s.tags[tag]))
    def push_dma(s, L, st):
        s.dma_h.setdefault(st, [])
        s.dq += [(t, st) for t in L]
    def fill(s, q, i, used, bud, tail=False):
        P = s.P
        while q["L"]:
            if not tail and q["hold"] > i: break
            it = q["L"][0]
            if isinstance(it, Gap):
                q["L"].pop(0); q["hold"] = i + it.n; continue
            if isinstance(it, At):
                if not tail and i < it.slot: break
                q["L"].pop(0); continue
            if isinstance(it, After):
                if it.name not in s.marks or (not tail and i < s.marks[it.name] + it.d): break
                q["L"].pop(0); continue
            if isinstance(it, Bar):
                if it.seen is None: it.seen = s.nbar
                if s.nbar == it.seen:
                    if not tail: break
                    P.wait(lg=0); P.barrier(); s.nbar += 1
                q["L"].pop(0); continue
            if isinstance(it, Mark):
                q["L"].pop(0); s.emit(it); continue
            if isinstance(it, Fn): c = it.c
            else:
                text = it if isinstance(it, str) else it[0]
                c = cost(text)
                if not tail:
                    n, lg, vm = P.peek(text)
                    if n > 2: break
                    if lg is not None and i - lg < 4: break
                    if vm is not None and i - vm < q["vmlat"]: break
                    c += 4 * min(n, 1)
                    if text.startswith("v_mfma"):
                        if used + 8 < bud and len(q["L"]) > 10**9: break
                        c = 0
            if not tail and used + c > bud: break
            n1 = len(P.out)
            q["L"].pop(0); s.emit(it)
            if not isinstance(it, Fn) and (it if isinstance(it, str) else it[0]).startswith("v_mfma"):
                used = 0
            else:
                used += sum(cost(x.text) for x in P.out[n1:] if x.kind != "dir")
        return used
    def queue(s, L, vmlat=30):
        q = {"L": list(L), "hold": -1, "vmlat": vmlat}; s.queues.append(q); return q
    def run(s, budget=24, LA=9, BOFF=7, WB=3, dma_gap=2, first_stage=0, stamps=None):
        P = s.P; n = len(s.slots)
        stages = sorted(s.first)
        bar_at = {st: s.first[st] - BOFF for st in stages if st > first_stage}
        s.bar_at = bar_at
        per_slot = {}
        for (st, cons, text) in s.reads:
            pos = cons - LA
            if st is not None:
                if st + 1 in bar_at: pos = min(pos, bar_at[st + 1] - 3)
                if st in bar_at: pos = max(pos, bar_at[st])
            per_slot.setdefault(pos, []).append((cons, text))
        barpos = {p: st for st, p in bar_at.items()}
        rd_h = []
        P.cur = -1
        P.wait_for(s.dma_h[first_stage]); P.barrier(); s.nbar += 1
        if stamps and -1 in stamps: stamps[-1](P)
        for pos in sorted(k for k in per_slot if k < 0):
            for c, t in per_slot[pos]: rd_h.append((c, P(t)))
        last_dma = -10
        for i in range(n):
            P.cur = i
            if stamps and i in stamps: stamps[i](P)
            if i % WB == 0:
                hs = [h for (c, h) in rd_h if i <= c < i + WB]
                if hs: P.wait_for(hs)
            n0 = len(P.out)
            P(s.slots[i])
            n0 = len(P.out)
            bud = budget if "32x32" in s.slots[i] else 8
            if i in barpos:
                st = barpos[i]
                assert not any(x[1] <= st for x in s.dq), f"dma of stage {st} not issued at its barrier"
                for it in s.pre_bar.get(st, []): s.emit(it)
                P.wait(lg=0)
                P.wait_for(s.dma_h[st])
                P.barrier(); s.nbar += 1
                for L, stg in s.dma_at_bar.get(st, []): s.push_dma(L, stg)
                for it in s.post_bar.get(st, []): s.emit(it)
            for c, t in per_slot.get(i, []): rd_h.append((c, P(t)))
            rd_h = rd_h[-40:]
            for it in s.ev.get(i, []): s.emit(it)
            if s.dq and i - last_dma >= dma_gap:
                while s.dq:
                    t, st = s.dq.pop(0)
                    h = P(t)
                    if h.kind == "vmem":
                        s.dma_h[st].append(h); last_dma = i
                        break
            used = sum(cost(x.text) for x in P.out[n0:] if x.kind != "dir")
            for q in s.queues: used = s.fill(q, i, used, bud)
        P.cur = n
        if stamps and n in stamps: stamps[n](P)
        left = [len(q["L"]) for q in s.queues]
        for q in s.queues: s.fill(q, n, 0, 0, tail=True)
        assert not any(q["L"] for q in s.queues)
        return left

_npoll = [0]
def poll_check(P, regs, sneed, reload, sm=66, tmp=None):
    k = _npoll[0]; _npoll[0] += 1
    def chk():
        L = []
        for r_ in regs: L.append(f"v_subrev_u32 v{r_}, s{sneed}, v{r_}")
        rr = list(regs)
        while len(rr) > 1:
            if len(rr) >= 3:
                L.append(f"v_max3_u32 v{rr[0]}, v{rr[0]}, v{rr[1]}, v{rr[2]}"); rr = [rr[0]] + rr[3:]
            else:
                L.append(f"v_max_u32 v{rr[0]}, v{rr[0]}, v{rr[1]}"); rr = [rr[0]]
        L.append(f"v_cmp_lt_u32 s[{sm}:{sm+1}], 15, v{regs[0]}")
        L.append(f"s_cmp_lg_u64 s[{sm}:{sm+1}], 0")
        L.append(f"s_cbranch_scc1 L_spin{k}")
        return L
    for t in chk(): P(t)
    P.label(f"L_back{k}")
    P.tail += [f"L_spin{k}:", "s_cmp_eq_u32 s3, 0", f"s_cbranch_scc1 L_back{k}", "s_sub_u32 s3, s3, 1", "s_sleep 1"] + reload + ["s_waitcnt vmcnt(0)"] + chk() + [f"s_branch L_back{k}"]
```

```python
import sys
from common import *
import rows2, rows3, col2
import fused as F
from stream import *
NAME = "parallel_sum__spectral_gfnet__dense_activation_gelu__prompt"
HEAD = open(f"cdna_kernels/{NAME}.s.ref").read().split("; Override launch")[0]
STAMPS = len(sys.argv) > 2 and sys.argv[2] == "1"
OPT = eval(sys.argv[3]) if len(sys.argv) > 3 else {}
O = dict(gapG=20, gapW=60, preG=3, tF4=88, stY=35, pollF1=True, pollF5=True, m_pre=1, f1gap=150)
O.update(OPT)
if "rot" in O: F.ROTC = O["rot"]
WS = F.WS

def tok(P):
    P(f"s_and_b32 s{F.S_TOK}, s{F.S_TOK}, -16"); P(f"s_add_u32 s{F.S_TOK}, s{F.S_TOK}, 0x{F.TOKINC:x}")

def rows_inv(S, g0, bar):
    R = Rec()
    s1 = F.S_RS + 1
    R.add(After("gelu7"))
    R(f"v_and_b32 v2, 7, v0"); R(f"v_lshlrev_b32 v2, 2, v2")
    R(f"s_lshr_b32 s{s1}, s2, 6"); R(f"s_lshl_b32 s{s1}, s{s1}, 2"); R(f"s_add_u32 s{s1}, s{s1}, s{F.S_WAVE}")
    R(f"s_lshl_b32 s{s1}, s{s1}, 7"); R(f"s_add_u32 s{s1}, s{s1}, {F.W_F4}")
    rl = [f"buffer_load_dword v3, v2, {WS}, s{s1} offen sc1"]
    C = Rec(); rows2.inv_consts(C, rows3.stage_addr3)
    k = len(C.L) // 2
    R.L += C.L[:k]
    R.add(At(g0 + O["tF4"] - 22)); R(rl[0])
    R.L += C.L[k:]
    R.add(At(g0 + O["tF4"])); R.add(Fn(lambda P: poll_check(P, [3], F.S_TOK, rl), 16))
    R.add(Mark("f4c"))
    R.add(Fn(lambda P: S.push_dma(rows2.inv_dma(), O["stY"]), 0))
    R.add(At(bar[O["stY"]] + 1))
    rows2.inv_data(R)
    R.add(Mark("rows_inv_done"))
    R.add(Gap(24)); R.add(S.wait_tag("yst")); R.add(F.flag_store(F.S_TOK, s1)); R.add(Mark("f5"))
    S.queue(R.L, vmlat=0)

def build(name):
    P = Prog()
    S = Stamps(STAMPS, 0); S.begin(P)
    P(f"s_load_dwordx2 s[{F.S_X}:{F.S_X+1}], s[0:1], 0")
    P(f"s_load_dwordx2 s[{F.S_WS}:{F.S_WS+1}], s[0:1], 80")
    P("s_load_dwordx8 s[8:15], s[0:1], 32")
    P(f"s_load_dwordx2 s[{F.S_OUT}:{F.S_OUT+1}], s[0:1], 64")
    P("s_load_dwordx4 s[4:7], s[0:1], 8")
    P("s_cmp_ge_u32 s2, 256")
    P(f"s_cbranch_scc1 L_end")
    P("s_mov_b32 s3, 0x20000")
    F.ids(P)
    P(f"s_mov_b32 s{F.S_X+2}, 0x400000"); P(f"s_mov_b32 s{F.S_X+3}, 0x20000")
    P(f"s_mov_b32 s{F.S_WS+2}, 0x10000000"); P(f"s_mov_b32 s{F.S_WS+3}, 0x20000")
    P(f"s_mov_b32 s{F.S_OUT+2}, 0x400000"); P(f"s_mov_b32 s{F.S_OUT+3}, 0x20000")
    L = rows3.fwd_issue(P)
    P.wait(lg=0)
    hr = [P(t) for t in L]
    P(f"s_load_dword s{F.S_TOK}, s[{F.S_WS}:{F.S_WS+1}], {F.W_EPOCH}")
    P("s_cmp_ge_u32 s2, 224")
    P(f"s_cbranch_scc1 L_fft")
    vm0, lg0 = list(P.vm), list(P.lg)
    F.g1_setup_dma(P)
    srd(P, F.S_W, 8, 1024*3584*2)
    srd(P, F.S_B, 10, 3584*2)
    St = Stream(P)
    I = rows3.Inter(P); I.gap = O["gapG"]
    for st in range(4): St.dma_h[st] = []
    for st in range(O["preG"]): I.push(F.dma1(st), St.dma_h[st])
    I.one()
    rows3.fwd_consts(I)
    F.g1_setup_rest(I)
    tok(I)
    hs = rows3.fwd_data(I, hr, stamp=S)
    I.flush()
    for st in range(O["preG"], 4): St.push_dma(F.dma1(st), st)
    o = dict(O); o.update(f1=hs, rows_inv=rows_inv)
    F.build_stream(P, St, o, stamp=S if STAMPS else None)
    P(f"s_or_b32 s{F.S_T0}, s2, s{F.S_WAVE}")
    P(f"s_cmp_lg_u32 s{F.S_T0}, 0")
    P(f"s_cbranch_scc1 L_noep")
    P(f"s_mov_b32 s{F.S_T0}, {F.W_EPOCH}")
    F.flag_store(F.S_TOK, F.S_T0).f(P)
    P.label(f"L_noep")
    S.end(P, F.S_WAVE, ws=F.S_WS)
    P.label(f"L_end")
    P("s_endpgm")
    P.label(f"L_fft")
    P.vm, P.lg = list(vm0), list(lg0)
    P.cur = -1000
    C = col2
    srd(P, F.S_W, 4, 2048*513*2)
    srd(P, F.S_B, 6, 2048*513*2)
    C.col_ids(P); C.w_setup(P)
    I = rows3.Inter(P); I.gap = O["gapW"]
    hw = [[] for _ in range(4)]
    for sl in range(4): I.push(C.w_dma(sl), hw[sl])
    I.one()
    rows3.fwd_consts(I)
    tok(I)
    CR = Rec(); C.consts(CR, parts=True)
    parts = CR.parts
    for t in sum(parts[:1 + O["m_pre"]], []): I(t)
    hs = rows3.fwd_data(I, hr)
    S(P, 0)
    rest = sum(parts[1 + O["m_pre"]:], [])
    for k, t in enumerate(rest):
        if k == O["f1gap"]:
            P.wait_for(hs); F.flag_store(F.S_TOK, F.S_RS).f(P)
        I(t)
    I.flush()
    S(P, 1)
    C.w_read_setup(P)
    C.x_setup(P)
    F.hbase(P); F.g2_setup(P); F.g2_setup_b(P)
    P(f"v_lshrrev_b32 v1, 3, v0"); P(f"v_lshlrev_b32 v1, 7, v1"); P(f"v_and_b32 v{F.V_FL}, 7, v0"); P(f"v_lshl_add_u32 v1, v{F.V_FL}, 2, v1")
    P(f"s_lshr_b32 s{F.S_E1}, s{C.S_SF}, 3"); P(f"s_lshl_b32 s{F.S_E1}, s{F.S_E1}, 10"); P(f"s_lshl_b32 s{F.S_T0}, s{F.S_WAVE}, 5")
    P(f"s_add_u32 s{F.S_E1}, s{F.S_E1}, s{F.S_T0}"); P(f"s_add_u32 s{F.S_E1}, s{F.S_E1}, {F.W_F1}")
    rl = [f"buffer_load_dword v{F.V_FL}, v1, {WS}, s{F.S_E1} offen sc1"]
    P(rl[0])
    P.wait_for(hw[3]); P.barrier()
    S(P, 2)
    for sl in range(4):
        for t in C.w_reads(sl): P(t)
    poll_check(P, [F.V_FL], F.S_TOK, rl)
    P.wait(lg=0); P.barrier()
    S(P, 3)
    hx = [[h for h in (P(t) for t in C.x_dma(q)) if h.kind == "vmem"] for q in range(4)]
    C.flush_setup(P)
    P(f"s_lshl_b32 s{F.S_E0}, s{F.S_WAVE}, 2"); P(f"s_lshr_b32 s{F.S_T0}, s{C.S_SF}, 3"); P(f"s_add_u32 s{F.S_E0}, s{F.S_E0}, s{F.S_T0}")
    P(f"s_lshl_b32 s{F.S_E0}, s{F.S_E0}, 7"); P(f"s_and_b32 s{F.S_T0}, s{C.S_SF}, 7"); P(f"s_lshl_b32 s{F.S_T0}, s{F.S_T0}, 2")
    P(f"s_add_u32 s{F.S_E0}, s{F.S_E0}, s{F.S_T0}"); P(f"s_add_u32 s{F.S_E0}, s{F.S_E0}, {F.W_F4}")
    P.wait_for(hx[0]); P.barrier()
    extra = {(2, 3): F.dma2_w(24), (3, 3): F.dma2_w(25)}
    C.main(P, hx, extra, stamp=lambda P, k: S(P, 11) if k == 5 else None)
    S(P, 12)
    for t in C.flush_reads(3): P(t)
    hy = [P(t) for t in C.flush_stores(3)]
    for t in F.dma2_w(26): P(t)
    F.f3_addr(P)
    for t in F.f3_reload(): P(t)
    P(f"s_mov_b32 s{F.S_HB}, {F.W_DUMMY}"); P(f"s_mov_b32 s{F.S_FX}, {F.W_DUMMY}")
    P(f"v_mov_b32 v{F.V_SO}, 0")
    P(f"v_mov_b32 v{C.T}, s{F.S_TOK}")
    P.wait_for(hy)
    P("s_mov_b64 exec, 1")
    P(f"buffer_store_dword v{C.T}, off, {WS}, s{F.S_E0} sc1")
    P("s_mov_b64 exec, -1")
    F.f3_check(1).f(P)
    for st in range(24, 27):
        for t in F.dma2_h(st): P(t)
    P.wait(vm=0, force=True)
    P("s_branch L_g2_entry")
    return P

out = [HEAD.rstrip("\n")]
out.append(f"; @launch grid=(256,1,1) block=(256,1,1) lds=163840")
out.append('.amdgcn_target "amdgcn-amd-amdhsa--gfx950"\n.text')
n = NAME + "_kernel"
P = build(n); print(P.count(), "instrs", P.nnop, "nops")
out.append(kernel_header(n) + P.text())
out.append('.section .rodata,"a"')
out.append(kernel_desc(n, 512, 256))
open(sys.argv[1], "w").write("\n".join(out) + "\n")
```

```python
from asmlib import *
import math

WS_STATS = 0x0000000
WS_XBUF  = 0x0100000
WS_YBUF  = 0x0500000
WS_YROW  = 0x0900000
WS_PART  = 0x0D00000
WS_H     = 0x1800000

K_X, K_WR, K_WI, K_W1, K_B1, K_W2, K_B2, K_OUT, K_DBG, K_WS = 0, 8, 16, 32, 40, 48, 56, 64, 72, 80

GELU_C0 = -2.0 * math.sqrt(2.0 / math.pi) * math.log2(math.e)
GELU_C1 = GELU_C0 * 0.044715

def srd(P, d, base, nbytes, off=0):
    if off:
        P(f"s_add_u32 s{d}, s{base}, 0x{off:x}")
        P(f"s_addc_u32 s{d+1}, s{base+1}, 0")
    else:
        P(f"s_mov_b32 s{d}, s{base}")
        P(f"s_mov_b32 s{d+1}, s{base+1}")
    P(f"s_mov_b32 s{d+2}, 0x{nbytes:x}")
    P(f"s_mov_b32 s{d+3}, 0x20000")

COST = {"trans": 8}
def cost(text):
    op = text.split()[0]
    if op in TRANS: return 8
    return 4

WS_STAMP = 0x3000000
class Stamps:
    def __init__(self, on, kidx): self.on = on; self.kidx = kidx
    def begin(self, P):
        if not self.on: return
        P("s_memrealtime s[98:99]")
        P("s_memtime s[68:69]")
        for k in range(70, 98): P(f"s_mov_b32 s{k}, 0")
    def __call__(self, P, k):
        if self.on: P(f"s_memtime s[{70+2*k}:{71+2*k}]")
    def end(self, P, swave, ws=6):
        if not self.on: return
        P.wait(vm=0, lg=0, force=True)
        P("s_memrealtime s[100:101]")
        P("s_memtime s[96:97]")
        P.wait(lg=0, force=True)
        srd(P, 60, ws, 1 << 20, WS_STAMP + self.kidx * 0x40000)
        P("v_mov_b32 v4, s98"); P("v_mov_b32 v5, s100")
        for k in range(14):
            P(f"s_sub_u32 s{70+2*k}, s{70+2*k}, s68")
            P(f"v_mov_b32 v{6+k}, s{70+2*k}")
        P("s_lshl_b32 s3, s2, 8"); P(f"s_lshl_b32 s4, s{swave}, 6"); P("s_add_u32 s3, s3, s4")
        P("v_mov_b32 v0, 0")
        P("s_mov_b64 exec, 1")
        for u in range(4):
            P(f"buffer_store_dwordx4 v[{4+4*u}:{7+4*u}], v0, s[60:63], s3 offen offset:{16*u}")

class Probe:
    def __init__(self, k, wg, base=8000): self.k = k; self.wg = wg; self.base = base; self.on = True
    def begin(self, P):
        P("s_memrealtime s[98:99]")
        P("s_memrealtime s[70:71]")
    def __call__(self, P, k):
        if k == self.k: P("s_memrealtime s[70:71]")
    def end(self, P, swave, ws=6):
        P.wait(vm=0, lg=0, force=True)
        if self.k == 13:
            P("s_memrealtime s[70:71]"); P.wait(lg=0, force=True)
        P(f"s_cmp_lg_u32 s2, {self.wg}")
        P("s_cbranch_scc1 L_end")
        P("s_sub_u32 s70, s70, s98")
        P("s_lshl_b32 s70, s70, 2")
        P(f"s_add_u32 s70, s70, {self.base}")
        P("s_min_u32 s70, s70, 60000")
        P.label("L_probe")
        P("s_sleep 2")
        P("s_memrealtime s[72:73]"); P.wait(lg=0, force=True)
        P("s_sub_u32 s72, s72, s98")
        P("s_cmp_lt_u32 s72, s70")
        P("s_cbranch_scc1 L_probe")
```

```python
import sys
from common import *
import rows2, rows3, col2
import fused as F
from stream import *
NAME = "parallel_sum__spectral_gfnet__dense_activation_gelu__prompt"
HEAD = open(f"cdna_kernels/{NAME}.s.ref").read().split("; Override launch")[0]
STAMPS = len(sys.argv) > 2 and sys.argv[2] == "1"
OPT = eval(sys.argv[3]) if len(sys.argv) > 3 else {}
O = dict(gapG=20, gapW=60, preG=3, tF4=88, stY=35, pollF1=True, pollF5=True, m_pre=1, f1gap=150)
O.update(OPT)
if "rot" in O: F.ROTC = O["rot"]
WS = F.WS

def tok(P):
    P(f"s_and_b32 s{F.S_TOK}, s{F.S_TOK}, -16"); P(f"s_add_u32 s{F.S_TOK}, s{F.S_TOK}, 0x{F.TOKINC:x}")

def rows_inv(S, g0, bar):
    R = Rec()
    s1 = F.S_RS + 1
    R.add(After("gelu7"))
    R(f"v_and_b32 v2, 7, v0"); R(f"v_lshlrev_b32 v2, 2, v2")
    R(f"s_lshr_b32 s{s1}, s2, 6"); R(f"s_lshl_b32 s{s1}, s{s1}, 2"); R(f"s_add_u32 s{s1}, s{s1}, s{F.S_WAVE}")
    R(f"s_lshl_b32 s{s1}, s{s1}, 7"); R(f"s_add_u32 s{s1}, s{s1}, {F.W_F4}")
    rl = [f"buffer_load_dword v3, v2, {WS}, s{s1} offen sc1"]
    C = Rec(); rows2.inv_consts(C, rows3.stage_addr3)
    k = len(C.L) // 2
    R.L += C.L[:k]
    R.add(At(g0 + O["tF4"] - 22)); R(rl[0])
    R.L += C.L[k:]
    R.add(At(g0 + O["tF4"])); R.add(Fn(lambda P: poll_check(P, [3], F.S_TOK, rl), 16))
    R.add(Mark("f4c"))
    R.add(Fn(lambda P: S.push_dma(rows2.inv_dma(), O["stY"]), 0))
    R.add(At(bar[O["stY"]] + 1))
    rows2.inv_data(R)
    R.add(Mark("rows_inv_done"))
    R.add(Gap(24)); R.add(S.wait_tag("yst")); R.add(F.flag_store(F.S_TOK, s1)); R.add(Mark("f5"))
    S.queue(R.L, vmlat=0)

def build(name):
    P = Prog()
    S = Probe(*O["probe"]) if "probe" in O else Stamps(STAMPS, 0)
    S.begin(P)
    P(f"s_load_dwordx2 s[{F.S_X}:{F.S_X+1}], s[0:1], 0")
    P(f"s_load_dwordx2 s[{F.S_WS}:{F.S_WS+1}], s[0:1], 80")
    P("s_load_dwordx8 s[8:15], s[0:1], 32")
    P(f"s_load_dwordx2 s[{F.S_OUT}:{F.S_OUT+1}], s[0:1], 64")
    P("s_load_dwordx4 s[4:7], s[0:1], 8")
    P("s_cmp_ge_u32 s2, 256")
    P(f"s_cbranch_scc1 L_end")
    if O.get("scr"):
        P("s_and_b32 s3, s2, 7"); P("s_lshl_b32 s3, s3, 5"); P("s_lshr_b32 s2, s2, 3"); P("s_or_b32 s2, s2, s3")
    P("s_mov_b32 s3, 0x20000")
    F.ids(P)
    P(f"s_mov_b32 s{F.S_X+2}, 0x400000"); P(f"s_mov_b32 s{F.S_X+3}, 0x20000")
    P(f"s_mov_b32 s{F.S_WS+2}, 0x10000000"); P(f"s_mov_b32 s{F.S_WS+3}, 0x20000")
    P(f"s_mov_b32 s{F.S_OUT+2}, 0x400000"); P(f"s_mov_b32 s{F.S_OUT+3}, 0x20000")
    L = rows3.fwd_issue(P)
    P.wait(lg=0)
    hr = [P(t) for t in L]
    P(f"s_load_dword s{F.S_TOK}, s[{F.S_WS}:{F.S_WS+1}], {F.W_EPOCH}")
    P("s_cmp_ge_u32 s2, 224")
    P(f"s_cbranch_scc1 L_fft")
    vm0, lg0 = list(P.vm), list(P.lg)
    F.g1_setup_dma(P)
    srd(P, F.S_W, 8, 1024*3584*2)
    srd(P, F.S_B, 10, 3584*2)
    St = Stream(P)
    I = rows3.Inter(P); I.gap = O["gapG"]
    for st in range(4): St.dma_h[st] = []
    for st in range(O["preG"]): I.push(F.dma1(st), St.dma_h[st])
    I.one()
    rows3.fwd_consts(I)
    F.g1_setup_rest(I)
    tok(I)
    hs = rows3.fwd_data(I, hr, stamp=S)
    I.flush()
    for st in range(O["preG"], 4): St.push_dma(F.dma1(st), st)
    o = dict(O); o.update(f1=hs, rows_inv=rows_inv)
    F.build_stream(P, St, o, stamp=S if S.on else None)
    P(f"s_or_b32 s{F.S_T0}, s2, s{F.S_WAVE}")
    P(f"s_cmp_lg_u32 s{F.S_T0}, 0")
    P(f"s_cbranch_scc1 L_noep")
    P(f"s_mov_b32 s{F.S_T0}, {F.W_EPOCH}")
    F.flag_store(F.S_TOK, F.S_T0).f(P)
    P.label(f"L_noep")
    S.end(P, F.S_WAVE, ws=F.S_WS)
    P.label(f"L_end")
    P("s_endpgm")
    P.label(f"L_fft")
    P.vm, P.lg = list(vm0), list(lg0)
    P.cur = -1000
    C = col2
    srd(P, F.S_W, 4, 2048*513*2)
    srd(P, F.S_B, 6, 2048*513*2)
    C.col_ids(P); C.w_setup(P)
    I = rows3.Inter(P); I.gap = O["gapW"]
    hw = [[] for _ in range(4)]
    for sl in range(4): I.push(C.w_dma(sl), hw[sl])
    I.one()
    rows3.fwd_consts(I)
    tok(I)
    CR = Rec(); C.consts(CR, parts=True)
    parts = CR.parts
    for t in sum(parts[:1 + O["m_pre"]], []): I(t)
    hs = rows3.fwd_data(I, hr)
    S(P, 0)
    rest = sum(parts[1 + O["m_pre"]:], [])
    for k, t in enumerate(rest):
        if k == O["f1gap"]:
            P.wait_for(hs); F.flag_store(F.S_TOK, F.S_RS).f(P)
        I(t)
    I.flush()
    S(P, 1)
    C.w_read_setup(P)
    C.x_setup(P)
    F.hbase(P); F.g2_setup(P); F.g2_setup_b(P)
    P(f"v_lshrrev_b32 v1, 3, v0"); P(f"v_lshlrev_b32 v1, 7, v1"); P(f"v_and_b32 v{F.V_FL}, 7, v0"); P(f"v_lshl_add_u32 v1, v{F.V_FL}, 2, v1")
    P(f"s_lshr_b32 s{F.S_E1}, s{C.S_SF}, 3"); P(f"s_lshl_b32 s{F.S_E1}, s{F.S_E1}, 10"); P(f"s_lshl_b32 s{F.S_T0}, s{F.S_WAVE}, 5")
    P(f"s_add_u32 s{F.S_E1}, s{F.S_E1}, s{F.S_T0}"); P(f"s_add_u32 s{F.S_E1}, s{F.S_E1}, {F.W_F1}")
    rl = [f"buffer_load_dword v{F.V_FL}, v1, {WS}, s{F.S_E1} offen sc1"]
    P(rl[0])
    P.wait_for(hw[3]); P.barrier()
    S(P, 2)
    for sl in range(4):
        for t in C.w_reads(sl): P(t)
    poll_check(P, [F.V_FL], F.S_TOK, rl)
    P.wait(lg=0); P.barrier()
    S(P, 3)
    hx = [[h for h in (P(t) for t in C.x_dma(q)) if h.kind == "vmem"] for q in range(4)]
    C.flush_setup(P)
    P(f"s_lshl_b32 s{F.S_E0}, s{F.S_WAVE}, 2"); P(f"s_lshr_b32 s{F.S_T0}, s{C.S_SF}, 3"); P(f"s_add_u32 s{F.S_E0}, s{F.S_E0}, s{F.S_T0}")
    P(f"s_lshl_b32 s{F.S_E0}, s{F.S_E0}, 7"); P(f"s_and_b32 s{F.S_T0}, s{C.S_SF}, 7"); P(f"s_lshl_b32 s{F.S_T0}, s{F.S_T0}, 2")
    P(f"s_add_u32 s{F.S_E0}, s{F.S_E0}, s{F.S_T0}"); P(f"s_add_u32 s{F.S_E0}, s{F.S_E0}, {F.W_F4}")
    P.wait_for(hx[0]); P.barrier()
    extra = {(2, 3): F.dma2_w(24), (3, 3): F.dma2_w(25)}
    C.main(P, hx, extra, stamp=lambda P, k: S(P, 11) if k == 5 else None)
    S(P, 12)
    for t in C.flush_reads(3): P(t)
    hy = [P(t) for t in C.flush_stores(3)]
    for t in F.dma2_w(26): P(t)
    F.f3_addr(P)
    for t in F.f3_reload(): P(t)
    P(f"s_mov_b32 s{F.S_HB}, {F.W_DUMMY}"); P(f"s_mov_b32 s{F.S_FX}, {F.W_DUMMY}")
    P(f"v_mov_b32 v{F.V_SO}, 0")
    P(f"v_mov_b32 v{C.T}, s{F.S_TOK}")
    P.wait_for(hy)
    P("s_mov_b64 exec, 1")
    P(f"buffer_store_dword v{C.T}, off, {WS}, s{F.S_E0} sc1")
    P("s_mov_b64 exec, -1")
    F.f3_check(1).f(P)
    for st in range(24, 27):
        for t in F.dma2_h(st): P(t)
    P.wait(vm=0, force=True)
    P("s_branch L_g2_entry")
    return P

out = [HEAD.rstrip("\n")]
out.append(f"; @launch grid=(256,1,1) block=(256,1,1) lds=163840")
out.append('.amdgcn_target "amdgcn-amd-amdhsa--gfx950"\n.text')
n = NAME + "_kernel"
P = build(n); print(P.count(), "instrs", P.nnop, "nops")
out.append(kernel_header(n) + P.text())
out.append('.section .rodata,"a"')
out.append(kernel_desc(n, 512, 256))
open(sys.argv[1], "w").write("\n".join(out) + "\n")
```

```python
from common import *
from stream import *
from rows import DROW
from rows2 import angles, twiddle1
import fused as F

T = 24
V_XA, V_FLD, V_G, V_WD = 2, 10, 12, 13
BLK = [[64, 80, 96], [112, 128, 144]]
TW, WQ, FS = 160, 192, 224
AM, AW = 0, 128
S_SF, S_C0, S_C1, S_XG = F.S_XB, F.S_RT, F.S_ROT, F.S_HB

def col_ids(P):
    P(f"s_lshl_b32 s{S_SF}, s{F.S_KQ}, 3")
    P(f"s_bfe_u32 s{S_C0}, s2, 0x20003")
    P(f"s_lshl_b32 s{S_C0}, s{S_C0}, 1")
    P(f"s_add_u32 s{S_SF}, s{S_SF}, s{S_C0}")
    P(f"s_and_b32 s{S_C0}, s2, 1")
    P(f"s_add_u32 s{S_SF}, s{S_SF}, s{S_C0}")

def w_setup(P):
    P(f"v_lshrrev_b32 v{V_WD}, 2, v0")
    P(f"v_mul_u32_u24 v{V_WD}, 2052, v{V_WD}")
    P(f"v_lshrrev_b32 v{V_WD+1}, 4, v0")
    P(f"v_xor_b32 v{V_WD+1}, v{V_WD+1}, v0")
    P(f"v_and_b32 v{V_WD+1}, 3, v{V_WD+1}")
    P(f"v_lshl_add_u32 v{V_WD}, v{V_WD+1}, 4, v{V_WD}")
    for j in range(1, 4): P(f"v_add_u32 v{V_WD+j}, {j*(16*2052-1024)}, v{V_WD}")
    P(f"s_and_b32 s{S_C0}, s{S_SF}, 1")
    P(f"s_mul_i32 s{S_C0}, s{S_C0}, 1028")
    P(f"s_lshr_b32 s{S_C1}, s{S_SF}, 1")
    P(f"s_lshl_b32 s{S_C1}, s{S_C1}, 6")
    P(f"s_add_u32 s{S_C0}, s{S_C0}, s{S_C1}")
    P(f"s_mul_i32 s{S_C1}, s{F.S_WAVE}, {128*2052}")
    P(f"s_add_u32 s{S_C0}, s{S_C0}, s{S_C1}")

def nyq_dma(P):
    P(f"s_cmp_lg_u32 s{S_SF}, 0")
    P(f"s_cbranch_scc1 L_nonyq")
    P(f"v_mul_u32_u24 v{T}, 2052, v0")
    P(f"s_mul_i32 s{F.S_T0}, s{F.S_WAVE}, {256*2052}")
    P(f"s_lshl_b32 s{F.S_T1}, s{F.S_WAVE}, 10")
    for arr in range(2):
        S = (F.S_W, F.S_B)[arr]
        P(f"s_add_u32 m0, s{F.S_T1}, {F.L_AUX+arr*4096}")
        for u in range(4):
            P(f"s_add_u32 s{F.S_E0}, s{F.S_T0}, {1024+u*(64*2052-256)}")
            P.raw(f"buffer_load_dword v{T}, s[{S}:{S+3}], s{F.S_E0} offen offset:{u*256} lds")
    P.label("L_nonyq")

def nyq_patch(P):
    P(f"s_or_b32 s{F.S_T0}, s{S_SF}, s{F.S_WAVE}")
    P(f"s_cmp_lg_u32 s{F.S_T0}, 0")
    P(f"s_cbranch_scc1 L_nopatch")
    t = T
    P(f"v_and_b32 v{t}, 31, v0"); P(f"v_lshrrev_b32 v{t+1}, 5, v0"); P(f"v_lshl_add_u32 v{t}, v{t+1}, 7, v{t}")
    P(f"v_lshlrev_b32 v{t}, 2, v{t}"); P(f"v_add_u32 v{t}, {F.L_AUX}, v{t}")
    P(f"s_mov_b32 s{F.S_T0}, 0xffff")
    for arr in range(2):
        for i in range(16): P.raw(f"ds_read_b32 v{FS+16*arr+i}, v{t} offset:{arr*4096+DROW[i]*128}")
    P.raw("s_waitcnt lgkmcnt(0)")
    for i in range(32): P(f"v_bfi_b32 v{WQ+i}, s{F.S_T0}, v{FS+i}, v{WQ+i}")
    P.label("L_nopatch")

def w_dma(slot):
    arr, hf = slot // 2, slot % 2
    S = (F.S_W, F.S_B)[arr]
    L = []
    for u in range(2):
        L.append(f"s_add_u32 m0, s{F.S_LW2}, {slot*32768+u*4096}")
        L.append(f"s_add_u32 s{S_C1}, s{S_C0}, {(hf*512+u*64)*2052}")
        for j in range(4): L.append(f"buffer_load_dwordx4 v{V_WD+j}, s[{S}:{S+3}], s{S_C1} offen offset:{j*1024} lds")
    return L

def w_read_setup(P):
    P(f"v_bfe_u32 v{T}, v0, 2, 2")
    P(f"v_xor_b32 v{T}, s{F.S_WAVE}, v{T}")
    P(f"v_lshlrev_b32 v{T}, 4, v{T}")
    P(f"v_and_b32 v{T+1}, 31, v0")
    P(f"v_lshl_add_u32 v{T}, v{T+1}, 6, v{T}")
    P(f"v_lshrrev_b32 v{T+1}, 5, v0")
    P(f"v_lshl_add_u32 v{V_FLD}, v{T+1}, 13, v{T}")
    P(f"v_add_u32 v{V_FLD+1}, 0x10000, v{V_FLD}")
def w_reads(slot):
    arr, hf = slot // 2, slot % 2
    return [f"ds_read_b128 {a(AW+64*arr+4*i,4)}, v{V_FLD+arr} offset:{DROW[i]*2048}" for i in range(8 * hf, 8 * hf + 8)]

def consts(P, parts=False):
    P.parts = []
    def cut():
        P.parts.append(P.L); P.L = []
    P(f"s_and_b32 s{F.S_T0}, s{S_SF}, 1")
    P(f"v_cvt_f32_u32 v{T+13}, s{F.S_T0}")
    P(f"v_and_b32 v{T+8}, 31, v0")
    P(f"v_cvt_f32_u32 v{T+8}, v{T+8}")
    P(f"v_lshrrev_b32 v{T+9}, 5, v0")
    P(f"v_cvt_f32_u32 v{T+9}, v{T+9}")
    P(f"v_mul_f32 v{T+9}, 4.0, v{T+9}")
    cut()
    def two(base, fwd):
        def e(n, c, s, t):
            P(f"v_cvt_pk_bf16_f32 v{t}, v{c}, {'' if fwd else '-'}v{s}"); P(f"v_cvt_pk_bf16_f32 v{c}, {'-' if fwd else ''}v{s}, v{c}")
            P(f"v_accvgpr_write_b32 a{base+n}, v{t}"); P(f"v_accvgpr_write_b32 a{base+16+n}, v{c}")
        angles(P, DROW, T + 11, T + 10, T, e)
        cut()
    P(f"v_fma_f32 v{T+10}, v{T+8}, 2.0, v{T+13}")
    P(f"v_mul_f32 v{T+10}, {hexf(1/64)}, v{T+10}")
    P(f"v_mul_f32 v{T+11}, v{T+10}, v{T+9}")
    two(AM, True)
    P(f"v_mul_f32 v{T+10}, {hexf(1/2048)}, v{T+13}")
    P(f"v_fmac_f32 v{T+10}, {hexf(1/32)}, v{T+8}")
    P(f"v_mul_f32 v{T+11}, v{T+10}, v{T+9}")
    two(AM + 32, True)
    P(f"v_mul_f32 v{T+10}, {hexf(1/32)}, v{T+8}")
    P(f"v_mul_f32 v{T+12}, v{T+10}, v{T+13}")
    P(f"v_mul_f32 v{T+11}, v{T+10}, v{T+9}")
    P(f"v_fmac_f32 v{T+11}, {hexf(1/64)}, v{T+12}")
    two(AM + 64, False)
    P(f"v_mul_f32 v{T+11}, v{T+10}, v{T+9}")
    P(f"v_fmac_f32 v{T+11}, 0.5, v{T+12}")
    two(AM + 96, False)
    P(f"v_mul_f32 v{T+10}, {hexf(1/1024)}, v{T+8}")
    P(f"v_mul_f32 v{T+11}, v{T+10}, v{T+9}")
    for i in range(16):
        t = T + (i % 2)
        if DROW[i] == 0: P(f"v_mov_b32 v{t}, v{T+11}")
        else: P(f"v_fmamk_f32 v{t}, v{T+10}, {hexf(float(DROW[i]))}, v{T+11}")
        P(f"v_cos_f32 v{TW+i}, v{t}"); P(f"v_sin_f32 v{TW+16+i}, v{t}")
    cut()

def x_setup(P):
    P(f"s_and_b32 s{S_C1}, s{F.S_WAVE}, 1")
    P(f"v_lshrrev_b32 v{T}, 3, v0")
    P(f"v_xor_b32 v{T}, s{S_C1}, v{T}")
    P(f"v_and_b32 v{T+1}, 7, v0")
    P(f"v_lshlrev_b32 v{T+1}, 4, v{T+1}")
    P(f"v_lshl_add_u32 v{V_G}, v{T}, 9, v{T+1}")
    for j in range(1, 4): P(f"v_add_u32 v{V_G+j}, {j*3072}, v{V_G}")
    P(f"s_lshl_b32 s{S_XG}, s{S_SF}, 17")
    P(f"s_lshl_b32 s{S_C1}, s{F.S_WAVE}, 15")
    P(f"s_add_u32 s{S_XG}, s{S_XG}, s{S_C1}")
    P(f"s_lshl_b32 s{S_C1}, s{F.S_WAVE}, 1")
    P(f"v_and_b32 v{T}, 7, v0")
    P(f"v_xor_b32 v{T}, s{S_C1}, v{T}")
    P(f"v_lshlrev_b32 v{T}, 4, v{T}")
    P(f"v_lshrrev_b32 v{T+1}, 2, v0")
    P(f"v_xor_b32 v{T+1}, v{T+1}, v0")
    P(f"v_bfe_u32 v{T+1}, v{T+1}, 3, 1")
    P(f"v_lshl_add_u32 v{T}, v{T+1}, 7, v{T}")
    P(f"v_and_b32 v{T+1}, 31, v0")
    P(f"v_lshl_add_u32 v{V_XA}, v{T+1}, 10, v{T}")
    P(f"v_xor_b32 v{V_XA+1}, 16, v{V_XA}")
    P(f"v_add_u32 v{V_XA+2}, 0x10000, v{V_XA}")
    P(f"v_add_u32 v{V_XA+3}, 0x10000, v{V_XA+1}")

def flush_setup(P):
    P(f"v_add_u32 v{V_FLD}, s{F.S_LW2}, v{F.V_L16}")
    P(f"v_add_u32 v{V_FLD+1}, 0x10000, v{V_FLD}")

def x_dma(q):
    L = []
    for u in range(2):
        L.append(f"s_add_u32 m0, s{F.S_LW2}, {q*32768+u*4096}")
        L.append(f"s_add_u32 s{S_C1}, s{S_XG}, {F.W_XBUF+q*128+u*16384}")
        for j in range(4): L.append(f"buffer_load_dwordx4 v{V_G+j}, {F.WS}, s{S_C1} offen offset:{j*1024} sc1 lds")
    return L

def flush_reads(q):
    return [f"ds_read_b128 {v(FS+4*j,4)}, v{V_FLD+q//2} offset:{(q%2)*32768+j*1024}" for j in range(8)]
def flush_stores(q):
    L = []
    for u in range(2):
        L.append(f"s_add_u32 s{S_C1}, s{S_XG}, {F.W_YBUF+q*128+u*16384}")
        for j in range(4): L.append(f"buffer_store_dwordx4 {v(FS+16*u+4*j,4)}, v{V_G+j}, {F.WS}, s{S_C1} offen offset:{j*1024} sc1")
    return L

def mm(re, im, data, mat, data_is_a):
    L = []
    for q in range(4):
        for part, d in enumerate((re, im)):
            x, m = v(data + 4 * q, 4), a(mat + 16 * part + 4 * q, 4)
            A, B = (x, m) if data_is_a else (m, x)
            L.append(f"v_mfma_f32_32x32x16_bf16 {v(d,16)}, {A}, {B}, {'0' if q == 0 else v(d,16)}")
    return L
def pack(re, im): return [f"v_cvt_pk_bf16_f32 v{im+i}, v{re+i}, v{im+i}" for i in range(16)]
def v_tw(re, im, conj):
    R = Rec(); twiddle1(R, re, im, TW, TW + 16, T, conj); return R.L + pack(re, im)
def v_filter(re, im, e):
    L = []
    for j0 in range(0, 16, 2):
        t = T + 2 + 4 * ((j0 // 2) % 2)
        for k in range(2):
            for arr in range(2):
                src = WQ + 16 * arr + j0 + k
                L.append(f"v_lshlrev_b32 v{t+2*arr+k}, 16, v{src}" if e == 0 else f"v_and_b32 v{t+2*arr+k}, 0xffff0000, v{src}")
        for k in range(2): L.append(f"v_mul_f32 v{T+k}, v{re+j0+k}, v{t+2+k}")
        for k in range(2): L.append(f"v_mul_f32 v{re+j0+k}, v{re+j0+k}, v{t+k}")
        for k in range(2): L.append(f"v_fma_f32 v{re+j0+k}, -v{im+j0+k}, v{t+2+k}, v{re+j0+k}")
        for k in range(2): L.append(f"v_fma_f32 v{im+j0+k}, v{im+j0+k}, v{t+k}, v{T+k}")
    return L + pack(re, im)
def w_fill(q): return [f"v_accvgpr_read_b32 v{WQ+16*arr+i}, a{AW+64*arr+4*i+q}" for arr in range(2) for i in range(16)]
def xreads(q, e, dst): return [f"ds_read_b128 {v(dst+4*k,4)}, v{V_XA+e+2*(q//2)} offset:{(q%2)*32768+k*256}" for k in range(4)]
def xwrites(q, e, src): return [f"ds_write_b128 v{V_XA+e+2*(q//2)}, {v(src+4*k,4)} offset:{(q%2)*32768+k*256}" for k in range(4)]

def fcost(t):
    if isinstance(t, Fn): return t.c
    if t.startswith("ds_write") or t.startswith("buffer_store"): return 16
    if t.startswith("buffer_load"): return 8
    return 4

def cmul(re, im, c, sn, conj, n_plain):
    pk = []; pl = []
    npk = 8 - n_plain
    for g in range(0, npk, 2):
        js = [2 * p for p in range(g, min(g + 2, npk))]
        tt = {j: v(T + 2 * k, 2) for k, j in enumerate(js)}
        for j in js: pk.append(f"v_pk_mul_f32 {tt[j]}, {v(re+j,2)}, {v(sn+j,2)}")
        for j in js: pk.append(f"v_pk_mul_f32 {v(re+j,2)}, {v(re+j,2)}, {v(c+j,2)}")
        for j in js: pk.append(f"v_pk_fma_f32 {v(re+j,2)}, {v(im+j,2)}, {v(sn+j,2)}, {v(re+j,2)}" + (" neg_lo:[1,0,0] neg_hi:[1,0,0]" if conj else ""))
        for j in js: pk.append(f"v_pk_fma_f32 {v(im+j,2)}, {v(im+j,2)}, {v(c+j,2)}, {tt[j]}" + ("" if conj else " neg_lo:[0,0,1] neg_hi:[0,0,1]"))
    for j0 in range(2 * npk, 16, 2):
        for e in range(2): pl.append(f"v_mul_f32 v{T+e}, v{re+j0+e}, v{sn+j0+e}")
        for e in range(2): pl.append(f"v_mul_f32 v{re+j0+e}, v{re+j0+e}, v{c+j0+e}")
        for e in range(2): pl.append(f"v_fma_f32 v{re+j0+e}, {'-' if conj else ''}v{im+j0+e}, v{sn+j0+e}, v{re+j0+e}")
        for e in range(2): pl.append(f"v_fma_f32 v{im+j0+e}, v{im+j0+e}, v{c+j0+e}, {'' if conj else '-'}v{T+e}")
    return pk, pl

def merge(A, B):
    G = []; cur = []
    for t in B:
        cur.append(t)
        if not (isinstance(t, str) and t.startswith("s_")): G.append(cur); cur = []
    if cur: G.append(cur)
    out = []; k = 0
    for i, t in enumerate(A):
        while k < len(G) and k * len(A) <= i * len(G): out += G[k]; k += 1
        out.append(t)
    for g in G[k:]: out += g
    return out

def step2(P, M, mul, misc, head=(), BUD=24):
    fixed = sum(fcost(t) for t in misc)
    if mul:
        re, im = mul[0], mul[1]
        n = max(0, min(8, (8 * BUD - fixed - 64 + 8) // 32))
        pk, pl = cmul(*mul, n)
        V = merge(pl + pack(re, im), misc)
    else: pk, V = [], list(misc)
    for t in head: t.f(P) if isinstance(t, Fn) else P(t)
    for t in pk: P(t)
    for k, m in enumerate(M):
        P(m); used = 0
        while V and (used + fcost(V[0]) <= BUD or used == 0 or k == len(M) - 1):
            it = V.pop(0); used += fcost(it)
            it.f(P) if isinstance(it, Fn) else P(it)

def pre_main(P):
    for t in w_fill(0): P(t)
    nyq_patch(P)
    for i in range(32): P(f"v_lshlrev_b32 v{FS+i}, 16, v{WQ+i}")

def main(P, hx, extra, stamp=lambda P, k: None, BUD=24):
    blk = [list(BLK[0]), list(BLK[1])]
    U0 = FS
    def bar(q):
        def f(P):
            P.wait(lg=0)
            if q < 4: P.wait_for(hx[q])
            P.barrier()
        return Fn(f, 12)
    un0 = [f"v_lshlrev_b32 v{U0+i}, 16, v{WQ+i}" for i in range(32)]
    un1 = [f"v_and_b32 v{WQ+i}, 0xffff0000, v{WQ+i}" for i in range(32)]
    for e in range(2):
        for t in xreads(0, e, blk[e][2]): P(t)
    carry = []
    for q in range(4):
        (pa, qa, ra), (pb, qb, rb) = blk
        ex = lambda s: list(extra.get((q, s), []))
        ua, ub = (un0[:16], un0[16:]) if q else ([], [])
        st2 = lambda M, mul, misc: step2(P, M, mul, misc, BUD=BUD)
        stamp(P, (q, 0))
        st2(mm(pa, qa, ra, AM, True), None, merge(carry, ex(0)))
        stamp(P, (q, 1))
        st2(mm(pb, qb, rb, AM, True), (pa, qa, TW, TW + 16, False), merge(ua, ex(1)))
        stamp(P, (q, 2))
        st2(mm(pa, ra, qa, AM + 32, False), (pb, qb, TW, TW + 16, False), merge(ub, ex(2)))
        stamp(P, (q, 3))
        st2(mm(pb, rb, qb, AM + 32, False), (pa, ra, U0, U0 + 16, True), un1 + ex(3))
        stamp(P, (q, 4))
        fl = flush_stores(q - 1) if q > 0 else []
        st2(mm(pa, qa, ra, AM + 64, True), (pb, rb, WQ, WQ + 16, True), [bar(q + 1)] + (flush_reads(q - 1) if q > 0 else []) + ex(4))
        stamp(P, (q, 5))
        st2(mm(pb, qb, rb, AM + 64, True), (pa, qa, TW, TW + 16, True), fl[:5] + ex(5))
        stamp(P, (q, 6))
        st2(mm(pa, ra, qa, AM + 96, False), (pb, qb, TW, TW + 16, True), fl[5:] + ex(6))
        nx = q < 3
        wf = w_fill(q + 1) if nx else []
        stamp(P, (q, 7))
        po = lambda re, im, e: sum(([*pack(re, im)[4*k:4*k+4], xwrites(q, e, im)[k]] for k in range(4)), [])
        st2(mm(pb, rb, qb, AM + 96, False), None, wf[:8] + (xreads(q + 1, 0, qa) if nx else []) + wf[8:12] + po(pa, ra, 0) + ex(7))
        carry = wf[12:20] + (xreads(q + 1, 1, qb) if nx else []) + wf[20:24] + po(pb, rb, 1)
        if nx: extra[(q + 1, 1)] = wf[24:] + list(extra.get((q + 1, 1), []))
        blk = [[pa, ra, qa], [pb, rb, qb]]
    for t in carry: P(t)
    P.wait(lg=0); P.barrier()
```

```python
from asmlib import *
import math

WS_STATS = 0x0000000
WS_XBUF  = 0x0100000
WS_YBUF  = 0x0500000
WS_YROW  = 0x0900000
WS_PART  = 0x0D00000
WS_H     = 0x1800000

K_X, K_WR, K_WI, K_W1, K_B1, K_W2, K_B2, K_OUT, K_DBG, K_WS = 0, 8, 16, 32, 40, 48, 56, 64, 72, 80

GELU_C0 = -2.0 * math.sqrt(2.0 / math.pi) * math.log2(math.e)
GELU_C1 = GELU_C0 * 0.044715

def srd(P, d, base, nbytes, off=0):
    if off:
        P(f"s_add_u32 s{d}, s{base}, 0x{off:x}")
        P(f"s_addc_u32 s{d+1}, s{base+1}, 0")
    else:
        P(f"s_mov_b32 s{d}, s{base}")
        P(f"s_mov_b32 s{d+1}, s{base+1}")
    P(f"s_mov_b32 s{d+2}, 0x{nbytes:x}")
    P(f"s_mov_b32 s{d+3}, 0x20000")

COST = {"trans": 8}
def cost(text):
    op = text.split()[0]
    if op in TRANS: return 8
    return 4

WS_STAMP = 0x3000000
V_STP = 58
class Stamps:
    def __init__(self, on, kidx): self.on = on; self.kidx = kidx; self.pend = None; self.n = 0; self.rt = False
    def begin(self, P):
        if not self.on: return
        P("s_memrealtime s[96:97]")
        P("s_memtime s[98:99]")
        P(f"v_mov_b32 v{V_STP}, 0")
    def save(self, P):
        if self.pend:
            P(f"v_writelane_b32 v{V_STP}, s{self.pend[0]}, {self.pend[1]}"); self.pend = None
    def __call__(self, P, k):
        if not self.on: return
        self.save(P)
        self.n += 1
        r_ = 92 + 2 * (self.n % 2)
        P(f"{'s_memrealtime' if self.rt else 's_memtime'} s[{r_}:{r_+1}]"); self.pend = (r_, k + 4)
    def end(self, P, swave, ws=6):
        if not self.on: return
        self.save(P)
        P.wait(vm=0, lg=0, force=True)
        P("s_memrealtime s[100:101]")
        P("s_memtime s[92:93]")
        P.wait(lg=0, force=True)
        for k, r_ in enumerate((96, 100, 98, 92)): P(f"v_writelane_b32 v{V_STP}, s{r_}, {k}")
        srd(P, 60, ws, 1 << 20, WS_STAMP)
        P("s_lshl_b32 s3, s2, 10"); P(f"s_lshl_b32 s4, s{swave}, 8"); P("s_add_u32 s3, s3, s4")
        P("v_lshlrev_b32 v0, 2, v0")
        P(f"buffer_store_dword v{V_STP}, v0, s[60:63], s3 offen")

class Probe:
    def __init__(self, k, wg, base=8000): self.k = k; self.wg = wg; self.base = base; self.on = True
    def begin(self, P):
        P("s_memrealtime s[98:99]")
        P("s_memrealtime s[92:93]")
    def save(self, P): pass
    def __call__(self, P, k):
        if k == self.k: P("s_memrealtime s[92:93]")
    def end(self, P, swave, ws=6):
        P.wait(vm=0, lg=0, force=True)
        if self.k == 13:
            P("s_memrealtime s[92:93]"); P.wait(lg=0, force=True)
        P(f"s_cmp_lg_u32 s2, {self.wg}")
        P("s_cbranch_scc1 L_end")
        P("s_sub_u32 s92, s92, s98")
        P("s_lshl_b32 s92, s92, 2")
        P(f"s_add_u32 s92, s92, {self.base}")
        P("s_min_u32 s92, s92, 60000")
        P.label("L_probe")
        P("s_sleep 2")
        P("s_memrealtime s[94:95]"); P.wait(lg=0, force=True)
        P("s_sub_u32 s94, s94, s98")
        P("s_cmp_lt_u32 s94, s92")
        P("s_cbranch_scc1 L_probe")
```

```python
from common import *
from stream import *

W_EPOCH = 0x0
W_F1 = 0x1000
W_F3 = 0xC000
W_F4 = 0x3000
W_F5 = 0x4000
W_F6 = 0x8000
W_STATS = 0x10000
W_DUMMY = 0x40000
W_XBUF, W_YBUF, W_YROW, W_PART, W_H = 0x100000, 0x500000, 0x900000, 0xD00000, 0x1900000
HT = 57344
TOKINC = 0x9E3779B0
L_AUX = 0x20000
L_ST = L_AUX
L_Y = L_AUX + 0x4000

S_X, S_W, S_WS, S_B, S_OUT = 16, 20, 24, 28, 32
(S_WAVE, S_MT, S_KQ, S_J, S_RT, S_XB, S_XB1, S_WB, S_HB, S_T0, S_T1, S_LW, S_LW2, S_XO, S_WO, S_ROT, S_KB, S_TOK,
 S_H1, S_HA, S_HB0, S_HB1, S_HB2, S_F3, S_NEED, S_E0, S_E1, S_FX) = range(36, 64)
S_RS = 64
S_X2 = 4
S_K0 = 8
S_SP, S_SFL, S_OO, S_YO, S_B2, S_F5P, S_F4P, S_YD, S_YR, S_F5F = 68, 72, 76, 77, 78, 79, 80, 81, 82, 83
P_X, P_WS, P_W1, P_W2, P_OUT = 4, 6, 8, 12, 102

V_DX, V_DW, V_RX, V_RW, V_L16, V_SO, V_FL = 2, 6, 10, 18, 20, 22, 23
V_ONE, V_CS, V_AUG, V_T, V_PK, V_B, V_CT, V_BA, V_ACC = 24, 28, 32, 36, 48, 64, 112, 120, 128
V_TOK, V_L0, V_H1 = 56, 57, 63
NB = 12
def blk(t): return V_ACC + 16 * t
def acc1(t): return blk(t)
def acc2(t): return blk([0, 1, 2, 3, 7, 0, 1, 2][t])
WS = f"s[{S_WS}:{S_WS+3}]"

def ids(P):
    P("v_lshrrev_b32 v1, 6, v0")
    P(f"v_readfirstlane_b32 s{S_WAVE}, v1")
    P("v_and_b32 v0, 63, v0")
    P(f"s_and_b32 s{S_T0}, s2, 1")
    P(f"s_lshl_b32 s{S_T0}, s{S_T0}, 2")
    P(f"s_bfe_u32 s{S_T1}, s2, 0x20003")
    P(f"s_add_u32 s{S_MT}, s{S_T0}, s{S_T1}")
    P(f"s_bfe_u32 s{S_KQ}, s2, 0x20001")
    P(f"s_lshr_b32 s{S_J}, s2, 5")
    P(f"s_lshl_b32 s{S_LW}, s{S_WAVE}, 12")
    P(f"s_lshl_b32 s{S_LW2}, s{S_WAVE}, 13")
    P(f"v_lshlrev_b32 v{V_L16}, 4, v0")

def w_dma_voff(P, stride, T, base=None):
    P(f"v_lshrrev_b32 v{T}, 4, v0")
    P(f"v_lshlrev_b32 v{T+1}, 2, v{T}")
    P(f"v_and_b32 v{T+2}, 15, v0")
    P(f"v_xor_b32 v{T+1}, v{T+1}, v{T+2}")
    P(f"v_mul_u32_u24 v{T}, {stride}, v{T}")
    P(f"v_lshl_add_u32 v{V_DW}, v{T+1}, 4, v{T}")
    if base is not None: P(f"v_add_u32 v{V_DW}, s{base}, v{V_DW}")
    for j in range(1, 4):
        P(f"v_add_u32 v{V_DW+j}, {j*(4*stride-1024)}, v{V_DW}")

FAKE = 0
HPOL = " sc1"
ROTC = [f"s_add_u32 s{S_ROT}, s{S_MT}, s{S_J}", f"s_and_b32 s{S_ROT}, s{S_ROT}, 1", f"s_lshl_b32 s{S_ROT}, s{S_ROT}, 3"]
def g1_setup_dma(P):
    T = V_T
    P(f"s_lshl_b32 s{S_RT}, s{S_KQ}, 1")
    P(f"s_add_u32 s{S_RT}, s{S_RT}, 2")
    P("v_lshrrev_b32 v1, 3, v0")
    P(f"v_lshrrev_b32 v{T}, 4, v0")
    P(f"v_and_b32 v{T+1}, 7, v0")
    P(f"v_xor_b32 v{T+1}, v{T+1}, v{T}")
    P(f"v_lshlrev_b32 v1, 11, v1")
    P(f"v_lshl_add_u32 v{V_DX}, v{T+1}, 4, v1")
    P(f"v_xor_b32 v{V_DX+1}, 64, v{V_DX}")
    P(f"v_add_u32 v{V_DX+1}, {8*2048-1024}, v{V_DX+1}")
    P(f"v_add_u32 v{V_DX+2}, {16*2048-2048}, v{V_DX}")
    P(f"v_add_u32 v{V_DX+3}, {16*2048-2048}, v{V_DX+1}")
    w_dma_voff(P, 7168, T)
    P(f"s_lshl_b32 s{S_XB}, s{S_MT}, 19")
    P(f"s_add_u32 s{S_T0}, s{S_WAVE}, s{S_RT}")
    P(f"s_and_b32 s{S_T0}, s{S_T0}, 7")
    P(f"s_lshl_b32 s{S_T0}, s{S_T0}, 16")
    P(f"s_add_u32 s{S_XB1}, s{S_XB}, s{S_T0}")
    for t_ in ROTC: P(t_)
    P(f"s_mul_i32 s{S_T0}, s{S_KQ}, 7")
    P(f"s_add_u32 s{S_T0}, s{S_T0}, s{S_J}")
    P(f"s_lshl_b32 s{S_HB}, s{S_T0}, 8")
    P(f"s_mul_i32 s{S_T0}, s{S_WAVE}, {16*7168}")
    P(f"s_add_u32 s{S_WB}, s{S_T0}, s{S_HB}")
    if FAKE & 1:
        P(f"s_mov_b32 s{S_WB}, s{S_T0}"); P(f"s_mov_b32 s{S_XB}, 0"); P(f"s_lshl_b32 s{S_XB1}, s{S_WAVE}, 16"); P(f"s_mov_b32 s{S_RT}, 0")

def hbase(P):
    P(f"s_lshl_b32 s{S_T0}, s{S_MT}, 2")
    P(f"s_add_u32 s{S_T0}, s{S_T0}, s{S_KQ}")
    P(f"s_lshl_b32 s{S_F3}, s{S_T0}, 9")
    P(f"s_add_u32 s{S_F3}, s{S_F3}, {W_F3}")
    P(f"s_mul_i32 s{S_HA}, s{S_T0}, {8*HT}")
    P(f"s_add_u32 s{S_HA}, s{S_HA}, {W_H}")

def g1_setup_rest(P):
    T = V_T
    P(f"v_and_b32 v{T+1}, 31, v0")
    P(f"v_bfe_u32 v{T+2}, v0, 1, 3")
    P(f"v_lshrrev_b32 v{T+3}, 5, v0")
    P(f"v_xor_b32 v{T+2}, v{T+2}, v{T+3}")
    P(f"v_lshlrev_b32 v{T+2}, 4, v{T+2}")
    P(f"v_lshl_add_u32 v{V_RX}, v{T+1}, 7, v{T+2}")
    for q in range(1, 4): P(f"v_xor_b32 v{V_RX+q}, {32*q}, v{V_RX}")
    for q in range(4): P(f"v_add_u32 v{V_RX+4+q}, 0x10000, v{V_RX+q}")
    P(f"v_bfe_u32 v{T+4}, v0, 2, 2")
    P(f"v_lshl_add_u32 v{T+5}, v{T+3}, 3, v{T+4}")
    P(f"v_bfe_u32 v{T+6}, v0, 4, 1")
    P(f"v_bfe_u32 v{T+7}, v0, 1, 1")
    P(f"v_lshl_add_u32 v{T+8}, v{T+6}, 1, v{T+7}")
    P(f"v_xor_b32 v{T+4}, s{S_WAVE}, v{T+4}")
    P(f"v_lshl_add_u32 v{T+8}, v{T+4}, 2, v{T+8}")
    P(f"v_lshlrev_b32 v{T+8}, 4, v{T+8}")
    P(f"v_lshl_add_u32 v{T+5}, v{T+5}, 8, v{T+8}")
    P(f"v_and_b32 v{T+7}, 1, v0")
    P(f"v_lshl_add_u32 v{V_RW}, v{T+7}, 3, v{T+5}")
    P(f"v_add_u32 v{V_RW}, 0x4000, v{V_RW}")
    P(f"v_add_u32 v{V_RW+1}, 0x10000, v{V_RW}")
    P(f"v_lshlrev_b32 v{V_SO}, 5, v{T+1}")
    P(f"v_add_u32 v{V_SO}, {L_ST}, v{V_SO}")
    P(f"v_bfe_u32 v{T+7}, v0, 2, 1")
    P(f"v_cmp_eq_u32 vcc, v{T+6}, v{T+7}")
    P(f"v_mov_b32 v{T+8}, 0x3f803f80")
    for i in range(4): P(f"v_cndmask_b32 v{V_ONE+i}, 0, v{T+8}, vcc")
    P(f"v_lshlrev_b32 v{T+1}, 1, v{T+1}")
    P(f"s_lshl_b32 s{S_T1}, s{S_WAVE}, 6")
    P(f"s_add_u32 s{S_T0}, s{S_HB}, s{S_T1}")
    P(f"buffer_load_ushort v{V_AUG}, v{T+1}, s[{S_B}:{S_B+3}], s{S_T0} offen")

def g1_setup_scal(P):
    hbase(P)
    P(f"s_lshl_b32 s{S_T0}, s{S_J}, 2")
    P(f"s_add_u32 s{S_T0}, s{S_T0}, s{S_WAVE}")
    P(f"s_lshl_b32 s{S_T1}, s{S_T0}, 11")
    P(f"s_add_u32 s{S_HB}, s{S_HA}, s{S_T1}")
    P(f"s_lshl_b32 s{S_T0}, s{S_T0}, 2")
    P(f"s_add_u32 s{S_FX}, s{S_F3}, s{S_T0}")

def g1_setup_p2(P):
    P(f"s_lshl_b32 s{S_T0}, s{S_WAVE}, 1"); P(f"s_add_u32 s{S_T0}, s{S_T0}, s{S_ROT}"); P(f"s_and_b32 s{S_T0}, s{S_T0}, 15")
    P(f"s_lshl_b32 s{S_T0}, s{S_T0}, 7"); P(f"s_add_u32 s{S_T0}, s{S_T0}, s{S_XB}")
    for k in range(2):
        P(f"s_add_u32 s{S_T1}, s{S_RT}, {4+2*k}"); P(f"s_and_b32 s{S_T1}, s{S_T1}, 7"); P(f"s_lshl_b32 s{S_T1}, s{S_T1}, 16")
        P(f"s_add_u32 s{S_X2+2*k}, s{S_T0}, s{S_T1}"); P(f"s_xor_b32 s{S_X2+2*k+1}, s{S_X2+2*k}, 1024")

def flag_regs(P):
    P(f"v_mov_b32 v{V_TOK}, s{S_TOK}")
    P(f"v_min_u32 v{V_L0}, 1, v0"); P(f"v_lshlrev_b32 v{V_L0}, 30, v{V_L0}")

def epi_setup(P):
    T0, T1 = S_T0, S_T1
    for d in range(1, 5):
        P(f"s_add_u32 s{T0}, s{S_KQ}, {d}"); P(f"s_and_b32 s{T0}, s{T0}, 3"); P(f"s_lshl_b32 s{T0}, s{T0}, 1")
        P(f"s_andn2_b32 s{T1}, s2, 6"); P(f"s_or_b32 s{T0}, s{T0}, s{T1}")
        P(f"s_lshl2_add_u32 s{T0}, s{T0}, s{S_WAVE}")
        P(f"s_mul_i32 s{T1}, s{T0}, 12288"); P(f"s_add_u32 s{S_SP+d-1}, s{T1}, {W_PART + (0 if d == 4 else (d-1)*4096)}")
        P(f"s_lshl_b32 s{T1}, s{T0}, 4"); P(f"s_add_u32 s{S_SFL+d-1}, s{T1}, {W_F6}")
    P(f"s_lshl2_add_u32 s{T0}, s{S_MT}, s{S_KQ}"); P(f"s_lshl_b32 s{T0}, s{T0}, 17")
    P(f"s_lshl2_add_u32 s{T1}, s{S_J}, s{S_WAVE}"); P(f"s_lshl_b32 s{S_B2}, s{T1}, 6"); P(f"s_lshl_b32 s{T1}, s{T1}, 5")
    P(f"s_add_u32 s{S_OO}, s{T0}, s{S_B2}")
    P(f"s_add_u32 s{S_YO}, s{T0}, s{T1}"); P(f"s_add_u32 s{S_YO}, s{S_YO}, {W_YROW}")
    P(f"s_lshr_b32 s{T0}, s{T0}, 9"); P(f"s_and_b32 s{T0}, s{T0}, 0xf00"); P(f"s_add_u32 s{S_F5P}, s{T0}, {W_F5}")
    P(f"s_lshr_b32 s{T0}, s2, 6"); P(f"s_lshl2_add_u32 s{T0}, s{T0}, s{S_WAVE}"); P(f"s_lshl_b32 s{T0}, s{T0}, 7")
    P(f"s_add_u32 s{S_F4P}, s{T0}, {W_F4}")
    P(f"s_lshl_b32 s{T0}, s{S_WAVE}, 20"); P(f"s_lshl_b32 s{T1}, s2, 9"); P(f"s_add_u32 s{T0}, s{T0}, s{T1}")
    P(f"s_add_u32 s{S_YD}, s{T0}, {W_YBUF}")
    P(f"s_and_b32 s{T0}, s2, 7"); P(f"s_lshl2_add_u32 s{T0}, s{T0}, s{S_WAVE}"); P(f"s_lshl_b32 s{T0}, s{T0}, 5")
    P(f"s_lshr_b32 s{T1}, s2, 3"); P(f"s_add_u32 s{T0}, s{T0}, s{T1}")
    P(f"s_lshl_b32 s{T1}, s{T0}, 11"); P(f"s_add_u32 s{S_YR}, s{T1}, {W_YROW}")
    P(f"s_lshl_b32 s{T1}, s{T0}, 2"); P(f"s_add_u32 s{S_F5F}, s{T1}, {W_F5}")

def g2_setup(P):
    T = V_T + 8
    srd(P, S_W, P_W2, 3584 * 1024 * 2)
    srd(P, S_B, P_W2 + 2, 2048)
    P(f"s_mul_i32 s{S_WB}, s{S_KQ}, {896*2048}")
    P(f"s_lshl_b32 s{S_T0}, s{S_WAVE}, 15")
    P(f"s_add_u32 s{S_WB}, s{S_WB}, s{S_T0}")
    P(f"s_lshl_b32 s{S_T0}, s{S_J}, 8")
    P(f"s_add_u32 s{S_WB}, s{S_WB}, s{S_T0}")
    if FAKE & 2:
        P(f"s_lshl_b32 s{S_WB}, s{S_WAVE}, 15"); P(f"s_mov_b32 s{S_HA}, {W_XBUF}")
    w_dma_voff(P, 2048, T, S_WB)
    P(f"v_bfe_u32 v{T}, v0, 2, 2")
    P(f"v_lshrrev_b32 v{T+1}, 5, v0")
    P(f"v_lshl_add_u32 v{T+1}, v{T+1}, 2, v{T}")
    P(f"v_xor_b32 v{T}, s{S_WAVE}, v{T}")
    P(f"v_bfe_u32 v{T+2}, v0, 4, 1")
    P(f"v_lshl_add_u32 v{T}, v{T}, 1, v{T+2}")
    P(f"v_and_b32 v{T+2}, 1, v0")
    P(f"v_lshl_add_u32 v{T}, v{T}, 1, v{T+2}")
    P(f"v_bfe_u32 v{T+2}, v0, 1, 1")
    P(f"v_lshl_add_u32 v{T}, v{T}, 1, v{T+2}")
    P(f"v_lshlrev_b32 v{T}, 3, v{T}")
    P(f"v_lshl_add_u32 v{V_BA}, v{T+1}, 8, v{T}")
    P(f"v_add_u32 v{V_L16+1}, 0x10000, v{V_L16}")
    P(f"s_mul_i32 s{S_H1}, s{S_WAVE}, {HT}")
    P(f"s_add_u32 s{S_H1}, s{S_H1}, s{S_HA}")
    P(f"v_add_u32 v{V_H1}, s{S_H1}, v{V_L16}")
    P(f"s_lshl_b32 s{S_K0}, s{S_J}, 13"); P(f"s_sub_u32 s{S_T0}, s{S_K0}, {14*4096}"); P(f"s_min_u32 s{S_K0}, s{S_K0}, s{S_T0}")
    P(f"s_add_u32 s{S_KB}, s{S_K0}, 8192"); P(f"s_sub_u32 s{S_T0}, s{S_KB}, {14*4096}"); P(f"s_min_u32 s{S_KB}, s{S_KB}, s{S_T0}")
    P(f"s_lshl_b32 s{S_T0}, s{S_J}, 3")
    P(f"s_mul_i32 s{S_T1}, s{S_WAVE}, 6")
    P(f"s_add_u32 s{S_T1}, s{S_T1}, s{S_T0}")
    for u in range(3):
        d = S_HB0 + u
        P(f"s_add_u32 s{d}, s{S_T1}, {32+2*u}")
        P(f"s_sub_u32 s{S_NEED}, s{d}, 56")
        P(f"s_min_u32 s{d}, s{d}, s{S_NEED}")
        P(f"s_lshl_b32 s{d}, s{d}, 10")
        P(f"s_add_u32 s{d}, s{d}, s{S_HA}")
        if u == 1: P(f"s_sub_u32 s{d}, s{d}, 2048")
    P(f"s_add_u32 s{S_T1}, s{S_J}, s{S_WAVE}")
    P(f"s_sub_u32 s{S_NEED}, s{S_T1}, 7")
    P(f"s_min_u32 s{S_T1}, s{S_T1}, s{S_NEED}")
    P(f"s_lshl_b32 s{S_T1}, s{S_T1}, 13")
    P(f"s_add_u32 s{S_HA}, s{S_HA}, s{S_T1}")
    P(f"s_mul_i32 s{S_XB1}, s{S_WAVE}, 6144")

def g2_setup_b(P):
    P(f"v_add_u32 v{V_RW}, 0x4000, v{V_BA}")
    P(f"v_add_u32 v{V_RW+1}, 0x14000, v{V_BA}")

def dma1(stage):
    slot = (stage % 4) * 0x8000
    L = []
    if stage < 16:
        L += [f"s_add_u32 m0, s{S_LW}, 0x{slot:x}", f"s_add_u32 s{S_KB}, s{S_ROT}, {stage}", f"s_and_b32 s{S_KB}, s{S_KB}, 15",
              f"s_lshl_b32 s{S_XO}, s{S_KB}, 7", f"s_add_u32 s{S_XO}, s{S_XO}, s{S_XB1}"]
        for j in range(4): L.append(f"buffer_load_dwordx4 v{V_DX+j}, s[{S_X}:{S_X+3}], s{S_XO} offen offset:{j*1024} lds")
        L += [f"s_add_u32 m0, s{S_LW}, 0x{slot+0x4000:x}", f"s_mul_i32 s{S_WO}, s{S_KB}, {64*7168}", f"s_add_u32 s{S_WO}, s{S_WO}, s{S_WB}"]
        for j in range(4): L.append(f"buffer_load_dwordx4 v{V_DW+j}, s[{S_W}:{S_W+3}], s{S_WO} offen offset:{j*1024} lds")
    else:
        u = stage - 16
        tile, half = u // 2, u % 2
        for sb in range(2):
            L += [f"s_add_u32 m0, s{S_LW2}, 0x{slot+sb*4096:x}", f"s_add_u32 s{S_XO}, s{S_X2+2*(tile//2)+half}, {(tile%2)*65536+sb*128}"]
            for j in range(4): L.append(f"buffer_load_dwordx4 v{V_DX+j}, s[{S_X}:{S_X+3}], s{S_XO} offen offset:{j*1024} lds")
    return L

def dma2_w(stage):
    slot = (stage % 4) * 0x8000; s = stage - 24
    L = [f"s_add_u32 m0, s{S_LW}, 0x{slot+0x4000:x}"]
    if s == 0: L += [f"s_lshl_b32 s{S_WO}, s{S_K0}, 5"]
    elif s == 1: L += [f"s_lshl_b32 s{S_WO}, s{S_K0}, 5", f"s_add_u32 s{S_WO}, s{S_WO}, 0x20000"]
    else:
        if s > 2: L += [f"s_add_u32 s{S_KB}, s{S_KB}, 4096"]
        if s > 2 and s % 2 == 0: L += [f"s_sub_u32 s{S_WO}, s{S_KB}, {14*4096}", f"s_min_u32 s{S_KB}, s{S_KB}, s{S_WO}"]
        L += [f"s_lshl_b32 s{S_WO}, s{S_KB}, 5"]
    for j in range(4): L.append(f"buffer_load_dwordx4 v{V_DW+j}, s[{S_W}:{S_W+3}], s{S_WO} offen offset:{j*1024} lds")
    return L

def dma2_h(stage, pol=" sc1"):
    slot = (stage % 4) * 0x8000
    L = []
    if stage < 38:
        s = stage - 24
        L += [f"s_add_u32 m0, s{S_LW}, 0x{slot:x}"]
        if s == 1: L += [f"s_add_u32 s{S_XO}, s{S_K0}, 4096"]
        so = [S_K0, S_XO][s] if s < 2 else S_KB
        for j in range(4): L.append(f"buffer_load_dwordx4 v{V_H1}, {WS}, s{so} offen offset:{j*1024}{pol} lds")
    else:
        u = stage - 38
        pos, half = 4 + u // 2, u % 2
        if half == 0:
            for sb in range(2):
                L += [f"s_add_u32 m0, s{S_LW2}, 0x{slot+sb*4096:x}", f"s_add_u32 s{S_XO}, s{S_HA}, {pos*HT+sb*4096}"]
                for j in range(4): L.append(f"buffer_load_dwordx4 v{V_L16}, {WS}, s{S_XO} offen offset:{j*1024}{pol} lds")
        else:
            for un in range(3):
                if un != 1: L.append(f"s_add_u32 m0, s{S_XB1}, 0x{slot+(4096 if un == 2 else 0):x}")
                L.append(f"s_add_u32 s{S_XO}, s{S_HB0+un}, {pos*HT}")
                for j in range(2):
                    L.append(f"buffer_load_dwordx4 v{V_L16}, {WS}, s{S_XO} offen offset:{(2048 if un == 1 else 0)+j*1024}{pol} lds")
    return L

def flag_store(soff, imm=0):
    return f"buffer_store_dword v{V_TOK}, v{V_L0}, {WS}, s{soff} offen offset:{imm} sc1"

def gelu_ops(t):
    acc = acc1(t)
    pk = V_PK
    c3, c1, sd = V_CT + 4 * (t % 2), V_CT + 4 * (t % 2) + 1, V_CT + 4 * (t % 2) + 2
    L = []
    if t + 1 < 8: L.append(f"ds_read_b128 {v(V_CT+4*((t+1)%2),4)}, v{V_SO} offset:{(t+1)*1024+16}")
    for g in range(4):
        A = [acc + 4 * g + i for i in range(4)]
        T = [V_T + 4 * (g % 2) + i for i in range(4)]
        for i in range(4): L.append(f"v_mul_f32 v{T[i]}, v{A[i]}, v{A[i]}")
        for i in range(4): L.append(f"v_fma_f32 v{T[i]}, v{T[i]}, v{c3}, v{c1}")
        for i in range(4): L.append(f"v_mul_f32 v{T[i]}, v{A[i]}, v{T[i]}")
        for i in range(4): L.append(f"v_exp_f32 v{T[i]}, v{T[i]}")
        for i in range(4): L.append(f"v_fma_f32 v{T[i]}, v{T[i]}, v{sd}, v{sd}")
        for i in range(4): L.append(f"v_rcp_f32 v{T[i]}, v{T[i]}")
        for i in range(4): L.append(f"v_mul_f32 v{T[i]}, v{A[i]}, v{T[i]}")
        L.append(f"v_cvt_pk_bf16_f32 v{pk+2*g}, v{T[0]}, v{T[1]}")
        L.append(f"v_cvt_pk_bf16_f32 v{pk+2*g+1}, v{T[2]}, v{T[3]}")
        if g % 2 == 1:
            q = g // 2
            L.append((f"buffer_store_dwordx4 v[{pk+4*q}:{pk+4*q+3}], v{V_L16}, {WS}, s{S_HB} offen offset:{q*1024}{HPOL}", f"h{max(t//2-1,0)}"))
    if t < 7: L.append(f"s_add_u32 s{S_HB}, s{S_HB}, {HT}")
    L.append(Mark(f"gelu{t}"))
    return L

def aug_ops():
    T = V_T + 8
    return [f"v_cvt_pk_bf16_f32 v{T}, v{V_CS}, v{V_CS}",
            f"v_lshl_or_b32 v{V_AUG}, v{V_AUG}, 16, v{V_AUG}",
            f"v_and_b32 v{T}, 0xffff0000, v{T}",
            f"v_sub_f32 v{T+1}, v{V_CS}, v{T}",
            f"v_cmp_gt_u32 s[66:67], 32, v0",
            f"v_cvt_pk_bf16_f32 v{T}, v{T}, v{T+1}",
            f"v_mov_b32 v{V_AUG+3}, 0",
            f"v_cndmask_b32 v{V_AUG}, 0, v{V_AUG}, s[66:67]",
            f"v_cndmask_b32 v{V_AUG+1}, 0, v{T}, s[66:67]",
            f"v_cndmask_b32 v{V_AUG+2}, 0, v{T}, s[66:67]"]

def f3_reload(n):
    return [f"buffer_load_dword v{V_FL}, v1, {WS}, s{S_F3} offen offset:{n*128} sc1"]
def f3_addr():
    return ["v_and_b32 v1, 31, v0", "v_min_u32 v1, 27, v1", "v_lshlrev_b32 v1, 2, v1"]
def f3_check(n):
    return Fn(lambda P: poll_check(P, [V_FL], S_TOK, f3_reload(n)), 20)

INV_SCALE = 2.0 / (2048.0 * 1024.0)

def unpack_add(R, S, src, first=False, scale=None):
    for i in range(8):
        t = V_T + 8 + 2 * (i % 2)
        if first:
            R(f"v_lshlrev_b32 v{S+2*i}, 16, v{src+i}"); R(f"v_and_b32 v{S+2*i+1}, 0xffff0000, v{src+i}")
        else:
            R(f"v_lshlrev_b32 v{t}, 16, v{src+i}"); R(f"v_and_b32 v{t+1}, 0xffff0000, v{src+i}")
            for e in range(2):
                if scale is None: R(f"v_add_f32 v{S+2*i+e}, v{S+2*i+e}, v{t+e}")
                else: R(f"v_fmac_f32 v{S+2*i+e}, {hexf(scale)}, v{t+e}")

def build_stream(P, S, opt, stamp=None):
    o = dict(budget=24, LA=10, BOFF=7, ack=24, pl=20, t3c=14, pgap=0, ackp=(40, 40, 30, 30),
             tY=290, tA=316, tB=340, tC=365, tD=410)
    o.update(opt)
    bf = [0]
    def bfrag():
        b = V_B + 4 * (bf[0] % NB); bf[0] += 1; return b
    for st in range(16):
        for q4 in range(4):
            q = st * 4 + q4
            if q4 == 0: S.first[st] = len(S.slots)
            slot = st % 4; hi = slot // 2; base = (slot % 2) * 0x8000
            for t in range(4):
                b = bfrag(); acc = acc1(t)
                i = S.add(f"v_mfma_f32_32x32x16_bf16 {v(acc,16)}, {a(4*q,4)}, {v(b,4)}, {'0' if q == 0 else v(acc,16)}")
                if t == 0:
                    for h in range(2):
                        S.read(st, i, f"ds_read_b64_tr_b16 {a(4*q+2*h,2)}, v{V_RW+hi} offset:{base+q4*4096+h*1024}")
                S.read(st, i, f"ds_read_b128 {v(b,4)}, v{V_RX+4*hi+q4} offset:{base+t*4096}")
            S.add(f"v_mfma_f32_16x16x32_bf16 {v(V_CS,4)}, {v(V_ONE,4)}, {a(4*q,4)}, {'0' if q == 0 else v(V_CS,4)}")
    p1 = len(S.slots)
    done = {}; start = {}
    def aug(t, init):
        acc = acc1(t); b = bfrag()
        i = S.add(f"v_mfma_f32_32x32x16_bf16 {v(acc,16)}, {v(V_AUG,4)}, {v(b,4)}, {'0' if init else v(acc,16)}")
        S.read(None, i, f"ds_read_b128 {v(b,4)}, v{V_SO} offset:{t*1024}")
        return i
    for t in range(4, 8):
        acc = acc1(t); start[t] = len(S.slots)
        for q in range(64):
            st = 16 + (t - 4) * 2 + q // 32
            slot = st % 4; hi = slot // 2; base = (slot % 2) * 0x8000
            if t > 4 and q == 0: aug(t, True)
            if t == 4 and q in (6, 8, 10, 12, 14):
                tt = (q - 6) // 2
                i = aug(tt, False)
                if tt < 4: done[tt] = i
            if q % 32 == 0: S.first[st] = len(S.slots)
            b = bfrag()
            i = S.add(f"v_mfma_f32_32x32x16_bf16 {v(acc,16)}, {a(4*q,4)}, {v(b,4)}, {'0' if (q == 0 and t == 4) else v(acc,16)}")
            S.read(st, i, f"ds_read_b128 {v(b,4)}, v{V_RX+4*hi+q%4} offset:{base+((q%32)//4)*4096}")
        done[t] = len(S.slots) - 1
    g0 = len(S.slots)
    for s in range(14):
        st = 24 + s
        slot = st % 4; hi = slot // 2; base = (slot % 2) * 0x8000
        for q4 in range(4):
            q = s * 4 + q4
            if q4 == 0: S.first[st] = len(S.slots)
            for t in range(4):
                b = bfrag(); acc = acc2(t)
                i = S.add(f"v_mfma_f32_32x32x16_bf16 {v(acc,16)}, {a(4*q,4)}, {v(b,4)}, {'0' if q == 0 else v(acc,16)}")
                if t == 0:
                    for h in range(2):
                        S.read(st, i, f"ds_read_b64_tr_b16 {a(4*q+2*h,2)}, v{V_RW+hi} offset:{base+q4*4096+h*2048}")
                S.read(st, i, f"ds_read_b128 {v(b,4)}, v{V_L16+hi} offset:{base+t*4096+q4*1024}")
    done2 = {t: len(S.slots) - 4 + t for t in range(4)}; start2 = {}
    for t in range(4, 8):
        acc = acc2(t); start2[t] = len(S.slots)
        for q in range(56):
            st = 38 + (t - 4) * 2 + (q >= 32)
            slot = st % 4; hi = slot // 2; base = (slot % 2) * 0x8000
            if q in (0, 32): S.first[st] = len(S.slots)
            b = bfrag()
            i = S.add(f"v_mfma_f32_32x32x16_bf16 {v(acc,16)}, {a(4*q,4)}, {v(b,4)}, {'0' if q == 0 else v(acc,16)}")
            S.read(st, i, f"ds_read_b128 {v(b,4)}, v{V_L16+hi} offset:{base+(q%32)*1024}")
        done2[t] = len(S.slots) - 1
    n = len(S.slots)
    for st in range(1, 17): S.boff[st] = o.get("BOFF1", 8)
    bar = S.bars(o["BOFF"])
    for st in range(1, 21): S.dma_at_bar[st] = [(dma1(st + 3), st + 3)]
    S.dma_at_bar[21] = [(dma2_w(24), 24)]
    S.dma_at_bar[22] = [(dma2_w(25), 25)]
    S.dma_at_bar[23] = [(dma2_h(24), 24), (dma2_h(25), 25), (dma2_w(26), 26)]
    for st in range(24, 35): S.dma_at_bar[st] = [(dma2_w(st + 3), st + 3), (dma2_h(st + 3), st + 3)]
    for st in range(35, 43): S.dma_at_bar[st] = [(dma2_h(st + 3), st + 3)]
    L = [f"s_lshl_b32 s{S_XO}, s{S_WAVE}, 1", f"s_add_u32 s{S_WO}, s{S_XO}, s{S_RT}", f"s_and_b32 s{S_WO}, s{S_WO}, 7",
         f"s_lshl_b32 s{S_WO}, s{S_WO}, 10", f"s_lshl_b32 s{S_XO}, s{S_XO}, 10", f"s_add_u32 m0, s{S_XO}, {L_ST}",
         f"s_lshl_b32 s{S_XO}, s{S_MT}, 13", f"s_add_u32 s{S_WO}, s{S_WO}, s{S_XO}", f"s_add_u32 s{S_WO}, s{S_WO}, {W_STATS}"]
    L += [f"buffer_load_dwordx4 v{V_L16}, {WS}, s{S_WO} offen offset:{j*1024} sc1 lds" for j in range(2)]
    S.dma_at_bar[13].insert(0, (L, 15))
    for i, t in enumerate(aug_ops()): S.event(p1 + 1 + i // 4, t)
    S.event(p1 + 2, f"ds_read_b128 {v(V_CT,4)}, v{V_SO} offset:16")
    G = []
    for t in range(8):
        G.append(At(done[t] + 3)); G += gelu_ops(t)
    qg = S.queue(G)
    R = Rec()
    flag_regs(R); g1_setup_scal(R); g1_setup_p2(R)
    R.add(At(o.get("tF1", 16))); R.add(Fn(S.timed("xs", lambda P: P.wait_for(o["f1"])))); R(flag_store(S_RS)); R.add(Mark("f1"))
    epi_setup(R)
    o["inv_consts"](R)
    R.add(Mark("consts"))
    rl = [f"buffer_load_dword v{V_FL}, v1, {WS}, s{S_E1} offen sc1"]
    for t_ in [f"v_lshlrev_b32 v1, 2, v0", f"s_and_b32 s{S_E1}, s{S_MT}, 3", f"s_lshl_b32 s{S_E1}, s{S_E1}, 8", f"s_lshl_b32 s{S_T0}, s{S_WAVE}, 10",
               f"s_add_u32 s{S_E1}, s{S_E1}, s{S_T0}", f"s_add_u32 s{S_E1}, s{S_E1}, {W_F1}"]: R(t_)
    R.add(At(bar[12] - 16)); R(rl[0])
    R.add(At(bar[13] - 8)); R.add(S.poll("F1", [V_FL], S_TOK, rl)); R.add(Mark("f1c"))
    R.add(At(bar[13] + 2)); R.add(DmaDone(15)); g2_setup(R)
    for t_ in f3_addr(): R(t_)
    R.add(Mark("g2setup")); R.add(At(p1 + 4)); g2_setup_b(R)
    if o.get("w2pf"):
        W = Rec()
        W.add(After("g2setup"))
        W(f"s_lshr_b32 s{S_E0}, s2, 3"); W(f"s_lshl2_add_u32 s{S_E0}, s{S_E0}, s{S_WAVE}"); W(f"s_lshl_b32 s{S_E0}, s{S_E0}, 14")
        W(f"s_mul_i32 s{S_E1}, s{S_KQ}, {896*2048}"); W(f"s_add_u32 s{S_E0}, s{S_E0}, s{S_E1}")
        n_ = len(o["w2pf"]); ln = 128 // n_
        W(f"v_min_u32 v121, {ln-1}, v0"); W(f"v_lshlrev_b32 v121, 7, v121")
        for k, t_ in enumerate(o["w2pf"]):
            W.add(At(t_)); W(f"buffer_load_dword v{122+k%4}, v121, s[{S_W}:{S_W+3}], s{S_E0} offen")
            W(f"s_add_u32 s{S_E0}, s{S_E0}, {ln*128}")
        o["extraq"] = W.L
    f3_check = lambda n: S.poll(f"F3{n}", [V_FL], S_TOK, f3_reload(n))
    R.L += [After("gelu3", o["ack"]), S.wait_tag("h0"), flag_store(S_FX), Mark("f3a"),
            At(bar[24] - o["t3c"] - o["pl"])] + f3_reload(0) + [Gap(o["pl"]), f3_check(0), Fn(lambda P: S.push_dma(dma2_h(26), 26), 0), Mark("f3c"),
            After("gelu5", o["ack"]), S.wait_tag("h1"), flag_store(S_FX, 128), Mark("f3b"),
            At(bar[35] - 40 - o["pl"])] + f3_reload(1) + [Gap(o["pl"]), f3_check(1), Mark("f3d"),
            After("gelu7", o["ack"]), S.wait_tag("h2"), flag_store(S_FX, 256), Mark("f3e"),
            At(bar[39] - 6 - o["pl"])] + f3_reload(2) + [Gap(o["pl"]), f3_check(2), Mark("f3f")]
    qf = S.queue(R.L, vmlat=0)
    S.queues = [qf, qg]
    if o.get("extraq"): S.queues.insert(1, {"L": o["extraq"], "hold": -1, "vmlat": 60})
    def entry(P):
        assert not any(not is_vm(x[0]) for x in S.dq[:1]) and S.dq[0][1] == 27
        o["entry"](P); P.label("L_g2_entry")
    S.pre_bar.setdefault(24, []).append(Fn(entry))
    o["rows_inv"](S, g0, bar)
    E = Rec()
    SP = [S_SP + d for d in range(4)]; SF = [S_SFL + d for d in range(4)]
    for t in range(6):
        E.add(At(done2[t] + 3))
        acc = acc2(t); pk = V_PK
        for q in range(2):
            for i in range(4): E(f"v_cvt_pk_bf16_f32 v{pk+4*q+i}, v{acc+8*q+2*i}, v{acc+8*q+2*i+1}")
            E(f"buffer_store_dwordx4 {v(pk+4*q,4)}, v{V_L16}, {WS}, s{SP[t//2]} offen offset:{(t%2)*2048+q*1024} sc1", f"p{t}")
            if o["pgap"]: E.add(Gap(o["pgap"]))
        E.add(Mark(f"pack{t}"))
    S.queues.insert(len(S.queues) - 1, {"L": E.L, "hold": -1, "vmlat": 0})
    E2 = []
    for t, k in ((1, 0), (3, 1), (4, 2), (5, 3)):
        E2 += [After(f"pack{t}", o["ackp"][k]), S.wait_tag(f"p{t}"), flag_store(SF[min(k, 2)], 4 * k), Mark(f"pf{k}")]
    S.queues.insert(1, {"L": E2, "hold": -1, "vmlat": 0})
    S0, S1 = blk(4), blk(5)
    STG = [112, 120, 24, 32, blk(6), blk(6) + 8, blk(3), blk(3) + 8]
    V_XO = V_DX; V_F2 = V_DX + 2
    I = Rec()
    I.add(After("rows_inv_done"))
    I(f"v_and_b32 v{V_XO}, 31, v0"); I(f"v_lshlrev_b32 v{V_XO}, 11, v{V_XO}")
    I(f"v_lshrrev_b32 v{V_XO+1}, 5, v0"); I(f"v_lshlrev_b32 v{V_XO+1}, 4, v{V_XO+1}"); I(f"v_add_u32 v{V_XO}, v{V_XO}, v{V_XO+1}")
    I(f"s_add_u32 s{S_E0}, s{S_OO}, 0x10000")
    for q in range(2): I(f"buffer_load_dwordx4 {v(STG[0]+4*q,4)}, v{V_XO+1}, s[{S_B}:{S_B+3}], s{S_B2} offen offset:{q*32}")
    for k in range(2):
        for q in range(2): I(f"buffer_load_dwordx4 {v(STG[1+k]+4*q,4)}, v{V_XO}, s[{S_X}:{S_X+3}], s{S_E0 if k else S_OO} offen offset:{q*32}")
    unpack_add(I, S0, STG[1], first=True); unpack_add(I, S1, STG[2], first=True)
    unpack_add(I, S0, STG[0]); unpack_add(I, S1, STG[0])
    I.add(After("f3f"))
    I(f"v_lshlrev_b32 v1, 2, v0")
    I(f"s_add_u32 s{S_T1}, s{S_YO}, 0x10000")
    I.add(Mark("x_done"))
    I2 = Rec()
    I2.add(After("x_done"))
    def fetch(name, t, reg, rl, loads):
        I2.add(At(g0 + t - o["pl"])); I2(rl)
        I2.add(Gap(o["pl"])); I2.add(S.poll("F" + name, [reg], S_TOK, [rl]))
        for t_ in loads: I2(t_)
        I2.add(Mark(name))
    pl = lambda k, n, off: [f"buffer_load_dwordx4 {v(STG[k+u//2]+4*(u%2),4)}, v{V_L16}, {WS}, s{SP[3]} offen offset:{off+u*1024} sc1" for u in range(n)]
    fl = lambda k: f"buffer_load_dword v{V_F2+k%2}, off, {WS}, s{SF[3]} offset:{4*k} sc1"
    fetch("Y", o["tY"], V_XO + 1, f"buffer_load_dword v{V_XO+1}, v1, {WS}, s{S_F5P} offen sc1",
          [f"buffer_load_dwordx4 {v(STG[4+k]+4*q,4)}, v{V_XO}, {WS}, s{S_T1 if k else S_YO} offen offset:{q*1024} sc1" for k in range(2) for q in range(2)])
    nx = f"s_add_u32 s{SP[3]}, s{SP[3]}, 4096"
    fetch("A", o["tA"], V_F2, fl(0), pl(0, 4, 0) + [nx])
    fetch("B", o["tB"], V_F2 + 1, fl(1), pl(2, 4, 0) + [nx])
    I2.add(After("pack3"))
    fetch("C", o["tC"], V_F2, fl(2), pl(6, 2, 0))
    fetch("D", o["tD"], V_F2 + 1, fl(3), pl(7, 2, 2048))
    I.add(After("Y")); unpack_add(I, S0, STG[4], scale=INV_SCALE); unpack_add(I, S1, STG[5], scale=INV_SCALE)
    I.add(After("A")); unpack_add(I, S0, STG[0]); unpack_add(I, S1, STG[1])
    I.add(After("B")); unpack_add(I, S0, STG[2]); unpack_add(I, S1, STG[3])
    I.add(After("C")); unpack_add(I, S0, STG[6])
    def final(t, Sx, so):
        acc = acc2(t); pk = V_PK
        I.add(At(done2[t] + 3))
        for q in range(2):
            for i in range(8): I(f"v_add_f32 v{Sx+8*q+i}, v{Sx+8*q+i}, v{acc+8*q+i}")
            for i in range(4): I(f"v_cvt_pk_bf16_f32 v{pk+4*q+i}, v{Sx+8*q+2*i}, v{Sx+8*q+2*i+1}")
            I(f"buffer_store_dwordx4 {v(pk+4*q,4)}, v{V_XO}, s[{S_OUT}:{S_OUT+3}], s{so} offen offset:{q*32}{o.get('outpol','')}")
    I.add(After("pack5"))
    final(6, S0, S_OO); I.add(Mark("final6"))
    I.add(After("D"))
    unpack_add(I, S1, STG[7]); I.add(Mark("sum7"))
    final(7, S1, S_E0)
    S.queues.insert(2, {"L": I2.L, "hold": -1, "vmlat": 0})
    S.queue(I.L, vmlat=o.get("vmlat", 24))
    st_ = None
    if stamp:
        pts = {-1: 0, 160: 1, p1: 2, start[6]: 3, g0: 4, g0 + 64: 5, g0 + 128: 6, start2[4]: 7, start2[6]: 8, start2[7]: 9, n: 10}
        if "pts" in o: pts = {k: j for j, k in enumerate(o["pts"])}
        if "ptsd" in o: pts = o["ptsd"]
        st_ = {k: (lambda P, j=j: stamp(P, j)) for k, j in pts.items()}
    ph1 = lambda i: i < p1 or g0 - 40 <= i < start2[4]
    dgap = lambda i, nd, left: 1 if 2 * nd > left + o.get("dslack", 0) else (2 if ph1(i) or 3 * nd > left else o.get("dgap2", 3))
    bx = o.get("bx", {})
    def budget(i):
        ph = 0 if i < p1 else 1 if i < g0 else 2 if i < start2[4] else 3
        return 24 + (4 if bx.get(ph) and i % bx[ph] == 0 else 0)
    barx = lambda i: o.get("barx1", 0) if ph1(i) else o.get("barx2", 12)
    left = S.run(budget=budget, LA=o["LA"], LAT=o.get("LAT", 4), dma_gap=dgap, barx=barx, stamps=st_, vm_late=o.get("vm_late", 8), bud16=o.get("bud16", 8))
    edges = [0, 160, p1, start[6], g0, g0 + 128, start2[4], start2[6], n]
    print("over budget:", [sum(S.over.get(i, 0) for i in range(a_, b_)) for a_, b_ in zip(edges, edges[1:])])
    m = S.marks
    print("stream: slots", n, "p1", p1, "g0", g0, "left", left, "bars", bar[21], bar[22], bar[23], bar[24], bar[35], "marks", m)
    assert m["gelu3"] < g0 and m["gelu7"] < start2[4] and m["f1c"] < bar[13] and m["consts"] < p1 - 20
    assert m["f3a"] < bar[23] and m["g2setup"] < p1 and m["f3d"] < bar[35] and m["f3f"] < bar[39] and m["f3c"] < bar[24] - 5
    assert m["pack0"] < start2[5] and m["pack1"] < start2[6] and m["pack2"] < start2[7] and m["gelu7"] < m["pack0"] - 10
```

```python
from common import *
from stream import *
from rows import DROW, k2off
import fused as F

def angles(R, idx, arg0, step, T, emit):
    for n0 in range(0, len(idx), 2):
        pr = list(range(n0, min(n0 + 2, len(idx))))
        for e, n in enumerate(pr):
            k = idx[n]
            if k == 0: R(f"v_mov_b32 v{T+e}, v{arg0}")
            else: R(f"v_fmamk_f32 v{T+e}, v{step}, {hexf(float(k))}, v{arg0}")
        for e, n in enumerate(pr):
            R(f"v_cos_f32 v{T+2+2*e}, v{T+e}"); R(f"v_sin_f32 v{T+3+2*e}, v{T+e}")
        for e, n in enumerate(pr): emit(n, T + 2 + 2 * e, T + 3 + 2 * e, T + e)

def twiddle1(R, re, im, c, sn, tmp, conj):
    for j0 in range(0, 16, 2):
        for e in range(2): R(f"v_mul_f32 v{tmp+e}, v{re+j0+e}, v{sn+j0+e}")
        for e in range(2): R(f"v_mul_f32 v{re+j0+e}, v{re+j0+e}, v{c+j0+e}")
        for e in range(2):
            j = j0 + e
            R(f"v_fma_f32 v{re+j}, {'-' if conj else ''}v{im+j}, v{sn+j}, v{re+j}")
        for e in range(2):
            j = j0 + e
            R(f"v_fma_f32 v{im+j}, v{im+j}, v{c+j}, {'' if conj else '-'}v{tmp+e}")

def stage_addr2(R, A0, A1, s0, swave, base, t):
    R(f"v_add_u32 v{t}, -1, v0")
    R(f"v_and_b32 v{t}, 31, v{t}")
    R(f"s_bfe_u32 s{s0}, s2, 0x40003")
    R(f"v_xor_b32 v{t}, s{s0}, v{t}")
    R(f"v_lshlrev_b32 v{t}, 4, v{t}")
    R(f"v_lshrrev_b32 v{t+1}, 5, v0")
    R(f"v_lshl_add_u32 v{t}, v{t+1}, 11, v{t}")
    R(f"s_lshl_b32 s{s0}, s{swave}, 2")
    R(f"s_add_u32 s{s0}, s{s0}, {base}")
    R(f"v_add_u32 v{t}, s{s0}, v{t}")
    R(f"v_and_b32 v{t+1}, 31, v0")
    R(f"v_cmp_eq_u32 vcc, 0, v{t+1}")
    R(f"v_add_u32 v{t+1}, -1024, v{t}")
    R(f"v_cndmask_b32 v{A0}, v{t}, v{t+1}, vcc")
    R(f"v_cmp_eq_u32 vcc, 0, v0")
    R(f"v_add_u32 v{t+1}, 16384, v{A0}")
    R(f"v_cndmask_b32 v{A1}, v{A0}, v{t+1}, vcc")

TW, D1, D0, D2, Y0, Y1 = F.blk(4), 112, F.blk(6), 24, 10, 40
TT, VS = 2, 22
A0, A1, VG, AP = 60, 61, 62, 59
BA, BB = 224, 240

def inv_consts(R, T):
    Q = T + 8
    R(f"v_and_b32 v{T}, 0x13, v0")
    R(f"v_bfe_u32 v{T+1}, v0, 2, 1")
    R(f"v_lshl_add_u32 v{T}, v{T+1}, 3, v{T}")
    R(f"v_bfe_u32 v{T+1}, v0, 3, 1")
    R(f"v_lshl_add_u32 v{T}, v{T+1}, 2, v{T}")
    R(f"v_cvt_f32_u32 v{T}, v{T}")
    R(f"v_lshrrev_b32 v{T+1}, 5, v0")
    R(f"v_lshl_add_u32 v{T+1}, s{F.S_WAVE}, 1, v{T+1}")
    R(f"v_cvt_f32_u32 v{T+1}, v{T+1}")
    R(f"s_lshl_b32 s{F.S_T0}, s{F.S_WAVE}, 10"); R(f"s_add_u32 s{F.S_T0}, s{F.S_T0}, {F.L_Y}")
    R(f"v_add_u32 v{T+7}, s{F.S_T0}, v{F.V_L16}")
    R(f"v_mul_f32 v{T+2}, {hexf(1/1024)}, v{T}")
    R(f"v_mul_f32 v{T+3}, v{T+2}, v{T+1}")
    R(f"v_mul_f32 v{T+3}, 4.0, v{T+3}")
    for i in range(4):
        if i: R(f"v_add_f32 v{T+3}, v{T+3}, v{T+2}")
        R(f"v_cos_f32 v{Q+i}, v{T+3}"); R(f"v_sin_f32 v{Q+4+i}, v{T+3}")
    R(f"v_and_b32 v{T+2}, 31, v0")
    R(f"ds_write_b128 v{T+7}, {v(Q,4)}")
    R(f"v_cvt_f32_u32 v{T+2}, v{T+2}")
    R(f"v_mul_f32 v{T+2}, {hexf(1/32)}, v{T+2}")
    R(f"ds_write_b128 v{T+7}, {v(Q+4,4)} offset:4096")
    R(f"v_mul_f32 v{T+3}, v{T+2}, v{T+1}")
    R(f"v_mul_f32 v{T+3}, 4.0, v{T+3}")
    for i in range(4):
        if i: R(f"v_add_f32 v{T+3}, v{T+3}, v{T+2}")
        R(f"v_cos_f32 v{T+4}, v{T+3}"); R(f"v_sin_f32 v{T+5}, v{T+3}")
        if i == 3: R(f"v_mul_f32 v{T+2}, {hexf(1/32)}, v{T}")
        else: R(f"s_nop 0")
        R(f"v_cvt_pk_bf16_f32 v{Q+8+i}, v{T+4}, -v{T+5}")
    R(f"v_mul_f32 v{T+3}, v{T+2}, v{T+1}")
    R(f"ds_write_b128 v{T+7}, {v(Q+8,4)} offset:8192")
    R(f"v_add_f32 v{T+3}, v{T+3}, v{T+3}")
    R(f"s_lshr_b32 s{F.S_T0}, s{F.S_WAVE}, 1"); R(f"s_lshl_b32 s{F.S_T0}, s{F.S_T0}, 10"); R(f"s_and_b32 s{F.S_T1}, s{F.S_WAVE}, 1")
    R(f"s_lshl3_add_u32 s{F.S_T0}, s{F.S_T1}, s{F.S_T0}"); R(f"s_add_u32 s{F.S_T0}, s{F.S_T0}, {F.L_Y}")
    for e in range(2):
        if e: R(f"v_add_f32 v{T+3}, v{T+3}, v{T+2}")
        R(f"v_cos_f32 v{T+4}, v{T+3}"); R(f"v_sin_f32 v{T+5}, v{T+3}")
        R(f"v_add_u32 v{T+6}, s{F.S_T0}, v{F.V_L16}")
        R(f"v_cvt_pk_bf16_f32 v{Q+12+e}, v{T+4}, -v{T+5}"); R(f"v_cvt_pk_bf16_f32 v{Q+14+e}, v{T+5}, v{T+4}")
    R(f"ds_write_b64 v{T+6}, {v(Q+12,2)} offset:12288")
    R(f"ds_write_b64 v{T+6}, {v(Q+14,2)} offset:14336")

def inv_fetch(R):
    R(f"v_add_u32 v{TT}, {F.L_Y}, v{F.V_L16}")
    for k in range(4): R(f"ds_read_b128 {a(BB+4*k,4)}, v{TT} offset:{8192+k*1024}")
    for k in range(4): R(f"ds_read_b128 {a(BA+4*k,4)}, v{TT} offset:{12288+k*1024}")
    for k in range(8): R(f"ds_read_b128 {v(TW+4*k,4)}, v{TT} offset:{k*1024}")

def inv_dma(pol=" sc1"):
    L = [f"s_add_u32 m0, s{F.S_LW}, {F.L_Y}"]
    for u in range(4):
        L.append(f"buffer_load_dwordx4 v{VG}, {F.WS}, s{F.S_YD} offen offset:{u*1024}{pol} lds")
        if u < 3: L.append(f"s_add_u32 s{F.S_YD}, s{F.S_YD}, {0x40000-1024}")
    return L

def inv_data(R):
    s0 = F.S_RS
    for j in range(0, 8, 2): R(f"ds_read2st64_b32 {v(Y0+j,2)}, v{AP} offset0:{k2off(j)//256} offset1:{k2off(j+1)//256}")
    for j in range(8): R(f"ds_read_b32 v{Y1+j}, v{A1 if j == 0 else A0} offset:{k2off(j)+512}")
    R(f"v_lshlrev_b32 v{A1}, 31, v0")
    R(f"v_or_b32 v{A1}, 0.5, v{A1}")
    R(f"v_cmp_gt_u32 s[66:67], 32, v0")
    R(f"v_and_b32 v{VS}, 31, v0"); R(f"v_lshrrev_b32 v{TT}, 5, v0"); R(f"v_lshlrev_b32 v{TT}, 4, v{TT}"); R(f"v_lshl_add_u32 v{VS}, v{VS}, 5, v{TT}")
    for par, Y in enumerate((Y0, Y1)):
        R(f"v_readlane_b32 s{s0+par}, v{Y}, 0")
        R(f"v_writelane_b32 v{Y}, 0, 0")
    R(f"v_cndmask_b32 v{A0}, 0, v{A1}, s[66:67]")
    for par in range(2): R(f"s_lshl_b32 s{s0+par}, s{s0+par}, 16")
    for par, (Y, d) in enumerate(((Y0, D0), (Y1, D2))):
        for q in range(2):
            for part, dd in enumerate((d, D1)):
                R(f"v_mfma_f32_32x32x16_bf16 {v(dd,16)}, {v(Y+4*q,4)}, {a(BA+8*part+4*q,4)}, {'0' if q==0 else v(dd,16)}")
        twiddle1(R, d, D1, TW, TW + 16, TT, True)
        R(f"v_fmac_f32 v{d}, s{s0+par}, v{A0}")
        for i in range(16): R(f"v_cvt_pk_bf16_f32 v{D1+i}, v{d+i}, v{D1+i}")
        for q in range(4):
            R(f"v_mfma_f32_32x32x16_bf16 {v(d,16)}, {v(D1+4*q,4)}, {a(BB+4*q,4)}, {'0' if q==0 else v(d,16)}")
    s0 = F.S_YR
    for rw in range(2):
        for q in range(2):
            for i in range(4):
                j = 8 * q + 2 * i
                t = Y0 + 2 * i
                for e in range(2): R(f"v_{'sub' if rw else 'add'}_f32 v{t+e}, v{D0+j+e}, v{D2+j+e}")
            for i in range(4): R(f"v_cvt_pk_bf16_f32 v{D1+8*rw+4*q+i}, v{Y0+2*i}, v{Y0+2*i+1}")
            R(f"buffer_store_dwordx4 {v(D1+8*rw+4*q,4)}, v{VS}, {F.WS}, s{s0} offen offset:{q*1024} sc1", "yst")
        if rw == 0: R(f"s_add_u32 s{s0}, s{s0}, {1024*2048}")

def plain(P, L):
    for it in L:
        if isinstance(it, str): P(it)
        elif isinstance(it, tuple): P(it[0])
```

```python
from common import *
from stream import *
from rows import DROW, k2off, sincos_pack, twiddle, wave_reduce
import fused as F

class Inter:
    def __init__(s, P): s.P = P; s.side = []; s.gap = 8; s.n = 0; s.lock = False
    def push(s, L, sink): s.side += [(t, sink) for t in L]
    def one(s):
        while s.side:
            t, sink = s.side.pop(0)
            h = s.P(t)
            if h.kind == "vmem":
                sink.append(h); break
    def flush(s):
        while s.side: s.one()
    def __call__(s, text):
        h = s.P(text)
        s.n += 2 if text.split()[0] in TRANS else (8 if text.startswith("v_mfma") else 1)
        if s.side and not s.lock and s.n >= s.gap:
            s.n = 0; s.one()
        return h
    def __getattr__(s, k): return getattr(s.P, k)

def stage_addr3(R, A0, A1, AP, s0, swave, base, t):
    def pos(d, src):
        R(f"v_bfe_u32 v{t+1}, v{src}, 1, 2")
        R(f"v_bfe_u32 v{A0}, v{src}, 3, 2")
        R(f"v_and_b32 v{d}, 1, v{src}")
        R(f"v_lshl_add_u32 v{d}, v{A0}, 1, v{d}")
        R(f"v_lshl_add_u32 v{d}, v{t+1}, 3, v{d}")
        R(f"v_xor_b32 v{d}, s{s0}, v{d}")
        R(f"v_lshl_add_u32 v{d}, v{d}, 4, v{A1}")
    R(f"s_lshl_b32 s{s0}, s{swave}, 2")
    R(f"s_add_u32 s{s0}, s{s0}, {base}")
    R(f"v_lshrrev_b32 v{A1}, 5, v0")
    R(f"v_lshlrev_b32 v{A1}, 11, v{A1}")
    R(f"v_add_u32 v{A1}, s{s0}, v{A1}")
    R(f"s_bfe_u32 s{s0}, s2, 0x30003")
    R(f"v_add_u32 v{t}, -1, v0")
    pos(AP, 0)
    pos(t, t)
    R(f"v_and_b32 v{t+1}, 31, v0")
    R(f"v_cmp_eq_u32 vcc, 0, v{t+1}")
    R(f"v_add_u32 v{t+1}, -1024, v{t}")
    R(f"v_cndmask_b32 v{A0}, v{t}, v{t+1}, vcc")
    R(f"v_cmp_eq_u32 vcc, 0, v0")
    R(f"v_add_u32 v{t+1}, 16384, v{A0}")
    R(f"v_cndmask_b32 v{A1}, v{A0}, v{t+1}, vcc")

ST = 54
LROW, LSTAGE = F.L_AUX, F.L_AUX + 0x4000

def fwd_issue(P):
    st = ST
    P(f"s_lshr_b32 s{st}, s2, 3")
    P(f"s_and_b32 s{st+1}, s2, 7")
    P(f"s_lshl_b32 s{st+1}, s{st+1}, 2")
    P(f"s_add_u32 s{st+1}, s{st+1}, s{F.S_WAVE}")
    P(f"s_lshl_b32 s{st+1}, s{st+1}, 5")
    P(f"s_add_u32 s{st+2}, s{st+1}, s{st}")
    P(f"s_add_u32 m0, s{F.S_LW}, {LROW}")
    P(f"s_lshl_b32 s{st+1}, s{st+2}, 11")
    P(f"s_add_u32 s{st+3}, s{st+1}, {1024*2048-2048}")
    return [f"buffer_load_dwordx4 v{F.V_L16}, s[{F.S_X}:{F.S_X+3}], s{st+1+2*(j//2)} offen offset:{j*1024} lds" for j in range(4)]

B1, TW, A2, X, D, PK, T = 64, 80, 112, 128, 144, 208, 240
A0, A1, RA, AP = 60, 61, 62, 59

def fwd_consts(P):
    st = ST
    P(f"v_and_b32 v{T+8}, 31, v0")
    P(f"v_cvt_f32_u32 v{T+8}, v{T+8}")
    P(f"v_lshrrev_b32 v{T+9}, 5, v0")
    P(f"v_cvt_f32_u32 v{T+9}, v{T+9}")
    P(f"v_mul_f32 v{T+10}, {hexf(1/32)}, v{T+8}")
    P(f"v_mul_f32 v{T+11}, v{T+10}, v{T+9}")
    P(f"v_mul_f32 v{T+11}, {hexf(8.0)}, v{T+11}")
    for q in range(2):
        for jj in range(4):
            for e in range(2):
                k = 16 * q + 2 * jj + e
                if k == 0: P(f"v_mov_b32 v{T+e}, v{T+11}")
                else: P(f"v_fmamk_f32 v{T+e}, v{T+10}, {hexf(float(k))}, v{T+11}")
            P(f"v_cos_f32 v{T+2}, v{T}"); P(f"v_cos_f32 v{T+3}, v{T+1}")
            P(f"v_sin_f32 v{T+4}, v{T}"); P(f"v_sin_f32 v{T+5}, v{T+1}")
            P(f"v_cvt_pk_bf16_f32 v{B1+4*q+jj}, v{T+2}, v{T+3}")
            P(f"v_cvt_pk_bf16_f32 v{B1+8+4*q+jj}, -v{T+4}, -v{T+5}")
    P(f"v_bfe_u32 v{T}, v0, 2, 2")
    P(f"v_lshrrev_b32 v{T+1}, 5, v0")
    P(f"v_lshl_add_u32 v{T}, v{T+1}, 3, v{T}")
    P(f"v_lshlrev_b32 v{T}, 6, v{T}")
    P(f"v_bfe_u32 v{T+1}, v0, 4, 1")
    P(f"v_lshl_add_u32 v{T}, v{T+1}, 5, v{T}")
    P(f"v_and_b32 v{T+1}, 3, v0")
    P(f"v_lshl_add_u32 v{T}, v{T+1}, 3, v{T}")
    P(f"s_add_u32 s{st+3}, s{F.S_LW}, {LROW}")
    P(f"v_add_u32 v{RA}, s{st+3}, v{T}")
    P(f"v_mov_b32 v{T+13}, 0x3f803f80")
    P(f"v_mul_f32 v{T+10}, {hexf(1/1024)}, v{T+8}")
    P(f"v_mul_f32 v{T+11}, v{T+10}, v{T+9}")
    P(f"v_mul_f32 v{T+11}, 4.0, v{T+11}")
    for i in range(16):
        t = T + (i % 2)
        if DROW[i] == 0: P(f"v_mov_b32 v{t}, v{T+11}")
        else: P(f"v_fmamk_f32 v{t}, v{T+10}, {hexf(float(DROW[i]))}, v{T+11}")
        P(f"v_cos_f32 v{TW+i}, v{t}"); P(f"v_sin_f32 v{TW+16+i}, v{t}")
    P(f"v_bfe_u32 v{T+10}, v0, 1, 4")
    P(f"v_cvt_f32_u32 v{T+10}, v{T+10}")
    P(f"v_mul_f32 v{T+10}, {hexf(1/32)}, v{T+10}")
    P(f"v_and_b32 v{T+12}, 1, v0")
    P(f"v_cvt_f32_u32 v{T+12}, v{T+12}")
    P(f"v_mul_f32 v{T+11}, v{T+10}, v{T+9}")
    P(f"v_mul_f32 v{T+11}, 4.0, v{T+11}")
    P(f"v_fmac_f32 v{T+11}, {hexf(0.25)}, v{T+12}")
    sincos_pack(P, A2, T + 11, T + 10, DROW, T)
    stage_addr3(P, A0, A1, AP, st + 1, F.S_WAVE, LSTAGE, T)
    P(f"v_fma_f32 v{T+12}, v{T+12}, -2.0, 1.0")

def fwd_data(P, h, stamp=lambda P, k: None):
    st = ST; sg = st + 4; WS = F.WS
    P.wait_for(h)
    stamp(P, 'r0')
    for rw in range(2):
        for q in range(2):
            for hh in range(2):
                P(f"ds_read_b64_tr_b16 {v(X+8*rw+4*q+2*hh,2)}, v{RA} offset:{rw*2048+q*1024+hh*256}")
    for rw in range(2):
        for j in range(8):
            x = X + 8 * rw + j
            P(f"v_dot2_f32_bf16 v{T+3*rw}, v{x}, v{T+13}, {'0' if j == 0 else v(T+3*rw)}")
            P(f"v_dot2_f32_bf16 v{T+3*rw+1}, v{x}, v{x}, {'0' if j == 0 else v(T+3*rw+1)}")
    mf = []
    for rw in range(2):
        for q in range(2):
            for part in range(2):
                d = D + 32 * rw + 16 * part
                mf.append(f"v_mfma_f32_32x32x16_bf16 {v(d,16)}, {v(X+8*rw+4*q,4)}, {v(B1+8*part+4*q,4)}, {'0' if q==0 else v(d,16)}")
    R = Rec()
    for rw in range(2): R(f"v_mul_f32 v{T+3*rw+2}, v{T+3*rw}, v{T+12}")
    wave_reduce(R, [T + i for i in range(6)])
    for i in range(6): R(f"v_readlane_b32 s{sg+i}, v{T+i}, 63")
    L = R.L
    for i, m in enumerate(mf):
        P(m)
        for t_ in L[6 * i: 6 * i + 6]: P(t_)
    P(f"v_cmp_gt_f32 vcc, 0, v{T+12}")
    P(f"v_mov_b32 v{T}, s{sg}"); P(f"v_mov_b32 v{T+1}, s{sg+3}")
    P(f"v_mov_b32 v{T+2}, s{sg+1}"); P(f"v_mov_b32 v{T+3}, s{sg+4}")
    P(f"v_cndmask_b32 v{T}, v{T}, v{T+1}, vcc")
    P(f"v_cndmask_b32 v{T+2}, v{T+2}, v{T+3}, vcc")
    P(f"v_cmp_eq_f32 vcc, 0, v{T+8}")
    P(f"v_mov_b32 v{T+4}, {hexf(-1/32)}")
    P(f"v_mul_f32 v{T}, {hexf(-1/1024)}, v{T}")
    P(f"v_mul_f32 v{T+2}, {hexf(1/1024)}, v{T+2}")
    P(f"v_cndmask_b32 v{T+4}, 0, v{T+4}, vcc")
    P(f"v_fma_f32 v{T+2}, -v{T}, v{T}, v{T+2}")
    P(f"v_mul_f32 v{T+6}, s{sg+3}, v{T+4}")
    P(f"v_max_f32 v{T+2}, 0, v{T+2}")
    P(f"v_mul_f32 v{T+4}, s{sg}, v{T+4}")
    P(f"v_add_f32 v{T+2}, {hexf(1e-5)}, v{T+2}")
    P(f"v_rsq_f32 v{T+3}, v{T+2}")
    for rw in range(2):
        d = D + 32 * rw
        twiddle(P, d, d + 16, TW, TW + 16, T + 8, False, corr=T + 4 + 2 * rw)
        for i in range(16): P(f"v_cvt_pk_bf16_f32 v{PK+16*rw+i}, v{d+i}, v{d+16+i}")
    S = B1
    R = Rec()
    R(f"v_readlane_b32 s{sg+6}, v{T+3}, 0")
    R(f"v_readlane_b32 s{sg+7}, v{T+3}, 1")
    R(f"v_mul_f32 v{S+6}, v{T+2}, v{T+3}")
    R(f"v_cvt_pk_bf16_f32 v{S+1}, v{T}, v{T}")
    R(f"v_cvt_pk_bf16_f32 v{S}, v{S+6}, v{S+6}")
    R(f"v_and_b32 v{S+3}, 0xffff0000, v{S+1}")
    R(f"v_and_b32 v{S+2}, 0xffff0000, v{S}")
    R(f"v_sub_f32 v{S+3}, v{T}, v{S+3}")
    R(f"v_sub_f32 v{S+4}, v{S+6}, v{S+2}")
    R(f"v_mul_f32 v{S+5}, {hexf(GELU_C0)}, v{T+3}")
    R(f"v_cvt_pk_bf16_f32 v{S}, v{S+2}, v{S+4}")
    R(f"v_cvt_pk_bf16_f32 v{S+2}, v{S+3}, v{S+3}")
    R(f"v_mov_b32 v{S+3}, 0")
    R(f"v_mul_f32 v{S+4}, v{T+3}, v{T+3}")
    R(f"v_mov_b32 v{S+7}, 0")
    R(f"v_mul_f32 v{S+4}, v{S+4}, v{S+5}")
    R(f"v_lshlrev_b32 v{S+8}, 15, v0")
    R(f"v_mul_f32 v{S+4}, {hexf(0.044715)}, v{S+4}")
    R(f"s_lshl_b32 s{st+1}, s{st+2}, 5")
    R(f"s_add_u32 s{st+1}, s{st+1}, {F.W_STATS}")
    R(f"v_mov_b32 v{T}, s{sg+6}"); R(f"v_mov_b32 v{T+2}, s{sg+7}")
    R(f"s_add_u32 s{st+3}, s{F.S_LW}, {LSTAGE}")
    R(f"v_add_u32 v{T+8}, s{st+3}, v{F.V_L16}")
    R(f"v_lshrrev_b32 v{T+9}, 5, v0")
    R(f"v_and_b32 v{T+10}, 31, v0")
    R(f"v_lshlrev_b32 v{T+10}, 4, v{T+10}")
    R(f"v_lshl_add_u32 v{RA}, v{T+9}, 17, v{T+10}")
    R(f"s_lshl_b32 s{st+3}, s{F.S_WAVE}, 20")
    R(f"s_lshl_b32 s{st}, s2, 9")
    R(f"s_add_u32 s{st+3}, s{st+3}, s{st}")
    R(f"s_add_u32 s{st+3}, s{st+3}, {F.W_XBUF}")
    L = R.L
    k = 0
    for q in range(4):
        for rw in range(2):
            d = D + 16 * rw
            P(f"v_mfma_f32_32x32x16_bf16 {v(d,16)}, {v(A2+4*q,4)}, {v(PK+16*rw+4*q,4)}, {'0' if q==0 else v(d,16)}")
            for t_ in L[k:k + 5]: P(t_)
            k += 5
    assert k >= len(L)
    hs = []
    P.lock = True
    P(f"s_mov_b64 exec, 3")
    hs.append(P(f"buffer_store_dwordx4 {v(S,4)}, v{S+8}, {WS}, s{st+1} offen sc1"))
    hs.append(P(f"buffer_store_dwordx4 {v(S+4,4)}, v{S+8}, {WS}, s{st+1} offen offset:16 sc1"))
    P(f"s_mov_b64 exec, -1")
    P.lock = False
    for rw in range(2):
        P(f"v_writelane_b32 v{D+16*rw}, s{sg+3*rw+2}, 0")
        P(f"v_writelane_b32 v{D+16*rw+1}, 0, 0")
    for j0 in range(0, 8, 2):
        for j in (j0, j0 + 1): P(f"v_pk_mul_f32 {v(D+16+2*j,2)}, {v(D+16+2*j,2)}, {v(T+2,2)} op_sel_hi:[1,0]")
        for j in (j0, j0 + 1): P(f"v_pk_fma_f32 {v(D+32+2*j,2)}, {v(D+2*j,2)}, {v(T,2)}, {v(D+16+2*j,2)} op_sel_hi:[1,0,1] neg_lo:[0,0,1] neg_hi:[0,0,1]")
        for j in (j0, j0 + 1): P(f"v_pk_fma_f32 {v(D+2*j,2)}, {v(D+2*j,2)}, {v(T,2)}, {v(D+16+2*j,2)} op_sel_hi:[1,0,1]")
        for j in (j0, j0 + 1): P(f"v_cvt_pk_bf16_f32 v{PK+8+j}, v{D+32+2*j}, v{D+33+2*j}")
        for j in (j0, j0 + 1): P(f"v_cvt_pk_bf16_f32 v{PK+j}, v{D+2*j}, v{D+2*j+1}")
        for j in (j0, j0 + 1):
            ad = A1 if j == 0 else A0
            P(f"ds_write_b32 v{ad}, v{PK+8+j} offset:{k2off(j)+512}")
        P(f"ds_write2st64_b32 v{AP}, v{PK+j0}, v{PK+j0+1} offset0:{k2off(j0)//256} offset1:{k2off(j0+1)//256}")
    P(f"s_and_b32 s{st}, s2, 7"); P(f"s_lshl_b32 s{st}, s{st}, 5"); P(f"s_lshr_b32 s{st+1}, s2, 3"); P(f"s_add_u32 s{st}, s{st}, s{st+1}")
    P(f"s_lshl_b32 s{st}, s{st}, 2"); P(f"s_lshl_b32 s{st+1}, s{F.S_WAVE}, 10"); P(f"s_add_u32 s{st}, s{st}, s{st+1}")
    P(f"s_add_u32 s{F.S_RS}, s{st}, {F.W_F1}")
    P.wait(lg=0); P.barrier()
    for u in range(4): P(f"ds_read_b128 {v(D+4*u,4)}, v{T+8} offset:{u*1024}")
    for u in range(4):
        hs.append(P(f"buffer_store_dwordx4 {v(D+4*u,4)}, v{RA}, {WS}, s{st+3} offen sc1"))
        if u < 3: P(f"s_add_u32 s{st+3}, s{st+3}, 0x40000")
    stamp(P, 'r1')
    return hs
```

```python
from common import *

class Gap:
    def __init__(s, n): s.n = n
class At:
    def __init__(s, slot): s.slot = slot
class Bar:
    def __init__(s): s.seen = None
class Fn:
    def __init__(s, f, c=4): s.f = f; s.c = c
class Mark:
    def __init__(s, name): s.name = name
class After:
    def __init__(s, name, d=0): s.name = name; s.d = d

class DmaDone:
    def __init__(s, st): s.st = st

class Rec:
    def __init__(s): s.L = []
    def __call__(s, text, tag=None): s.L.append(text if tag is None else (text, tag))
    def add(s, x): s.L.append(x)

CO = dict(dma=8, st=12, ld=8, dsw=16, br=12, ex=8)
def cost2(text):
    op = text.split()[0]
    if op in TRANS: return 8
    if op.startswith("buffer_") or op.startswith("global_"):
        if "store" in op: return CO["st"] if "x4" in op else 8
        return CO["dma"]
    if op.startswith("ds_write"): return CO["dsw"] if "b128" in op else 8
    if op.startswith("s_cbranch"): return CO["br"]
    if op == "s_nop": return 4 * (int(text.split()[1]) // 4 + 1)
    if "exec" in text: return CO["ex"]
    return 4
def is_vm(text): return text.startswith("buffer_") or text.startswith("global_")

class Stream:
    def __init__(s, P):
        s.P = P; s.slots = []; s.reads = []; s.first = {}; s.ev = {}; s.queues = []; s.tags = {}; s.marks = {}
        s.dma_at_bar = {}
        s.dma_h = {}; s.pre_bar = {}; s.post_bar = {}; s.dq = []; s.nbar = 0; s.boff = {}; s.over = {}; s.force_vm = {}; s.nstamp = lambda P, k: None; s.nvm0 = None
    def add(s, m): s.slots.append(m); return len(s.slots) - 1
    def read(s, st, cons, text): s.reads.append((st, cons, text))
    def event(s, slot, item): s.ev.setdefault(slot, []).append(item)
    def emit(s, it):
        P = s.P
        if isinstance(it, str): return P(it)
        if isinstance(it, tuple):
            h = P(it[0]); s.tags.setdefault(it[1], []).append(h); return h
        if isinstance(it, Fn): return it.f(P)
        if isinstance(it, Mark):
            s.marks[it.name] = P.cur; s.nstamp(P, it.name); return None
        raise ValueError(it)
    def timed(s, name, f):
        def g(P):
            s.nstamp(P, name + "<"); f(P); s.nstamp(P, name + ">")
        return g
    def wait_tag(s, tag): return Fn(s.timed(tag, lambda P: P.wait_for(s.tags[tag])))
    def poll(s, name, regs, stok, rl): return Fn(s.timed(name, lambda P: poll_check(P, regs, stok, rl, lambda: s.nstamp(P, name + "="))), 20)
    def push_dma(s, L, st, gate=-99):
        s.dma_h.setdefault(st, [])
        s.dq += [(t, st, gate) for t in L]
    def spent(s, n1): return sum(cost2(x.text) for x in s.P.out[n1:] if x.kind != "dir")
    def head(s, q, i, tail=False):
        P = s.P
        while q["L"]:
            if not tail and q["hold"] > i: return None
            it = q["L"][0]
            if isinstance(it, Gap):
                q["L"].pop(0); q["hold"] = i + it.n; continue
            if isinstance(it, At):
                if not tail and i < it.slot: return None
                q["L"].pop(0); continue
            if isinstance(it, After):
                if it.name not in s.marks or (not tail and i < s.marks[it.name] + it.d): return None
                q["L"].pop(0); continue
            if isinstance(it, DmaDone):
                if any(x[1] <= it.st for x in s.dq): return None
                q["L"].pop(0); continue
            if isinstance(it, Bar):
                if it.seen is None: it.seen = s.nbar
                if s.nbar == it.seen:
                    if not tail: return None
                    P.wait(lg=0); P.barrier(); s.nbar += 1
                q["L"].pop(0); continue
            if isinstance(it, Mark):
                q["L"].pop(0); s.emit(it); continue
            return it
        return None
    def ready(s, q, it, i):
        if isinstance(it, Fn): return it.c
        text = it if isinstance(it, str) else it[0]
        n, lg, vm = s.P.peek(text)
        if n > 1: return None
        if lg is not None and i - lg < s.lat: return None
        if vm is not None and i - vm < q["vmlat"]: return None
        return cost2(text) + 4 * min(n, 1) + (4 if lg is not None or vm is not None else 0)
    def fill(s, q, i, used, bud, vm_ok, only_vm=False):
        P = s.P
        while True:
            it = s.head(q, i)
            if it is None: break
            text = None if isinstance(it, Fn) else (it if isinstance(it, str) else it[0])
            if text and text.startswith("v_mfma"): break
            vm = bool(text and is_vm(text))
            if only_vm and not vm: break
            if vm and (not vm_ok[0] or used > s.vm_late): break
            c = s.ready(q, it, i)
            if c is None or (used + c > bud and not (c > 12 and used <= 4 and bud >= 20)): break
            n1 = len(P.out)
            q["L"].pop(0); s.emit(it)
            used += s.spent(n1)
            if vm: vm_ok[0] = False
        return used
    def queue(s, L, vmlat=30):
        q = {"L": list(L), "hold": -1, "vmlat": vmlat}; s.queues.append(q); return q
    def bars(s, BOFF, first_stage=0):
        s.bar_at = {st: s.first[st] - s.boff.get(st, BOFF) for st in sorted(s.first) if st > first_stage}
        return s.bar_at
    def run(s, budget=24, LA=10, LAT=4, NB=12, dma_gap=None, barx=None, first_stage=0, stamps=None, PRE=5, vm_late=8, bud16=8):
        P = s.P; n = len(s.slots); bar_at = s.bar_at
        s.lat = LAT; s.vm_late = vm_late
        barpos = {p: st for st, p in bar_at.items()}
        prepos = {p - PRE: st for st, p in bar_at.items()}
        RD = []; lastuse = {}
        for (st, cons, text) in sorted(s.reads, key=lambda x: x[1]):
            dst = text.split()[1].rstrip(",")
            rel = lastuse.get(dst, -99); lastuse[dst] = cons
            dl = cons - 3
            if st is not None:
                if st in bar_at: rel = max(rel, bar_at[st])
                if st + 1 in bar_at: dl = min(dl, bar_at[st + 1] - 2)
            RD.append([rel, min(cons - LA, dl), dl, cons, text])
        rd_h = []
        P.cur = -1
        P.wait_for(s.dma_h[first_stage]); P.barrier(); s.nbar += 1
        if stamps and -1 in stamps: stamps[-1](P)
        while RD and RD[0][1] < 0:
            r_ = RD.pop(0); rd_h.append((r_[3], -1, P(r_[4])))
        P.wait_for([h for c, _, h in rd_h if c == 0])
        last_dma = -10
        for i in range(n):
            P.cur = i
            if stamps and i in stamps: stamps[i](P)
            P(s.slots[i])
            big = "32x32" in s.slots[i]
            if i in prepos:
                st = prepos[i]
                for L, stg in s.dma_at_bar.get(st, []): s.push_dma(L, stg, bar_at[st])
            sub = 0
            while True:
                n0 = len(P.out)
                bud = bud0 = budget(i) if big else bud16
                isbar = i in barpos and sub == 0
                if isbar:
                    st = barpos[i]
                    assert not any(x[1] <= st for x in s.dq), f"dma of stage {st} not issued at its barrier"
                    assert not any(r_[2] < i for r_ in RD[:4])
                    for it in s.pre_bar.get(st, []): s.emit(it)
                    s.nstamp(P, f"b{st}<")
                    if st in s.force_vm:
                        nvm = sum(1 for x in P.out if x.kind == "vmem")
                        if s.nvm0 is None: s.nvm0 = nvm
                        k = min([s.force_vm[st] + nvm - s.nvm0] + [len(P.vm) - 1 - P.vm.index(h) for h in s.dma_h[st] if h in P.vm])
                        P.wait(vm=k, lg=0, force=True)
                    else: P.wait_for(s.dma_h[st] + P.lg)
                    s.nstamp(P, f"b{st}=")
                    P.barrier(); s.nbar += 1
                    s.nstamp(P, f"b{st}>")
                    for it in s.post_bar.get(st, []): s.emit(it)
                    bud = min(bud, s.spent(n0) + barx(i))
                needw = any(c == i + 1 and h in P.lg for c, _, h in rd_h)
                if needw: bud -= 4
                vm_ok = [big and not isbar]
                ndma = sum(1 for x in s.dq if is_vm(x[0]) and x[2] < i)
                if vm_ok[0] and s.dq and is_vm(s.dq[0][0]) and s.dq[0][2] < i and (i - last_dma >= dma_gap(i, ndma, min([p for p in barpos if p > i] + [n]) - i) or sub):
                    t, st, _ = s.dq.pop(0)
                    s.dma_h[st].append(P(t)); last_dma = i; vm_ok[0] = False
                else:
                    for q in s.queues:
                        if vm_ok[0]: s.fill(q, i, 0, bud, vm_ok, only_vm=True)
                kb = 0
                while RD and RD[0][0] <= i and RD[0][1] <= i:
                    w = 2 if "b128" in RD[0][4] else 1
                    urgent = any(r_[2] <= i for r_ in RD[:8])
                    if not urgent and (kb + w > (4 if big else 2) or s.spent(n0) + 4 > bud): break
                    r_ = RD.pop(0); kb += w
                    rd_h.append((r_[3], i, P(r_[4])))
                rd_h = rd_h[-40:]
                if sub == 0:
                    for it in s.ev.get(i, []): s.emit(it)
                while s.dq and not is_vm(s.dq[0][0]) and s.spent(n0) + 4 <= bud:
                    P(s.dq.pop(0)[0])
                used = s.spent(n0)
                for q in s.queues: used = s.fill(q, i, used, bud, vm_ok)
                s.over[i] = s.over.get(i, 0) + max(0, used + (4 if needw else 0) - (24 if big else 8))
                mq = None
                for q in s.queues:
                    it = s.head(q, i)
                    if isinstance(it, str) and it.startswith("v_mfma") and s.ready(q, it, i) is not None: mq = q; break
                if mq is None: break
                P(mq["L"].pop(0)); big = True; sub += 1
            hs = [h for c, _, h in rd_h if c == i + 1 and h in P.lg]
            if hs: P.wait_for(hs + [h for c, sl, h in rd_h if sl <= i + 1 - LAT])
        P.cur = n
        if stamps and n in stamps: stamps[n](P)
        left = [len(q["L"]) for q in s.queues]
        for q in s.queues:
            while True:
                it = s.head(q, n, tail=True)
                if it is None: break
                q["L"].pop(0); s.emit(it)
        assert not any(q["L"] for q in s.queues) and not RD and not s.dq, ([q['L'][:2] for q in s.queues], RD[:2], s.dq[:2], s.marks)
        return left

_npoll = [0]
def poll_check(P, regs, stok, reload, mid=None):
    k = _npoll[0]; _npoll[0] += 1
    def chk():
        L = []
        if len(regs) == 1: L.append(f"v_cmp_ne_u32 vcc, s{stok}, v{regs[0]}")
        else:
            for r_ in regs: L.append(f"v_xor_b32 v{r_}, s{stok}, v{r_}")
            if len(regs) == 3: L.append(f"v_or3_b32 v{regs[0]}, v{regs[0]}, v{regs[1]}, v{regs[2]}")
            else: L.append(f"v_or_b32 v{regs[0]}, v{regs[0]}, v{regs[1]}")
            L.append(f"v_cmp_ne_u32 vcc, 0, v{regs[0]}")
        L.append(f"s_cbranch_vccnz L_spin{k}")
        return L
    for t in chk():
        if mid and t.startswith("s_cbranch"): mid()
        P(t)
    P.label(f"L_back{k}")
    P.tail += [f"L_spin{k}:", "s_cmp_eq_u32 s3, 0", f"s_cbranch_scc1 L_back{k}", "s_sub_u32 s3, s3, 1", "s_sleep 1"] + reload + ["s_waitcnt vmcnt(0)"] + chk() + [f"s_branch L_back{k}"]
```

```python
import sys
from common import *
import rows2, rows3, col2
import fused as F
from stream import *
NAME = "parallel_sum__spectral_gfnet__dense_activation_gelu__prompt"
HEAD = open(f"cdna_kernels/{NAME}.s.ref").read().split("; Override launch")[0]
STAMPS = len(sys.argv) > 2 and sys.argv[2] == "1"
OPT = eval(sys.argv[3]) if len(sys.argv) > 3 else {}
O = dict(gapG=20, gapW=60, preG=3, tF4=44, stY=35, acky=30, m_pre=1, f1gap=150, w2pf=[345, 378, 410, 443])
O.update(OPT)
if "rot" in O: F.ROTC = O["rot"]
F.FAKE = O.get("fake", 0)
F.HPOL = O.get("hpol", " sc1")
WS = F.WS

STG = O.get("st", ["k1", "c0", "r0", "r1", -1, 80, 160, 240, 320, 388, 453, 518, 584, 648, 712, 776, 808, 836, 864, 892, 920, 948, 976, 1004, 1032]) + \
      O.get("stf", ["f1", "f2", "f3", (0, 0), (1, 0), (2, 0), (3, 0), "f5", "f6", "f7"])
class NS:
    def __init__(s, S, names): s.S = S; s.m = {n: i for i, n in enumerate(names)}
    def __call__(s, P, name):
        if name in s.m: s.S(P, s.m[name])
def tok(P):
    P(f"s_and_b32 s{F.S_TOK}, s{F.S_TOK}, -16"); P(f"s_add_u32 s{F.S_TOK}, s{F.S_TOK}, 0x{F.TOKINC:x}")

def rows_inv(S, g0, bar):
    R = Rec()
    R.add(At(g0 + 1)); R.add(After("gelu5"))
    rows2.inv_fetch(R)
    R(f"v_and_b32 v4, 7, v0"); R(f"v_lshlrev_b32 v4, 2, v4")
    R.add(Bar())
    rl = [f"buffer_load_dword v5, v4, {WS}, s{F.S_F4P} offen sc1"]
    R.add(At(bar[O["stY"]] - O["tF4"] - 20)); R(rl[0])
    R.add(Gap(20)); R.add(S.poll("F4", [5], F.S_TOK, rl))
    R.add(Mark("f4c"))
    R.add(Fn(lambda P: S.push_dma(rows2.inv_dma(), O["stY"]), 0))
    S.queues.insert(1, {"L": R.L, "hold": -1, "vmlat": 0})
    R = Rec()
    R.add(After("f4c")); R.add(After("gelu7")); R.add(At(bar[O["stY"]] + 1))
    rows2.inv_data(R)
    R.add(Mark("rows_inv_done"))
    R.add(Gap(O["acky"])); R.add(S.wait_tag("yst")); R(F.flag_store(F.S_F5F)); R.add(Mark("f5"))
    S.queue(R.L, vmlat=0)

def code_pf(P):
    P("s_getpc_b64 s[66:67]")
    P.label("L_pc")
    P(f"s_lshr_b32 s{F.S_T0}, s2, 1"); P(f"s_and_b32 s{F.S_T0}, s{F.S_T0}, 0x3c"); P(f"s_add_u32 s{F.S_T0}, s{F.S_T0}, s{F.S_WAVE}")
    P(f"s_lshl_b32 s{F.S_T0}, s{F.S_T0}, 11")
    P(f"v_and_b32 v55, 15, v0"); P(f"v_lshlrev_b32 v55, 7, v55"); P(f"v_add_u32 v55, s{F.S_T0}, v55")
    P(f"v_min_u32 v55, L_code_end-L_pc-4, v55")
    P(f"global_load_dword v55, v55, s[66:67]")

def w_pf(P):
    P(f"s_lshr_b32 s{F.S_T0}, s2, 3"); P(f"s_lshl_b32 s{F.S_T0}, s{F.S_T0}, 2"); P(f"s_add_u32 s{F.S_T0}, s{F.S_T0}, s{F.S_WAVE}")
    P(f"s_mul_i32 s{F.S_T0}, s{F.S_T0}, {8*2052}")
    P(f"s_and_b32 s{F.S_T1}, s2, 1"); P(f"s_mul_i32 s{F.S_T1}, s{F.S_T1}, 1028"); P(f"s_add_u32 s{F.S_T0}, s{F.S_T0}, s{F.S_T1}")
    P(f"s_lshl_b32 s{F.S_T1}, s{F.S_KQ}, 8"); P(f"s_add_u32 s{F.S_T0}, s{F.S_T0}, s{F.S_T1}")
    P(f"s_and_b32 s{F.S_T1}, s2, 7"); P(f"s_cselect_b32 s{F.S_T1}, 63, 256"); P(f"s_lshl_b32 s{F.S_T1}, s{F.S_T1}, 2")
    P(f"v_and_b32 v53, 3, v0"); P(f"v_bfe_u32 v54, v0, 2, 3"); P(f"v_mul_u32_u24 v54, 2052, v54")
    P(f"v_cmp_eq_u32 vcc, 3, v53"); P(f"v_lshlrev_b32 v53, 7, v53"); P(f"v_min_u32 v53, 252, v53")
    P(f"v_mov_b32 v52, s{F.S_T1}"); P(f"v_cndmask_b32 v53, v53, v52, vcc")
    P(f"v_add3_u32 v54, v53, v54, s{F.S_T0}")
    P(f"global_load_dword v53, v54, s[4:5]")
    P(f"global_load_dword v54, v54, s[6:7]")

def build(name):
    P = Prog()
    S = Probe(*O["probe"]) if "probe" in O else Stamps(STAMPS, 0)
    P(f"s_load_dwordx2 s[{F.S_X}:{F.S_X+1}], s[0:1], 0")
    P(f"s_load_dwordx2 s[{F.S_WS}:{F.S_WS+1}], s[0:1], 80")
    P("s_load_dwordx8 s[8:15], s[0:1], 32")
    P(f"s_load_dwordx2 s[{F.S_OUT}:{F.S_OUT+1}], s[0:1], 64")
    P("s_load_dwordx4 s[4:7], s[0:1], 8")
    S.begin(P)
    N = NS(S, STG)
    P("s_cmp_ge_u32 s2, 256")
    P(f"s_cbranch_scc1 L_end")
    if O.get("scr"):
        P("s_and_b32 s3, s2, 7"); P("s_lshl_b32 s3, s3, 5"); P("s_lshr_b32 s2, s2, 3"); P("s_or_b32 s2, s2, s3")
    P("s_mov_b32 s3, 0x20000")
    F.ids(P)
    if O.get("cpf", 1): code_pf(P)
    P(f"s_mov_b32 s{F.S_X+2}, 0x400000"); P(f"s_mov_b32 s{F.S_X+3}, 0x20000")
    P(f"s_mov_b32 s{F.S_WS+2}, 0x10000000"); P(f"s_mov_b32 s{F.S_WS+3}, 0x20000")
    P(f"s_mov_b32 s{F.S_OUT+2}, 0x400000"); P(f"s_mov_b32 s{F.S_OUT+3}, 0x20000")
    L = rows3.fwd_issue(P)
    FC = Rec(); rows3.fwd_consts(FC)
    n0, n1 = O.get("pre0", 0), O.get("pre1", 100)
    for t in FC.L[:n0]: P(t)
    N(P, "k0")
    P.wait(lg=0)
    N(P, "k1")
    hr = [P(t) for t in L]
    P(f"s_load_dword s{F.S_TOK}, s[{F.S_WS}:{F.S_WS+1}], {F.W_EPOCH}")
    for t in FC.L[n0:n1]: P(t)
    if O.get("wpf", 1): w_pf(P)
    for t in FC.L[n1:]: P(t)
    tok(P)
    N(P, "c0")
    P("s_cmp_ge_u32 s2, 224")
    P(f"s_cbranch_scc1 L_fft")
    vm0, lg0, pend0 = list(P.vm), list(P.lg), getattr(S, "pend", None)
    F.g1_setup_dma(P)
    srd(P, F.S_W, 8, 1024*3584*2)
    srd(P, F.S_B, 10, 3584*2)
    St = Stream(P)
    I = rows3.Inter(P); I.gap = O["gapG"]
    for st in range(4): St.dma_h[st] = []
    for st in range(O["preG"]): I.push(F.dma1(st), St.dma_h[st])
    F.g1_setup_rest(I)
    N(P, "c1")
    hs = rows3.fwd_data(I, hr, stamp=N)
    I.flush()
    for st in range(O["preG"], 4): St.push_dma(F.dma1(st), st)
    o = dict(O); o.update(f1=hs, rows_inv=rows_inv, inv_consts=lambda R: rows2.inv_consts(R, F.blk(4)), entry=S.save)
    St.nstamp = N
    St.force_vm = {24: 8, 25: 4, 26: 0}
    o["ptsd"] = {k: i for k, i in N.m.items() if isinstance(k, int)}
    F.build_stream(P, St, o, stamp=S if S.on else None)
    P(f"s_or_b32 s{F.S_T0}, s2, s{F.S_WAVE}")
    P(f"s_cmp_lg_u32 s{F.S_T0}, 0")
    P(f"s_cbranch_scc1 L_noep")
    P(f"s_mov_b32 s{F.S_T0}, {F.W_EPOCH}")
    P(F.flag_store(F.S_T0))
    P.label(f"L_noep")
    S.end(P, F.S_WAVE, ws=F.S_WS)
    P.label(f"L_end")
    P("s_endpgm")
    P.label(f"L_fft")
    P.vm, P.lg, S.pend = list(vm0), list(lg0), pend0
    P.cur = -1000
    C = col2
    srd(P, F.S_W, 4, 2048*513*2)
    srd(P, F.S_B, 6, 2048*513*2)
    C.col_ids(P); C.w_setup(P)
    I = rows3.Inter(P); I.gap = O["gapW"]
    hw = [[] for _ in range(4)]
    for sl in range(4): I.push(C.w_dma(sl), hw[sl])
    CR = Rec(); C.consts(CR, parts=True)
    parts = CR.parts
    for t in sum(parts[:1 + O["m_pre"]], []): I(t)
    hs = rows3.fwd_data(I, hr, stamp=N)
    rest = sum(parts[1 + O["m_pre"]:], [])
    for k, t in enumerate(rest):
        if k == O["f1gap"]:
            F.flag_regs(P); P.wait_for(hs); P(F.flag_store(F.S_RS))
        I(t)
    I.flush()
    N(P, 'f1')
    C.nyq_dma(P)
    C.w_read_setup(P)
    C.x_setup(P)
    F.hbase(P); F.g2_setup(P); F.g2_setup_b(P)
    P(f"v_lshrrev_b32 v1, 3, v0"); P(f"v_lshlrev_b32 v1, 7, v1"); P(f"v_and_b32 v{F.V_FL}, 7, v0"); P(f"v_lshl_add_u32 v1, v{F.V_FL}, 2, v1")
    P(f"s_lshr_b32 s{F.S_E1}, s{C.S_SF}, 3"); P(f"s_lshl_b32 s{F.S_E1}, s{F.S_E1}, 10"); P(f"s_lshl_b32 s{F.S_T0}, s{F.S_WAVE}, 5")
    P(f"s_add_u32 s{F.S_E1}, s{F.S_E1}, s{F.S_T0}"); P(f"s_add_u32 s{F.S_E1}, s{F.S_E1}, {F.W_F1}")
    rl = [f"buffer_load_dword v{F.V_FL}, v1, {WS}, s{F.S_E1} offen sc1"]
    P(rl[0])
    P.wait_for(hw[3]); P.barrier()
    N(P, 'f2')
    rows2.inv_consts(P, C.BLK[0][0]); F.epi_setup(P)
    for sl in range(4):
        for t in C.w_reads(sl): P(t)
    poll_check(P, [F.V_FL], F.S_TOK, rl)
    P.wait(lg=0); P.barrier()
    N(P, 'f3')
    hx = [[h for h in (P(t) for t in C.x_dma(q)) if h.kind == "vmem"] for q in range(4)]
    C.flush_setup(P)
    P(f"s_lshl_b32 s{F.S_E0}, s{F.S_WAVE}, 2"); P(f"s_lshr_b32 s{F.S_T0}, s{C.S_SF}, 3"); P(f"s_add_u32 s{F.S_E0}, s{F.S_E0}, s{F.S_T0}")
    P(f"s_lshl_b32 s{F.S_E0}, s{F.S_E0}, 7"); P(f"s_and_b32 s{F.S_T0}, s{C.S_SF}, 7"); P(f"s_lshl_b32 s{F.S_T0}, s{F.S_T0}, 2")
    P(f"s_add_u32 s{F.S_E0}, s{F.S_E0}, s{F.S_T0}"); P(f"s_add_u32 s{F.S_E0}, s{F.S_E0}, {F.W_F4}")
    C.pre_main(P)
    P.wait_for(hx[0]); P.barrier()
    extra = {(3, 0): F.dma2_w(24), (3, 7): F.dma2_w(25)}
    C.main(P, hx, extra, stamp=N, BUD=O.get("cbud", 24))
    N(P, 'f5')
    for t in C.flush_reads(3): P(t)
    hy = [P(t) for t in C.flush_stores(3)]
    for t in F.dma2_w(26): P(t)
    for t in F.f3_addr() + F.f3_reload(0): P(t)
    P(f"s_lshl2_add_u32 s{F.S_HB}, s2, s{F.S_WAVE}"); P(f"s_lshl_b32 s{F.S_HB}, s{F.S_HB}, 11"); P(f"s_add_u32 s{F.S_HB}, s{F.S_HB}, {F.W_DUMMY-224*8192}")
    P(f"s_mov_b32 s{F.S_FX}, s{F.S_HB}")
    P(f"v_mov_b32 v{F.V_SO}, 0")
    P.wait_for(hy)
    P(F.flag_store(F.S_E0))
    N(P, 'f6')
    F.f3_check(0).f(P)
    N(P, 'f7')
    for st in range(24, 27):
        for t in F.dma2_h(st): P(t)
    for t in F.dma2_w(27):
        if is_vm(t): break
        P(t)
    S.save(P)
    P.wait(lg=0)
    P("s_branch L_g2_entry")
    return P

out = [HEAD.rstrip("\n")]
out.append(f"; @launch grid=(256,1,1) block=(256,1,1) lds=163840")
if STAMPS: out.append(f"; STAMPS {STG}")
out.append('.amdgcn_target "amdgcn-amd-amdhsa--gfx950"\n.text')
n = NAME + "_kernel"
P = build(n); print(P.count(), "instrs", P.nnop, "nops")
out.append(kernel_header(n) + P.text() + "L_code_end:\n")
out.append('.section .rodata,"a"')
out.append(kernel_desc(n, 512, 256))
open(sys.argv[1], "w").write("\n".join(out) + "\n")
```

```python
import re, struct

def f2u(x):
    return struct.unpack("<I", struct.pack("<f", x))[0]

def hexf(x):
    return "0x%08x" % f2u(x)

def v(i, n=1):
    return f"v{i}" if n == 1 else f"v[{i}:{i+n-1}]"
def a(i, n=1):
    return f"a{i}" if n == 1 else f"a[{i}:{i+n-1}]"
def s(i, n=1):
    return f"s{i}" if n == 1 else f"s[{i}:{i+n-1}]"
def r(i, n=1):
    return v(i, n) if i < 256 else a(i - 256, n)

_reg_re = re.compile(r"^(-|neg\(|abs\(|\|)?\|?([vas])(\d+|\[(\d+):(\d+)\])\|?\)?$")
TRANS = ("v_exp_f32", "v_log_f32", "v_rcp_f32", "v_rsq_f32", "v_sqrt_f32", "v_sin_f32", "v_cos_f32")

def parse_regs(tok):
    tok = tok.strip()
    if tok in ("vcc",): return [("s", "vcc")]
    if tok in ("exec",): return [("s", "exec")]
    if tok == "m0": return [("s", "m0")]
    if tok in ("vcc_lo", "vcc_hi"): return [("s", "vcc")]
    if tok in ("exec_lo", "exec_hi"): return [("s", "exec")]
    m = _reg_re.match(tok)
    if not m: return []
    k = m.group(2)
    if m.group(4) is not None:
        lo, hi = int(m.group(4)), int(m.group(5))
    else:
        lo = hi = int(m.group(3))
    return [(k, i) for i in range(lo, hi + 1)]

class Ins:
    __slots__ = ("text", "op", "kind", "dst", "src", "srcC", "passes", "dpp", "opsel", "wide", "lds_dma", "tag", "laneSel", "nowait", "slot")
    def __init__(self, text):
        self.text = text
        self.slot = -1000
        t = text.split(";")[0].strip()
        parts = t.split(None, 1)
        self.op = op = parts[0]
        rest = parts[1] if len(parts) > 1 else ""
        ops = [x.strip() for x in rest.split(",")] if rest else []
        mods = ""
        if ops:
            lp = ops[-1].split(None, 1)
        ops = []; depth = 0; cur = ""
        for ch in rest:
            if ch == "[": depth += 1
            if ch == "]": depth -= 1
            if ch == "," and depth == 0:
                ops.append(cur.strip()); cur = ""
            else: cur += ch
        if cur.strip(): ops.append(cur.strip())
        if ops:
            lp = ops[-1].split(None, 1)
            ops[-1] = lp[0]
            mods = lp[1] if len(lp) > 1 else ""
        self.dst = []; self.src = []; self.srcC = []; self.passes = 0
        self.dpp = ("_dpp" in op) or ("row_" in mods) or ("quad_perm" in mods)
        self.opsel = ("sdwa" in op) or ("dst_sel" in mods)
        self.wide = False; self.lds_dma = False; self.tag = None; self.laneSel = []; self.nowait = False
        R = parse_regs
        if op.startswith("v_mfma"):
            self.kind = "mfma"
            self.dst = R(ops[0]); self.src = R(ops[1]) + R(ops[2]); self.srcC = R(ops[3])
            self.passes = 8 if "32x32x16" in op else 4
            assert "32x32x16" in op or "16x16x32" in op
        elif op.startswith("v_"):
            self.kind = "valu"
            if op.startswith("v_cmp"):
                self.dst = R(ops[0]); self.src = sum((R(x) for x in ops[1:]), [])
                if op.startswith("v_cmpx"): self.dst += [("s", "exec")]
            elif op.startswith("v_permlane"):
                self.dst = R(ops[0]) + R(ops[1]); self.src = R(ops[0]) + R(ops[1])
            elif op in ("v_readlane_b32",):
                self.dst = R(ops[0]); self.src = R(ops[1]); self.laneSel = R(ops[2])
            elif op in ("v_writelane_b32",):
                self.dst = R(ops[0]); self.src = R(ops[0]) + R(ops[1]); self.laneSel = R(ops[2])
            elif op == "v_nop":
                pass
            else:
                self.dst = R(ops[0]); self.src = sum((R(x) for x in ops[1:]), [])
                if "_co_" in op:
                    self.dst += R(ops[1])
                if op.startswith("v_fmac") or op.startswith("v_dot2c") or self.dpp or op.startswith("v_pk_fmac") or op.startswith("v_mac"):
                    self.src += R(ops[0])
                if op.startswith("v_cndmask") and len(ops) == 3:
                    self.src += [("s", "vcc")]
        elif op.startswith("ds_"):
            self.kind = "lds"
            if op.startswith("ds_read") or op.startswith("ds_bpermute") or op.startswith("ds_swizzle"):
                self.dst = R(ops[0]); self.src = sum((R(x) for x in ops[1:]), [])
                if "d16" in op: self.src += R(ops[0])
            else:
                self.src = sum((R(x) for x in ops), [])
        elif op.startswith("buffer_") or op.startswith("global_"):
            self.kind = "vmem"
            islds = re.search(r"\blds\b", mods) is not None
            if "load" in op and not islds:
                self.dst = R(ops[0]); self.src = sum((R(x) for x in ops[1:]), [])
                if "d16" in op: self.src += R(ops[0])
            elif "atomic" in op and "sc0" in mods:
                self.dst = R(ops[0]); self.src = sum((R(x) for x in ops), [])
            else:
                self.src = sum((R(x) for x in ops), [])
                if islds:
                    self.lds_dma = True; self.src += [("s", "m0")]
                if "store" in op and ("x4" in op or "x3" in op):
                    self.wide = R(ops[0]) if op.startswith("buffer_") else R(ops[1])
        elif op.startswith("s_load") or op.startswith("s_buffer_load") or op in ("s_memtime", "s_memrealtime"):
            self.kind = "smem"
            self.dst = R(ops[0]); self.src = sum((R(x) for x in ops[1:]), [])
        elif op in ("s_waitcnt", "s_nop", "s_barrier", "s_endpgm", "s_setprio", "s_sleep") or op.startswith("s_cbranch") or op == "s_branch":
            self.kind = "ctl"
        elif op.startswith("s_"):
            self.kind = "salu"
            if op.startswith("s_cmp") or op.startswith("s_bitcmp"):
                self.src = sum((R(x) for x in ops), [])
            else:
                self.dst = R(ops[0]); self.src = sum((R(x) for x in ops[1:]), [])
                if "saveexec" in op: self.dst += [("s", "exec")]
        else:
            self.kind = "dir"

    def states(self):
        if self.kind == "dir": return 0
        if self.op == "s_nop":
            return int(self.text.split()[1], 0) + 1
        return 1

class Prog:
    def __init__(self):
        self.out = []
        self.reset_state()
        self.nnop = 0
        self.cur = -1000
        self.tail = []
    def reset_state(self):
        self.vm = []
        self.lg = []
    def raw(self, text):
        self.out.append(Ins(text))
    def label(self, name):
        self.out.append(Ins(name + ":"))
    def comment(self, text):
        i = Ins(".c"); i.text = "; " + text; i.kind = "dir"; self.out.append(i)
    def align(self, p):
        i = Ins(".p2align"); i.text = f".p2align {p}"; i.kind = "dir"; self.out.append(i)
    def _emit_wait(self, vm=None, lg=None):
        parts = []
        if vm is not None:
            vm = min(vm, 63)
            if vm < len(self.vm):
                parts.append(f"vmcnt({vm})"); self.vm = self.vm[len(self.vm) - vm:] if vm else []
        if lg is not None:
            lg = min(lg, 15)
            L = [x for x in self.lg if x.kind != "smem"]
            if lg == 0:
                if self.lg: parts.append("lgkmcnt(0)"); self.lg = []
            elif lg < len(L):
                keep = L[len(L) - lg:]
                parts.append(f"lgkmcnt({lg})"); self.lg = [x for x in self.lg if x.kind == "smem" or x in keep]
        if parts:
            self.out.append(Ins("s_waitcnt " + " ".join(parts)))
    def wait(self, vm=None, lg=None, force=False):
        if force:
            parts = []
            if vm is not None:
                parts.append(f"vmcnt({vm})"); self.vm = self.vm[max(0, len(self.vm) - vm):] if vm else []
            if lg is not None:
                parts.append(f"lgkmcnt({lg})"); self.lg = self.lg[max(0, len(self.lg) - lg):] if lg else []
            self.out.append(Ins("s_waitcnt " + " ".join(parts)))
        else:
            self._emit_wait(vm, lg)
    def wait_for(self, ops):
        if not isinstance(ops, (list, tuple)): ops = [ops]
        vm = lg = None
        for o in ops:
            if o in self.vm:
                n = len(self.vm) - 1 - self.vm.index(o)
                vm = n if vm is None else min(vm, n)
            if o in self.lg:
                n = 0 if o.kind == "smem" else sum(1 for x in self.lg[self.lg.index(o) + 1:] if x.kind != "smem")
                lg = n if lg is None else min(lg, n)
        self._emit_wait(vm, lg)
    def barrier(self):
        self.out.append(Ins("s_barrier"))
    def __call__(self, text):
        ins = Ins(text)
        touched = set(ins.src) | set(ins.srcC) | set(ins.dst) | set(ins.laneSel)
        need = []
        for o in self.vm + self.lg:
            if o.dst and touched.intersection(o.dst):
                need.append(o)
        if need: self.wait_for(need)
        n = self._hazard(ins)
        while n > 0:
            k = min(n, 16)
            self.out.append(Ins(f"s_nop {k-1}")); n -= k; self.nnop += 1
        ins.slot = self.cur
        self.out.append(ins)
        if ins.kind == "vmem": self.vm.append(ins)
        elif ins.kind in ("lds", "smem"): self.lg.append(ins)
        return ins

    def peek(self, text):
        ins = Ins(text)
        touched = set(ins.src) | set(ins.srcC) | set(ins.dst) | set(ins.laneSel)
        lg = [o.slot for o in self.lg if o.dst and touched.intersection(o.dst)]
        vm = [o.slot for o in self.vm if o.dst and touched.intersection(o.dst)]
        return self._hazard(ins), max(lg) if lg else None, max(vm) if vm else None

    def _hazard(self, c):
        need = 0
        dist = 0
        csrc = set(c.src); cC = set(c.srcC); cdst = set(c.dst)
        call = csrc | cC
        for p in reversed(self.out):
            if dist >= 14: break
            if p.kind == "dir":
                continue
            req = 0
            pd = set(p.dst)
            if p.kind == "valu":
                isdot = p.op.startswith("v_dot")
                vg = {x for x in pd if x[0] in "va"}
                sg = {x for x in pd if x[0] == "s"}
                if c.kind == "mfma" and vg & call: req = max(req, 3 if isdot else 2)
                if c.kind == "mfma" and ("s", "exec") in sg: req = max(req, 4)
                if c.kind == "valu":
                    if c.dpp and vg & csrc: req = max(req, 2)
                    if c.dpp and ("s", "exec") in sg: req = max(req, 5)
                    if c.op.startswith("v_permlane") and vg & csrc: req = max(req, 2)
                    if c.op in ("v_readlane_b32", "v_readfirstlane_b32") and vg & csrc: req = max(req, 1)
                    if sg & csrc: req = max(req, 2)
                    if sg & set(c.laneSel): req = max(req, 4)
                    if ("s", "exec") in sg and c.op in ("v_readlane_b32", "v_readfirstlane_b32", "v_writelane_b32"): req = max(req, 4)
                    if p.op in TRANS and vg & csrc: req = max(req, 1)
                    if p.opsel and vg & (csrc | cdst): req = max(req, 1)
                if isdot and vg & (call | cdst):
                    same = (c.op == p.op)
                    if same and c.dst == p.dst and not (vg & set(c.src[:2])): pass
                    else: req = max(req, 3)
                if c.kind == "vmem" and sg & csrc: req = max(req, 5)
            elif p.kind == "mfma":
                big = 12 if p.passes == 8 else 8
                if c.kind == "mfma":
                    if pd & csrc: req = max(req, big)
                    if pd & cC:
                        if not (p.dst == c.srcC and p.passes == c.passes): req = max(req, big - 2)
                    elif pd & cdst: req = max(req, big)
                elif c.kind in ("valu", "vmem", "lds"):
                    if pd & (csrc | cdst): req = max(req, big)
                    if c.kind == "valu" and set(p.srcC) & cdst: req = max(req, 7 if p.passes == 8 else 3)
            elif p.kind == "salu":
                if ("s", "m0") in pd and c.lds_dma: req = max(req, 1)
            elif p.kind == "vmem":
                if p.wide and set(p.wide) & cdst: req = max(req, 2)
            if req - dist > need: need = req - dist
            dist += p.states()
        return need

    def pad(self, n=13):
        self.out.append(Ins(f"s_nop {n-1}"))

    def text(self):
        return "\n".join([i.text for i in self.out] + self.tail) + "\n"
    def count(self):
        return sum(1 for i in self.out if i.kind != "dir")

def kernel_header(name):
    return f".globl {name}\n.p2align 8\n.type {name},@function\n{name}:\n"

def kernel_desc(name, vgpr=256, accum=256, sgpr=102):
    return f""".p2align 6
.amdhsa_kernel {name}
  .amdhsa_next_free_vgpr {vgpr}
  .amdhsa_next_free_sgpr {sgpr}
  .amdhsa_accum_offset {accum}
  .amdhsa_group_segment_fixed_size 0
  .amdhsa_kernarg_size 88
  .amdhsa_user_sgpr_count 2
  .amdhsa_user_sgpr_kernarg_segment_ptr 1
  .amdhsa_system_sgpr_workgroup_id_x 1
.end_amdhsa_kernel
"""
```

```python
from common import *
from stream import *
from rows import DROW
from rows2 import angles, twiddle1
import fused as F

T = 24
V_XA, V_FLD, V_G, V_WD = 2, 10, 12, 40
S_FW = 84
BLK = [[64, 112, 128], [144, 160, 176]]
TW, WQ, FS = 80, 192, 224
FB = 40
AM, AW = 0, 128
S_SF, S_C0, S_C1, S_XG = F.S_XB, F.S_RT, F.S_ROT, F.S_HB

def col_ids(P):
    P(f"s_lshl_b32 s{S_SF}, s{F.S_KQ}, 3")
    P(f"s_bfe_u32 s{S_C0}, s2, 0x20003")
    P(f"s_lshl_b32 s{S_C0}, s{S_C0}, 1")
    P(f"s_add_u32 s{S_SF}, s{S_SF}, s{S_C0}")
    P(f"s_and_b32 s{S_C0}, s2, 1")
    P(f"s_add_u32 s{S_SF}, s{S_SF}, s{S_C0}")

def w_setup(P):
    P(f"v_lshrrev_b32 v{V_WD}, 2, v0")
    P(f"v_mul_u32_u24 v{V_WD}, 2052, v{V_WD}")
    P(f"v_lshrrev_b32 v{V_WD+1}, 4, v0")
    P(f"v_xor_b32 v{V_WD+1}, v{V_WD+1}, v0")
    P(f"v_and_b32 v{V_WD+1}, 3, v{V_WD+1}")
    P(f"v_lshl_add_u32 v{V_WD}, v{V_WD+1}, 4, v{V_WD}")
    for j in range(1, 4): P(f"v_add_u32 v{V_WD+j}, {j*(16*2052-1024)}, v{V_WD}")
    P(f"s_and_b32 s{S_C0}, s{S_SF}, 1")
    P(f"s_mul_i32 s{S_C0}, s{S_C0}, 1028")
    P(f"s_lshr_b32 s{S_C1}, s{S_SF}, 1")
    P(f"s_lshl_b32 s{S_C1}, s{S_C1}, 6")
    P(f"s_add_u32 s{S_C0}, s{S_C0}, s{S_C1}")
    P(f"s_mul_i32 s{S_C1}, s{F.S_WAVE}, {128*2052}")
    P(f"s_add_u32 s{S_C0}, s{S_C0}, s{S_C1}")

def nyq_load(P):
    P(f"s_or_b32 s{S_C1}, s{S_SF}, s{F.S_WAVE}")
    P(f"s_cmp_lg_u32 s{S_C1}, 0")
    P(f"s_cbranch_scc1 L_nonyq")
    t = FS + 16
    P(f"v_and_b32 v{t}, 31, v0"); P(f"v_lshrrev_b32 v{t+1}, 5, v0"); P(f"v_lshl_add_u32 v{t}, v{t+1}, 7, v{t}")
    P(f"v_lshlrev_b32 v{t}, 2, v{t}"); P(f"s_mov_b32 s{S_C1}, {F.W_NQ}")
    for i in range(16): P.raw(f"buffer_load_dword v{FS+i}, v{t}, {F.WS}, s{S_C1} offen offset:{DROW[i]*128} sc1")
    P.label("L_nonyq")
    return sum(1 for x in P.out if x.kind == "vmem")

def nyq_patch(P, n0):
    P(f"s_or_b32 s{F.S_T0}, s{S_SF}, s{F.S_WAVE}")
    P(f"s_cmp_lg_u32 s{F.S_T0}, 0")
    P(f"s_cbranch_scc1 L_nopatch")
    P(f"s_mov_b32 s{F.S_T0}, 0xffff"); P(f"s_mov_b32 s{F.S_T1}, 0x07060302")
    P.raw(f"s_waitcnt vmcnt({sum(1 for x in P.out if x.kind == 'vmem') - n0})")
    for i in range(16):
        P(f"v_bfi_b32 v{WQ+i}, s{F.S_T0}, v{FS+i}, v{WQ+i}")
        P(f"v_perm_b32 v{WQ+16+i}, v{WQ+16+i}, v{FS+i}, s{F.S_T1}")
    P.label("L_nopatch")

def w_dma(slot):
    arr, hf = slot // 2, slot % 2
    S = S_FW + 4 * arr
    L = []
    for u in range(2):
        L.append(f"s_add_u32 m0, s{F.S_LW2}, {slot*32768+u*4096}")
        L.append(f"s_add_u32 s{S_C1}, s{S_C0}, {(hf*512+u*64)*2052}")
        for j in range(4): L.append(f"buffer_load_dwordx4 v{V_WD+j}, s[{S}:{S+3}], s{S_C1} offen offset:{j*1024} lds")
    return L

def w_read_setup(P):
    P(f"v_bfe_u32 v{T}, v0, 2, 2")
    P(f"v_xor_b32 v{T}, s{F.S_WAVE}, v{T}")
    P(f"v_lshlrev_b32 v{T}, 4, v{T}")
    P(f"v_and_b32 v{T+1}, 31, v0")
    P(f"v_lshl_add_u32 v{T}, v{T+1}, 6, v{T}")
    P(f"v_lshrrev_b32 v{T+1}, 5, v0")
    P(f"v_lshl_add_u32 v{V_FLD}, v{T+1}, 13, v{T}")
    P(f"v_add_u32 v{V_FLD+1}, 0x10000, v{V_FLD}")
def w_reads(slot):
    arr, hf = slot // 2, slot % 2
    return [f"ds_read_b128 {a(AW+64*arr+4*i,4)}, v{V_FLD+arr} offset:{DROW[i]*2048}" for i in range(8 * hf, 8 * hf + 8)]

def consts(P, parts=False):
    P.parts = []
    def cut():
        P.parts.append(P.L); P.L = []
    P(f"s_and_b32 s{F.S_T0}, s{S_SF}, 1")
    P(f"v_cvt_f32_u32 v{T+13}, s{F.S_T0}")
    P(f"v_and_b32 v{T+8}, 31, v0")
    P(f"v_cvt_f32_u32 v{T+8}, v{T+8}")
    P(f"v_lshrrev_b32 v{T+9}, 5, v0")
    P(f"v_cvt_f32_u32 v{T+9}, v{T+9}")
    P(f"v_mul_f32 v{T+9}, 4.0, v{T+9}")
    cut()
    def two(base, fwd):
        def e(n, c, s, t):
            P(f"v_cvt_pk_bf16_f32 v{t}, v{c}, {'' if fwd else '-'}v{s}"); P(f"v_cvt_pk_bf16_f32 v{c}, {'-' if fwd else ''}v{s}, v{c}")
            P(f"v_accvgpr_write_b32 a{base+n}, v{t}"); P(f"v_accvgpr_write_b32 a{base+16+n}, v{c}")
        angles(P, DROW, T + 11, T + 10, T, e)
        cut()
    P(f"v_fma_f32 v{T+10}, v{T+8}, 2.0, v{T+13}")
    P(f"v_mul_f32 v{T+10}, {hexf(1/64)}, v{T+10}")
    P(f"v_mul_f32 v{T+11}, v{T+10}, v{T+9}")
    two(AM, True)
    P(f"v_mul_f32 v{T+10}, {hexf(1/2048)}, v{T+13}")
    P(f"v_fmac_f32 v{T+10}, {hexf(1/32)}, v{T+8}")
    P(f"v_mul_f32 v{T+11}, v{T+10}, v{T+9}")
    two(AM + 32, True)
    P(f"v_mul_f32 v{T+10}, {hexf(1/32)}, v{T+8}")
    P(f"v_mul_f32 v{T+12}, v{T+10}, v{T+13}")
    P(f"v_mul_f32 v{T+11}, v{T+10}, v{T+9}")
    P(f"v_fmac_f32 v{T+11}, {hexf(1/64)}, v{T+12}")
    two(AM + 64, False)
    P(f"v_mul_f32 v{T+11}, v{T+10}, v{T+9}")
    P(f"v_fmac_f32 v{T+11}, 0.5, v{T+12}")
    two(AM + 96, False)

def x_setup(P):
    P(f"s_and_b32 s{F.S_T0}, s{F.S_WAVE}, 1")
    P(f"v_lshrrev_b32 v{T}, 3, v0")
    P(f"v_xor_b32 v{T}, s{F.S_T0}, v{T}")
    P(f"v_and_b32 v{T+1}, 7, v0")
    P(f"v_lshlrev_b32 v{T+1}, 4, v{T+1}")
    P(f"v_lshl_add_u32 v{V_G}, v{T}, 9, v{T+1}")
    for j in range(1, 4): P(f"v_add_u32 v{V_G+j}, {j*3072}, v{V_G}")
    P(f"s_lshl_b32 s{S_XG}, s{S_SF}, 17")
    P(f"s_lshl_b32 s{F.S_T0}, s{F.S_WAVE}, 15")
    P(f"s_add_u32 s{S_XG}, s{S_XG}, s{F.S_T0}")
    P(f"s_lshl_b32 s{F.S_T0}, s{F.S_WAVE}, 1")
    P(f"v_and_b32 v{T}, 7, v0")
    P(f"v_xor_b32 v{T}, s{F.S_T0}, v{T}")
    P(f"v_lshlrev_b32 v{T}, 4, v{T}")
    P(f"v_lshrrev_b32 v{T+1}, 2, v0")
    P(f"v_xor_b32 v{T+1}, v{T+1}, v0")
    P(f"v_bfe_u32 v{T+1}, v{T+1}, 3, 1")
    P(f"v_lshl_add_u32 v{T}, v{T+1}, 7, v{T}")
    P(f"v_and_b32 v{T+1}, 31, v0")
    P(f"v_lshl_add_u32 v{V_XA}, v{T+1}, 10, v{T}")
    P(f"v_xor_b32 v{V_XA+1}, 16, v{V_XA}")
    P(f"v_add_u32 v{V_XA+2}, 0x10000, v{V_XA}")
    P(f"v_add_u32 v{V_XA+3}, 0x10000, v{V_XA+1}")

def flush_setup(P):
    P(f"v_add_u32 v{V_FLD}, s{F.S_LW2}, v{F.V_L16}")
    P(f"v_add_u32 v{V_FLD+1}, 0x10000, v{V_FLD}")

def x_dma(q):
    L = []
    for u in range(2):
        L.append(f"s_add_u32 m0, s{F.S_LW2}, {q*32768+u*4096}")
        L.append(f"s_add_u32 s{S_C1}, s{S_XG}, {F.W_XBUF+q*128+u*16384}")
        for j in range(4): L.append(f"buffer_load_dwordx4 v{V_G+j}, {F.WS}, s{S_C1} offen offset:{j*1024} sc1 lds")
    return L

def flush_reads(q):
    return [f"ds_read_b128 {v(FS+4*j,4)}, v{V_FLD+q//2} offset:{(q%2)*32768+j*1024}" for j in range(8)]
def flush_stores(q):
    L = []
    for u in range(2):
        L.append(f"s_add_u32 s{S_C1}, s{S_XG}, {F.W_YBUF+q*128+u*16384}")
        for j in range(4): L.append(f"buffer_store_dwordx4 {v(FS+16*u+4*j,4)}, v{V_G+j}, {F.WS}, s{S_C1} offen offset:{j*1024} sc1")
    return L

def mm(re, im, data, mat, data_is_a):
    L = []
    for q in range(4):
        for part, d in enumerate((re, im)):
            x, m = v(data + 4 * q, 4), a(mat + 16 * part + 4 * q, 4)
            A, B = (x, m) if data_is_a else (m, x)
            L.append(f"v_mfma_f32_32x32x16_bf16 {v(d,16)}, {A}, {B}, {'0' if q == 0 else v(d,16)}")
    return L
def pack(re, im): return [f"v_cvt_pk_bf16_f32 v{im+i}, v{re+i}, v{im+i}" for i in range(16)]
def v_tw(re, im, conj):
    R = Rec(); twiddle1(R, re, im, TW, TW + 16, T, conj); return R.L + pack(re, im)
def v_filter(re, im, e):
    L = []
    for j0 in range(0, 16, 2):
        t = T + 2 + 4 * ((j0 // 2) % 2)
        for k in range(2):
            for arr in range(2):
                src = WQ + 16 * arr + j0 + k
                L.append(f"v_lshlrev_b32 v{t+2*arr+k}, 16, v{src}" if e == 0 else f"v_and_b32 v{t+2*arr+k}, 0xffff0000, v{src}")
        for k in range(2): L.append(f"v_mul_f32 v{T+k}, v{re+j0+k}, v{t+2+k}")
        for k in range(2): L.append(f"v_mul_f32 v{re+j0+k}, v{re+j0+k}, v{t+k}")
        for k in range(2): L.append(f"v_fma_f32 v{re+j0+k}, -v{im+j0+k}, v{t+2+k}, v{re+j0+k}")
        for k in range(2): L.append(f"v_fma_f32 v{im+j0+k}, v{im+j0+k}, v{t+k}, v{T+k}")
    return L + pack(re, im)
def w_fill(q): return [f"v_accvgpr_read_b32 v{WQ+16*arr+i}, a{AW+64*arr+4*i+q}" for arr in range(2) for i in range(16)]
def xreads(q, e, dst): return [f"ds_read_b128 {v(dst+4*k,4)}, v{V_XA+e+2*(q//2)} offset:{(q%2)*32768+k*256}" for k in range(4)]
def xwrites(q, e, src): return [f"ds_write_b128 v{V_XA+e+2*(q//2)}, {v(src+4*k,4)} offset:{(q%2)*32768+k*256}" for k in range(4)]

def fcost(t):
    if isinstance(t, Fn): return t.c
    if t.startswith("ds_write") or t.startswith("buffer_store"): return 16
    if t.startswith("buffer_load"): return 8
    return 4

def cmul(re, im, c, sn, conj, n_plain):
    pk = []; pl = []
    npk = 8 - n_plain
    for g in range(0, npk, 2):
        js = [2 * p for p in range(g, min(g + 2, npk))]
        tt = {j: v(T + 2 * k, 2) for k, j in enumerate(js)}
        for j in js: pk.append(f"v_pk_mul_f32 {tt[j]}, {v(re+j,2)}, {v(sn+j,2)}")
        for j in js: pk.append(f"v_pk_mul_f32 {v(re+j,2)}, {v(re+j,2)}, {v(c+j,2)}")
        for j in js: pk.append(f"v_pk_fma_f32 {v(re+j,2)}, {v(im+j,2)}, {v(sn+j,2)}, {v(re+j,2)}" + (" neg_lo:[1,0,0] neg_hi:[1,0,0]" if conj else ""))
        for j in js: pk.append(f"v_pk_fma_f32 {v(im+j,2)}, {v(im+j,2)}, {v(c+j,2)}, {tt[j]}" + ("" if conj else " neg_lo:[0,0,1] neg_hi:[0,0,1]"))
    for j0 in range(2 * npk, 16, 2):
        for e in range(2): pl.append(f"v_mul_f32 v{T+e}, v{re+j0+e}, v{sn+j0+e}")
        for e in range(2): pl.append(f"v_mul_f32 v{re+j0+e}, v{re+j0+e}, v{c+j0+e}")
        for e in range(2): pl.append(f"v_fma_f32 v{re+j0+e}, {'-' if conj else ''}v{im+j0+e}, v{sn+j0+e}, v{re+j0+e}")
        for e in range(2): pl.append(f"v_fma_f32 v{im+j0+e}, v{im+j0+e}, v{c+j0+e}, {'' if conj else '-'}v{T+e}")
    return pk, pl

def merge(A, B):
    G = []; cur = []
    for t in B:
        cur.append(t)
        if not (isinstance(t, str) and t.startswith("s_")): G.append(cur); cur = []
    if cur: G.append(cur)
    out = []; k = 0
    for i, t in enumerate(A):
        while k < len(G) and k * len(A) <= i * len(G): out += G[k]; k += 1
        out.append(t)
    for g in G[k:]: out += g
    return out

def step2(P, M, mul, misc, head=(), BUD=24):
    fixed = sum(fcost(t) for t in misc)
    if mul:
        re, im = mul[0], mul[1]
        n = max(0, min(8, (8 * BUD - fixed - 64 + 8) // 32))
        pk, pl = cmul(*mul, n)
        V = merge(pl + pack(re, im), misc)
    else: pk, V = [], list(misc)
    for t in head: t.f(P) if isinstance(t, Fn) else P(t)
    for t in pk: P(t)
    for k, m in enumerate(M):
        P(m); used = 0
        while V and (used + fcost(V[0]) <= BUD or used == 0 or k == len(M) - 1):
            it = V.pop(0); used += fcost(it)
            it.f(P) if isinstance(it, Fn) else P(it)

def pre_main(P, n0):
    nyq_patch(P, n0)
    for i in range(32): P(f"v_lshlrev_b32 v{FS+i}, 16, v{WQ+i}")

def main(P, hx, extra, pre_end, stamp=lambda P, k: None, BUD=24):
    blk = [list(BLK[0]), list(BLK[1])]
    U0 = FS
    def bar(q):
        def f(P):
            P.wait(lg=0)
            if q < 4: P.wait_for(hx[q])
            P.barrier()
        return Fn(f, 12)
    un0 = [f"v_lshlrev_b32 v{U0+i}, 16, v{WQ+i}" for i in range(32)]
    un1 = [f"v_and_b32 v{WQ+i}, 0xffff0000, v{WQ+i}" for i in range(32)]
    for e in range(2):
        for t in xreads(0, e, blk[e][2]): P(t)
    carry = []
    def fl(q, s):
        L = []
        if s == 0: q -= 1; s = 8
        if q < 1: return L
        st = [0, 1] if s == 2 else [s - 1] if s > 2 else []
        rd = [0, 1] if s == 1 else [s] if s < 8 else []
        for j in st:
            if j % 4 == 0: L.append(f"s_add_u32 s{S_C0}, s{S_XG}, {F.W_YBUF+(q-1)*128+(j//4)*16384}")
            L.append(f"buffer_store_dwordx4 {v(FB+4*(j%4),4)}, v{V_G+j%4}, {F.WS}, s{S_C0} offen offset:{(j%4)*1024} sc1")
        for j in rd: L.append(f"ds_read_b128 {v(FB+4*(j%4),4)}, v{V_FLD+(q-1)//2} offset:{((q-1)%2)*32768+j*1024}")
        return L
    for q in range(4):
        (pa, qa, ra), (pb, qb, rb) = blk
        ex = lambda s: ([bar(q + 1)] if s == (1 if q else 6) else []) + fl(q, s) + list(extra.get((q, s), []))
        ua, ub = (un0[:16], un0[16:]) if q else ([], [])
        st2 = lambda M, mul, misc: step2(P, M, mul, misc, BUD=BUD)
        stamp(P, (q, 0))
        st2(mm(pa, qa, ra, AM, True), None, merge(carry, ex(0)))
        stamp(P, (q, 1))
        st2(mm(pb, qb, rb, AM, True), (pa, qa, TW, TW + 16, False), merge(ua, ex(1)))
        stamp(P, (q, 2))
        st2(mm(pa, ra, qa, AM + 32, False), (pb, qb, TW, TW + 16, False), merge(ub, ex(2)))
        stamp(P, (q, 3))
        st2(mm(pb, rb, qb, AM + 32, False), (pa, ra, U0, U0 + 16, True), merge(un1, ex(3)))
        stamp(P, (q, 4))
        st2(mm(pa, qa, ra, AM + 64, True), (pb, rb, WQ, WQ + 16, True), ex(4))
        stamp(P, (q, 5))
        st2(mm(pb, qb, rb, AM + 64, True), (pa, qa, TW, TW + 16, True), ex(5))
        stamp(P, (q, 6))
        st2(mm(pa, ra, qa, AM + 96, False), (pb, qb, TW, TW + 16, True), ex(6))
        nx = q < 3
        wf = w_fill(q + 1) if nx else []
        stamp(P, (q, 7))
        po = lambda re, im, e: sum(([*pack(re, im)[4*k:4*k+4], xwrites(q, e, im)[k]] for k in range(4)), [])
        st2(mm(pb, rb, qb, AM + 96, False), None, ex(7) + wf[:8] + (xreads(q + 1, 0, qa) if nx else []) + wf[8:12] + po(pa, ra, 0))
        carry = wf[12:20] + (xreads(q + 1, 1, qb) if nx else []) + wf[20:24] + po(pb, rb, 1)
        if nx: extra[(q + 1, 1)] = wf[24:] + list(extra.get((q + 1, 1), []))
        blk = [[pa, ra, qa], [pb, rb, qb]]
    for t in fl(4, 0) + carry: P(t)
    pre_end(P)
    P.wait(lg=0); P.barrier()
```

```python
from common import *
from stream import *

W_EPOCH = 0x0
W_NQ = 0x1000
W_STATS = 0x10000
W_F1 = 0x20000
W_F5 = 0x40000
W_F4 = 0x60000
W_F3 = 0x80000
W_DUMMY = 0x180000
W_XBUF, W_YBUF, W_YROW, W_PART, W_H = 0x200000, 0x600000, 0xA00000, 0xE00000, 0x1E00000
HT = 57344
TOKINC = 0x9E3779B0
L_AUX = 0x20000
L_ST = L_AUX
L_Y = L_AUX + 0x4000

S_X, S_W, S_WS, S_B, S_OUT = 16, 20, 24, 28, 32
(S_WAVE, S_MT, S_KQ, S_J, S_RT, S_XB, S_XB1, S_WB, S_HB, S_T0, S_T1, S_LW, S_LW2, S_XO, S_WO, S_ROT, S_KB, S_TOK,
 S_H1, S_HA, S_HB0, S_HB1, S_HB2, S_F3, S_NEED, S_E0, S_E1, S_FX) = range(36, 64)
S_RS = 64
S_X2 = 4
S_K0 = 8
S_M16, S_XD = 72, 74
S_SP, S_SFL, S_OO, S_YO, S_B2, S_F5P, S_F4P, S_YD, S_YR, S_F5F = 68, 72, 76, 77, 78, 79, 80, 81, 82, 83
P_X, P_WS, P_W1, P_W2, P_OUT = 4, 6, 8, 12, 102

V_DX, V_DW, V_RX, V_RW, V_L16, V_SO, V_FL = 2, 6, 10, 18, 20, 22, 23
V_ONE, V_CS, V_AUG, V_T, V_PK, V_B, V_CT, V_BA, V_ACC = 24, 28, 32, 36, 48, 64, 112, 120, 128
V_TOK, V_L0, V_H1 = 56, 57, 63
NB = 12
def blk(t): return V_ACC + 16 * t
def acc1(t): return blk(t)
def acc2(t): return blk([0, 1, 2, 3, 7, 0, 1, 2][t])
WS = f"s[{S_WS}:{S_WS+3}]"

def ids(P):
    P("v_lshrrev_b32 v1, 6, v0")
    P(f"v_readfirstlane_b32 s{S_WAVE}, v1")
    P("v_and_b32 v0, 63, v0")
    P(f"s_and_b32 s{S_T0}, s2, 1")
    P(f"s_lshl_b32 s{S_T0}, s{S_T0}, 2")
    P(f"s_bfe_u32 s{S_T1}, s2, 0x20003")
    P(f"s_add_u32 s{S_MT}, s{S_T0}, s{S_T1}")
    P(f"s_bfe_u32 s{S_KQ}, s2, 0x20001")
    P(f"s_lshr_b32 s{S_J}, s2, 5")
    P(f"s_lshl_b32 s{S_LW}, s{S_WAVE}, 12")
    P(f"s_lshl_b32 s{S_LW2}, s{S_WAVE}, 13")
    P(f"v_lshlrev_b32 v{V_L16}, 4, v0")

def w_dma_voff(P, stride, T, base=None):
    P(f"v_lshrrev_b32 v{T}, 4, v0")
    P(f"v_lshlrev_b32 v{T+1}, 2, v{T}")
    P(f"v_and_b32 v{T+2}, 15, v0")
    P(f"v_xor_b32 v{T+1}, v{T+1}, v{T+2}")
    P(f"v_mul_u32_u24 v{T}, {stride}, v{T}")
    P(f"v_lshl_add_u32 v{V_DW}, v{T+1}, 4, v{T}")
    if base is not None: P(f"v_add_u32 v{V_DW}, s{base}, v{V_DW}")
    for j in range(1, 4):
        P(f"v_add_u32 v{V_DW+j}, {j*(4*stride-1024)}, v{V_DW}")

FAKE = 0
HPOL = " sc1"
ROTC = [f"s_add_u32 s{S_ROT}, s{S_MT}, s{S_J}", f"s_and_b32 s{S_ROT}, s{S_ROT}, 1", f"s_lshl_b32 s{S_ROT}, s{S_ROT}, 3"]
def g1_setup_dma(P):
    T = V_T
    P(f"s_lshl_b32 s{S_RT}, s{S_KQ}, 1")
    P(f"s_add_u32 s{S_RT}, s{S_RT}, 2")
    P("v_lshrrev_b32 v1, 3, v0")
    P(f"v_lshrrev_b32 v{T}, 4, v0")
    P(f"v_and_b32 v{T+1}, 7, v0")
    P(f"v_xor_b32 v{T+1}, v{T+1}, v{T}")
    P(f"v_lshlrev_b32 v1, 11, v1")
    P(f"v_lshl_add_u32 v{V_DX}, v{T+1}, 4, v1")
    P(f"v_xor_b32 v{V_DX+1}, 64, v{V_DX}")
    P(f"v_add_u32 v{V_DX+1}, {8*2048-1024}, v{V_DX+1}")
    P(f"v_add_u32 v{V_DX+2}, {16*2048-2048}, v{V_DX}")
    P(f"v_add_u32 v{V_DX+3}, {16*2048-2048}, v{V_DX+1}")
    w_dma_voff(P, 7168, T)
    P(f"s_lshl_b32 s{S_XB}, s{S_MT}, 19")
    P(f"s_add_u32 s{S_T0}, s{S_WAVE}, s{S_RT}")
    P(f"s_and_b32 s{S_T0}, s{S_T0}, 7")
    P(f"s_lshl_b32 s{S_T0}, s{S_T0}, 16")
    P(f"s_add_u32 s{S_XB1}, s{S_XB}, s{S_T0}")
    for t_ in ROTC: P(t_)
    P(f"s_mul_i32 s{S_T0}, s{S_KQ}, 7")
    P(f"s_add_u32 s{S_T0}, s{S_T0}, s{S_J}")
    P(f"s_lshl_b32 s{S_HB}, s{S_T0}, 8")
    P(f"s_mul_i32 s{S_T0}, s{S_WAVE}, {16*7168}")
    P(f"s_add_u32 s{S_WB}, s{S_T0}, s{S_HB}")
    if FAKE & 1:
        P(f"s_mov_b32 s{S_WB}, s{S_T0}"); P(f"s_mov_b32 s{S_XB}, 0"); P(f"s_lshl_b32 s{S_XB1}, s{S_WAVE}, 16"); P(f"s_mov_b32 s{S_RT}, 0")

def hbase(P):
    P(f"s_lshl_b32 s{S_T0}, s{S_MT}, 2")
    P(f"s_add_u32 s{S_T0}, s{S_T0}, s{S_KQ}")
    P(f"s_lshl_b32 s{S_F3}, s{S_T0}, 14")
    P(f"s_add_u32 s{S_F3}, s{S_F3}, {W_F3}")
    P(f"s_mul_i32 s{S_HA}, s{S_T0}, {8*HT}")
    P(f"s_add_u32 s{S_HA}, s{S_HA}, {W_H}")

def g1_setup_rest(P):
    T = V_T
    P(f"v_and_b32 v{T+1}, 31, v0")
    P(f"v_bfe_u32 v{T+2}, v0, 1, 3")
    P(f"v_lshrrev_b32 v{T+3}, 5, v0")
    P(f"v_xor_b32 v{T+2}, v{T+2}, v{T+3}")
    P(f"v_lshlrev_b32 v{T+2}, 4, v{T+2}")
    P(f"v_lshl_add_u32 v{V_RX}, v{T+1}, 7, v{T+2}")
    for q in range(1, 4): P(f"v_xor_b32 v{V_RX+q}, {32*q}, v{V_RX}")
    for q in range(4): P(f"v_add_u32 v{V_RX+4+q}, 0x10000, v{V_RX+q}")
    P(f"v_bfe_u32 v{T+4}, v0, 2, 2")
    P(f"v_lshl_add_u32 v{T+5}, v{T+3}, 3, v{T+4}")
    P(f"v_bfe_u32 v{T+6}, v0, 4, 1")
    P(f"v_bfe_u32 v{T+7}, v0, 1, 1")
    P(f"v_lshl_add_u32 v{T+8}, v{T+6}, 1, v{T+7}")
    P(f"v_xor_b32 v{T+4}, s{S_WAVE}, v{T+4}")
    P(f"v_lshl_add_u32 v{T+8}, v{T+4}, 2, v{T+8}")
    P(f"v_lshlrev_b32 v{T+8}, 4, v{T+8}")
    P(f"v_lshl_add_u32 v{T+5}, v{T+5}, 8, v{T+8}")
    P(f"v_and_b32 v{T+7}, 1, v0")
    P(f"v_lshl_add_u32 v{V_RW}, v{T+7}, 3, v{T+5}")
    P(f"v_add_u32 v{V_RW}, 0x4000, v{V_RW}")
    P(f"v_add_u32 v{V_RW+1}, 0x10000, v{V_RW}")
    P(f"v_lshlrev_b32 v{V_SO}, 5, v{T+1}")
    P(f"v_add_u32 v{V_SO}, {L_ST}, v{V_SO}")
    P(f"v_bfe_u32 v{T+7}, v0, 2, 1")
    P(f"v_cmp_eq_u32 vcc, v{T+6}, v{T+7}")
    P(f"v_mov_b32 v{T+8}, 0x3f803f80")
    for i in range(4): P(f"v_cndmask_b32 v{V_ONE+i}, 0, v{T+8}, vcc")
    P(f"v_lshlrev_b32 v{T+1}, 1, v{T+1}")
    P(f"s_lshl_b32 s{S_T1}, s{S_WAVE}, 6")
    P(f"s_add_u32 s{S_T0}, s{S_HB}, s{S_T1}")
    P(f"buffer_load_ushort v{V_AUG}, v{T+1}, s[{S_B}:{S_B+3}], s{S_T0} offen")

def g1_setup_scal(P):
    hbase(P)
    P(f"s_lshl_b32 s{S_T0}, s{S_J}, 2")
    P(f"s_add_u32 s{S_T0}, s{S_T0}, s{S_WAVE}")
    P(f"s_lshl_b32 s{S_T1}, s{S_T0}, 11")
    P(f"s_add_u32 s{S_HB}, s{S_HA}, s{S_T1}")
    P(f"s_lshl_b32 s{S_T0}, s{S_T0}, 9")
    P(f"s_add_u32 s{S_FX}, s{S_F3}, s{S_T0}")

def g1_setup_p2(P):
    P(f"s_lshl_b32 s{S_T0}, s{S_WAVE}, 1"); P(f"s_add_u32 s{S_T0}, s{S_T0}, s{S_ROT}"); P(f"s_and_b32 s{S_T0}, s{S_T0}, 15")
    P(f"s_lshl_b32 s{S_T0}, s{S_T0}, 7"); P(f"s_add_u32 s{S_T0}, s{S_T0}, s{S_XB}")
    for k in range(2):
        P(f"s_add_u32 s{S_T1}, s{S_RT}, {4+2*k}"); P(f"s_and_b32 s{S_T1}, s{S_T1}, 7"); P(f"s_lshl_b32 s{S_T1}, s{S_T1}, 16")
        P(f"s_add_u32 s{S_X2+2*k}, s{S_T0}, s{S_T1}"); P(f"s_xor_b32 s{S_X2+2*k+1}, s{S_X2+2*k}, 1024")

def flag_regs(P):
    P(f"v_mov_b32 v{V_TOK}, s{S_TOK}")
    P(f"v_min_u32 v{V_L0}, 1, v0"); P(f"v_lshlrev_b32 v{V_L0}, 30, v{V_L0}")

def epi_setup(P):
    T0, T1 = S_T0, S_T1
    for d in range(1, 5):
        P(f"s_add_u32 s{T0}, s{S_KQ}, {d}"); P(f"s_and_b32 s{T0}, s{T0}, 3"); P(f"s_lshl_b32 s{T0}, s{T0}, 1")
        P(f"s_andn2_b32 s{T1}, s2, 6"); P(f"s_or_b32 s{T0}, s{T0}, s{T1}")
        P(f"s_lshl2_add_u32 s{T0}, s{T0}, s{S_WAVE}")
        P(f"s_mul_i32 s{T1}, s{T0}, 15360"); P(f"s_add_u32 s{S_SP+d-1}, s{T1}, {W_PART + (0 if d == 4 else (d-1)*5120)}")
    P(f"s_lshl2_add_u32 s{T0}, s{S_MT}, s{S_KQ}"); P(f"s_lshl_b32 s{T0}, s{T0}, 17")
    P(f"s_lshl2_add_u32 s{T1}, s{S_J}, s{S_WAVE}"); P(f"s_lshl_b32 s{S_B2}, s{T1}, 6"); P(f"s_lshl_b32 s{T1}, s{S_J}, 6")
    P(f"s_add_u32 s{S_OO}, s{T0}, s{S_B2}"); P(f"s_andn2_b32 s{S_XD}, s{S_OO}, 0xc0")
    P(f"s_add_u32 s{S_YO}, s{T0}, s{T1}"); P(f"s_add_u32 s{S_YO}, s{S_YO}, {W_YROW}")
    P(f"s_lshr_b32 s{T0}, s{T0}, 4"); P(f"s_and_b32 s{T0}, s{T0}, 0x1e000"); P(f"s_add_u32 s{S_F5P}, s{T0}, {W_F5}")
    P(f"s_lshr_b32 s{T0}, s2, 6"); P(f"s_lshl2_add_u32 s{T0}, s{T0}, s{S_WAVE}"); P(f"s_lshl_b32 s{T0}, s{T0}, 12")
    P(f"s_add_u32 s{S_F4P}, s{T0}, {W_F4+384}")
    P(f"s_lshl_b32 s{T0}, s{S_WAVE}, 20"); P(f"s_lshl_b32 s{T1}, s2, 9"); P(f"s_add_u32 s{T0}, s{T0}, s{T1}")
    P(f"s_add_u32 s{S_YD}, s{T0}, {W_YBUF}")
    P(f"s_and_b32 s{T0}, s2, 7"); P(f"s_lshl2_add_u32 s{T0}, s{T0}, s{S_WAVE}"); P(f"s_lshl_b32 s{T0}, s{T0}, 5")
    P(f"s_lshr_b32 s{T1}, s2, 3"); P(f"s_add_u32 s{T0}, s{T0}, s{T1}")
    P(f"s_lshl_b32 s{T1}, s{T0}, 11"); P(f"s_add_u32 s{S_YR}, s{T1}, {W_YROW}")
    P(f"s_lshl_b32 s{T1}, s{T0}, 7"); P(f"s_add_u32 s{S_F5F}, s{T1}, {W_F5}")

def g2_setup(P):
    T = V_T + 8
    srd(P, S_W, P_W2, 3584 * 1024 * 2)
    srd(P, S_B, P_W2 + 2, 2048)
    P(f"s_mul_i32 s{S_WB}, s{S_KQ}, {896*2048}")
    P(f"s_lshl_b32 s{S_T0}, s{S_WAVE}, 15")
    P(f"s_add_u32 s{S_WB}, s{S_WB}, s{S_T0}")
    P(f"s_lshl_b32 s{S_T0}, s{S_J}, 8")
    P(f"s_add_u32 s{S_WB}, s{S_WB}, s{S_T0}")
    if FAKE & 2:
        P(f"s_lshl_b32 s{S_WB}, s{S_WAVE}, 15"); P(f"s_mov_b32 s{S_HA}, {W_XBUF}")
    w_dma_voff(P, 2048, T, S_WB)
    P(f"v_bfe_u32 v{T}, v0, 2, 2")
    P(f"v_lshrrev_b32 v{T+1}, 5, v0")
    P(f"v_lshl_add_u32 v{T+1}, v{T+1}, 2, v{T}")
    P(f"v_xor_b32 v{T}, s{S_WAVE}, v{T}")
    P(f"v_bfe_u32 v{T+2}, v0, 4, 1")
    P(f"v_lshl_add_u32 v{T}, v{T}, 1, v{T+2}")
    P(f"v_and_b32 v{T+2}, 1, v0")
    P(f"v_lshl_add_u32 v{T}, v{T}, 1, v{T+2}")
    P(f"v_bfe_u32 v{T+2}, v0, 1, 1")
    P(f"v_lshl_add_u32 v{T}, v{T}, 1, v{T+2}")
    P(f"v_lshlrev_b32 v{T}, 3, v{T}")
    P(f"v_lshl_add_u32 v{V_BA}, v{T+1}, 8, v{T}")
    P(f"v_add_u32 v{V_L16+1}, 0x10000, v{V_L16}")
    P(f"s_mul_i32 s{S_H1}, s{S_WAVE}, {HT}")
    P(f"s_add_u32 s{S_H1}, s{S_H1}, s{S_HA}")
    P(f"v_add_u32 v{V_H1}, s{S_H1}, v{V_L16}")
    P(f"s_lshl_b32 s{S_K0}, s{S_J}, 13"); P(f"s_sub_u32 s{S_T0}, s{S_K0}, {14*4096}"); P(f"s_min_u32 s{S_K0}, s{S_K0}, s{S_T0}")
    P(f"s_add_u32 s{S_KB}, s{S_K0}, 8192"); P(f"s_sub_u32 s{S_T0}, s{S_KB}, {14*4096}"); P(f"s_min_u32 s{S_KB}, s{S_KB}, s{S_T0}")
    P(f"s_lshl_b32 s{S_T0}, s{S_J}, 3")
    P(f"s_mul_i32 s{S_T1}, s{S_WAVE}, 6")
    P(f"s_add_u32 s{S_T1}, s{S_T1}, s{S_T0}")
    for u in range(3):
        d = S_HB0 + u
        P(f"s_add_u32 s{d}, s{S_T1}, {32+2*u}")
        P(f"s_sub_u32 s{S_NEED}, s{d}, 56")
        P(f"s_min_u32 s{d}, s{d}, s{S_NEED}")
        P(f"s_lshl_b32 s{d}, s{d}, 10")
        P(f"s_add_u32 s{d}, s{d}, s{S_HA}")
        if u == 1: P(f"s_sub_u32 s{d}, s{d}, 2048")
    P(f"s_add_u32 s{S_T1}, s{S_J}, s{S_WAVE}")
    P(f"s_sub_u32 s{S_NEED}, s{S_T1}, 7")
    P(f"s_min_u32 s{S_T1}, s{S_T1}, s{S_NEED}")
    P(f"s_lshl_b32 s{S_T1}, s{S_T1}, 13")
    P(f"s_add_u32 s{S_HA}, s{S_HA}, s{S_T1}")
    P(f"s_mul_i32 s{S_XB1}, s{S_WAVE}, 6144")

def g2_setup_b(P):
    P(f"v_add_u32 v{V_RW}, 0x4000, v{V_BA}")
    P(f"v_add_u32 v{V_RW+1}, 0x14000, v{V_BA}")

def dma1(stage):
    slot = (stage % 4) * 0x8000
    L = []
    if stage < 16:
        L += [f"s_add_u32 m0, s{S_LW}, 0x{slot:x}", f"s_add_u32 s{S_KB}, s{S_ROT}, {stage}", f"s_and_b32 s{S_KB}, s{S_KB}, 15",
              f"s_lshl_b32 s{S_XO}, s{S_KB}, 7", f"s_add_u32 s{S_XO}, s{S_XO}, s{S_XB1}"]
        for j in range(4): L.append(f"buffer_load_dwordx4 v{V_DX+j}, s[{S_X}:{S_X+3}], s{S_XO} offen offset:{j*1024} lds")
        L += [f"s_add_u32 m0, s{S_LW}, 0x{slot+0x4000:x}", f"s_mul_i32 s{S_WO}, s{S_KB}, {64*7168}", f"s_add_u32 s{S_WO}, s{S_WO}, s{S_WB}"]
        for j in range(4): L.append(f"buffer_load_dwordx4 v{V_DW+j}, s[{S_W}:{S_W+3}], s{S_WO} offen offset:{j*1024} lds")
    else:
        u = stage - 16
        tile, half = u // 2, u % 2
        for sb in range(2):
            L += [f"s_add_u32 m0, s{S_LW2}, 0x{slot+sb*4096:x}", f"s_add_u32 s{S_XO}, s{S_X2+2*(tile//2)+half}, {(tile%2)*65536+sb*128}"]
            for j in range(4): L.append(f"buffer_load_dwordx4 v{V_DX+j}, s[{S_X}:{S_X+3}], s{S_XO} offen offset:{j*1024} lds")
    return L

def dma2_w(stage):
    slot = (stage % 4) * 0x8000; s = stage - 24
    L = [f"s_add_u32 m0, s{S_LW}, 0x{slot+0x4000:x}"]
    if s == 0: L += [f"s_lshl_b32 s{S_WO}, s{S_K0}, 5"]
    elif s == 1: L += [f"s_lshl_b32 s{S_WO}, s{S_K0}, 5", f"s_add_u32 s{S_WO}, s{S_WO}, 0x20000"]
    else:
        if s > 2: L += [f"s_add_u32 s{S_KB}, s{S_KB}, 4096"]
        if s > 2 and s % 2 == 0: L += [f"s_sub_u32 s{S_WO}, s{S_KB}, {14*4096}", f"s_min_u32 s{S_KB}, s{S_KB}, s{S_WO}"]
        L += [f"s_lshl_b32 s{S_WO}, s{S_KB}, 5"]
    for j in range(4): L.append(f"buffer_load_dwordx4 v{V_DW+j}, s[{S_W}:{S_W+3}], s{S_WO} offen offset:{j*1024} lds")
    return L

def dma2_h(stage, pol=" sc1"):
    slot = (stage % 4) * 0x8000
    L = []
    if stage < 38:
        s = stage - 24
        L += [f"s_add_u32 m0, s{S_LW}, 0x{slot:x}"]
        if s == 1: L += [f"s_add_u32 s{S_XO}, s{S_K0}, 4096"]
        so = [S_K0, S_XO][s] if s < 2 else S_KB
        for j in range(4): L.append(f"buffer_load_dwordx4 v{V_H1}, {WS}, s{so} offen offset:{j*1024}{pol} lds")
    else:
        u = stage - 38
        pos, half = 4 + u // 2, u % 2
        if half == 0:
            for sb in range(2):
                L += [f"s_add_u32 m0, s{S_LW2}, 0x{slot+sb*4096:x}", f"s_add_u32 s{S_XO}, s{S_HA}, {pos*HT+sb*4096}"]
                for j in range(4): L.append(f"buffer_load_dwordx4 v{V_L16}, {WS}, s{S_XO} offen offset:{j*1024}{pol} lds")
        else:
            for un in range(3):
                if un != 1: L.append(f"s_add_u32 m0, s{S_XB1}, 0x{slot+(4096 if un == 2 else 0):x}")
                L.append(f"s_add_u32 s{S_XO}, s{S_HB0+un}, {pos*HT}")
                for j in range(2):
                    L.append(f"buffer_load_dwordx4 v{V_L16}, {WS}, s{S_XO} offen offset:{(2048 if un == 1 else 0)+j*1024}{pol} lds")
    return L

def flag_store(soff, imm=0):
    return f"buffer_store_dword v{V_TOK}, v{V_L0}, {WS}, s{soff} offen offset:{imm} sc1"

def gelu_ops(t):
    acc = acc1(t)
    pk = V_PK
    c3, c1, sd = V_CT + 4 * (t % 2), V_CT + 4 * (t % 2) + 1, V_CT + 4 * (t % 2) + 2
    L = []
    if t + 1 < 8: L.append(f"ds_read_b128 {v(V_CT+4*((t+1)%2),4)}, v{V_SO} offset:{(t+1)*1024+16}")
    for g in range(4):
        A = [acc + 4 * g + i for i in range(4)]
        T = [V_T + 4 * (g % 2) + i for i in range(4)]
        for i in range(4): L.append(f"v_mul_f32 v{T[i]}, v{A[i]}, v{A[i]}")
        for i in range(4): L.append(f"v_fma_f32 v{T[i]}, v{T[i]}, v{c3}, v{c1}")
        for i in range(4): L.append(f"v_mul_f32 v{T[i]}, v{A[i]}, v{T[i]}")
        for i in range(4): L.append(f"v_exp_f32 v{T[i]}, v{T[i]}")
        for i in range(4): L.append(f"v_fma_f32 v{T[i]}, v{T[i]}, v{sd}, v{sd}")
        for i in range(4): L.append(f"v_rcp_f32 v{T[i]}, v{T[i]}")
        for i in range(4): L.append(f"v_mul_f32 v{T[i]}, v{A[i]}, v{T[i]}")
        if g % 2 == 0 and t > 0: L.append(After(f"hs{t-1}{g//2}"))
        L.append(f"v_cvt_pk_bf16_f32 v{pk+2*g}, v{T[0]}, v{T[1]}")
        L.append(f"v_cvt_pk_bf16_f32 v{pk+2*g+1}, v{T[2]}, v{T[3]}")
        if g == 1: L.append(Mark(f"half{t}"))
    L.append(Mark(f"gelu{t}"))
    return L

def h_stores():
    L = []
    for t in range(8):
        for q in range(2):
            L += [After(f"gelu{t}" if q else f"half{t}"),
                  (f"buffer_store_dwordx4 {v(V_PK+4*q,4)}, v{V_L16}, {WS}, s{S_HB} offen offset:{q*1024}{HPOL}", f"h{max(t//2-1,0)}"), Mark(f"hs{t}{q}")]
        if t < 7: L.append(f"s_add_u32 s{S_HB}, s{S_HB}, {HT}")
    return L

def aug_ops():
    T = V_T + 8
    return [f"v_cvt_pk_bf16_f32 v{T}, v{V_CS}, v{V_CS}",
            f"v_lshl_or_b32 v{V_AUG}, v{V_AUG}, 16, v{V_AUG}",
            f"v_and_b32 v{T}, 0xffff0000, v{T}",
            f"v_sub_f32 v{T+1}, v{V_CS}, v{T}",
            f"v_cmp_gt_u32 s[66:67], 32, v0",
            f"v_cvt_pk_bf16_f32 v{T}, v{T}, v{T+1}",
            f"v_mov_b32 v{V_AUG+3}, 0",
            f"v_cndmask_b32 v{V_AUG}, 0, v{V_AUG}, s[66:67]",
            f"v_cndmask_b32 v{V_AUG+1}, 0, v{T}, s[66:67]",
            f"v_cndmask_b32 v{V_AUG+2}, 0, v{T}, s[66:67]"]

def f3_reload(n):
    return [f"buffer_load_dword v{V_FL}, v1, {WS}, s{S_F3} offen offset:{n*128} sc1"]
def f3_addr():
    return ["v_min_u32 v1, 6, v0", f"v_lshl_add_u32 v1, v1, 2, s{S_WAVE}", "v_lshlrev_b32 v1, 9, v1"]
def f3_check(n):
    return Fn(lambda P: poll_check(P, [V_FL], S_TOK, f3_reload(n)), 20)

INV_SCALE = 2.0 / (2048.0 * 1024.0)

def unpack_add(R, S, src, first=False, scale=None, ex=None):
    for i in range(8):
        t = V_T + 8 + 2 * (i % 2)
        if first:
            R(f"v_lshlrev_b32 v{S+2*i}, 16, v{src+i}"); R(f"v_and_b32 v{S+2*i+1}, 0xffff0000, v{src+i}")
        else:
            R(f"v_lshlrev_b32 v{t}, 16, v{src+i}")
            if ex is not None and i == 3: R(f"v_lshlrev_b32 v{t+1}, 16, v{ex}")
            else: R(f"v_and_b32 v{t+1}, 0xffff0000, v{ex if ex is not None and i == 7 else src+i}")
            for e in range(2):
                if scale is None: R(f"v_add_f32 v{S+2*i+e}, v{S+2*i+e}, v{t+e}")
                else: R(f"v_fmac_f32 v{S+2*i+e}, {hexf(scale)}, v{t+e}")

def tile_dma(S, so, lds, pol=""):
    L = [f"s_add_u32 m0, s{S_LW}, {lds}"]
    for u in range(4):
        L.append(f"buffer_load_dwordx4 v{V_SO}, s[{S}:{S+3}], s{so} offen offset:{u*1024}{pol} lds")
        if u < 3: L.append(f"s_add_u32 s{so}, s{so}, {32768-1024}")
    return L
def tile_voff(R, t, y):
    R(f"v_lshrrev_b32 v{t}, 4, v0"); R(f"v_lshl_add_u32 v{t}, s{S_WAVE}, 2, v{t}")
    R(f"v_xor_b32 v{V_SO}, v{t}, v0"); R(f"v_lshlrev_b32 v{t}, 11, v{t}")
    if y:
        R(f"v_bfe_u32 v{t+1}, v{V_SO}, 2, 2"); R(f"v_lshl_add_u32 v{t}, v{t+1}, 9, v{t}"); R(f"v_and_b32 v{V_SO}, 3, v{V_SO}")
    else: R(f"v_and_b32 v{V_SO}, 15, v{V_SO}")
    R(f"v_lshl_add_u32 v{V_SO}, v{V_SO}, 4, v{t}")

def build_stream(P, S, opt, stamp=None):
    o = dict(budget=24, LA=10, BOFF=7, ack=(24, 40, 40), pl=20, plY=20, swin=(0, 0, 0, 0), t3c=3, tP=110, sgap=(12, 0, 0, 8), ll=34,
             tY=330, stZ=44, tA=345, tB=358, tC=370, tD=390)
    o.update(opt)
    bf = [0]
    def bfrag():
        b = V_B + 4 * (bf[0] % NB); bf[0] += 1; return b
    for st in range(16):
        for q4 in range(4):
            q = st * 4 + q4
            if q4 == 0: S.first[st] = len(S.slots)
            slot = st % 4; hi = slot // 2; base = (slot % 2) * 0x8000
            for t in range(4):
                b = bfrag(); acc = acc1(t)
                i = S.add(f"v_mfma_f32_32x32x16_bf16 {v(acc,16)}, {a(4*q,4)}, {v(b,4)}, {'0' if q == 0 else v(acc,16)}")
                if t == 0:
                    for h in range(2):
                        S.read(st, i, f"ds_read_b64_tr_b16 {a(4*q+2*h,2)}, v{V_RW+hi} offset:{base+q4*4096+h*1024}")
                S.read(st, i, f"ds_read_b128 {v(b,4)}, v{V_RX+4*hi+q4} offset:{base+t*4096}")
            S.add(f"v_mfma_f32_16x16x32_bf16 {v(V_CS,4)}, {v(V_ONE,4)}, {a(4*q,4)}, {'0' if q == 0 else v(V_CS,4)}")
    p1 = len(S.slots)
    done = {}; start = {}
    def aug(t, init):
        acc = acc1(t); b = bfrag()
        i = S.add(f"v_mfma_f32_32x32x16_bf16 {v(acc,16)}, {v(V_AUG,4)}, {v(b,4)}, {'0' if init else v(acc,16)}")
        S.read(None, i, f"ds_read_b128 {v(b,4)}, v{V_SO} offset:{t*1024}")
        return i
    for t in range(4, 8):
        acc = acc1(t); start[t] = len(S.slots)
        for q in range(64):
            st = 16 + (t - 4) * 2 + q // 32
            slot = st % 4; hi = slot // 2; base = (slot % 2) * 0x8000
            if t > 4 and q == 0: aug(t, True)
            if t == 4 and q in (6, 8, 10, 12, 14):
                tt = (q - 6) // 2
                i = aug(tt, False)
                if tt < 4: done[tt] = i
            if q % 32 == 0: S.first[st] = len(S.slots)
            b = bfrag()
            i = S.add(f"v_mfma_f32_32x32x16_bf16 {v(acc,16)}, {a(4*q,4)}, {v(b,4)}, {'0' if (q == 0 and t == 4) else v(acc,16)}")
            S.read(st, i, f"ds_read_b128 {v(b,4)}, v{V_RX+4*hi+q%4} offset:{base+((q%32)//4)*4096}")
        done[t] = len(S.slots) - 1
    g0 = len(S.slots)
    for s in range(14):
        st = 24 + s
        slot = st % 4; hi = slot // 2; base = (slot % 2) * 0x8000
        for q4 in range(4):
            q = s * 4 + q4
            if q4 == 0: S.first[st] = len(S.slots)
            for t in range(4):
                b = bfrag(); acc = acc2(t)
                i = S.add(f"v_mfma_f32_32x32x16_bf16 {v(acc,16)}, {a(4*q,4)}, {v(b,4)}, {'0' if q == 0 else v(acc,16)}")
                if t == 0:
                    for h in range(2):
                        S.read(st, i, f"ds_read_b64_tr_b16 {a(4*q+2*h,2)}, v{V_RW+hi} offset:{base+q4*4096+h*2048}")
                S.read(st, i, f"ds_read_b128 {v(b,4)}, v{V_L16+hi} offset:{base+t*4096+q4*1024}")
    done2 = {t: len(S.slots) - 4 + t for t in range(4)}; start2 = {}
    for t in range(4, 8):
        acc = acc2(t); start2[t] = len(S.slots)
        for q in range(56):
            st = 38 + (t - 4) * 2 + (q >= 32)
            slot = st % 4; hi = slot // 2; base = (slot % 2) * 0x8000
            if q in (0, 32): S.first[st] = len(S.slots)
            b = bfrag()
            i = S.add(f"v_mfma_f32_32x32x16_bf16 {v(acc,16)}, {a(4*q,4)}, {v(b,4)}, {'0' if q == 0 else v(acc,16)}")
            S.read(st, i, f"ds_read_b128 {v(b,4)}, v{V_L16+hi} offset:{base+(q%32)*1024}")
        done2[t] = len(S.slots) - 1
    n = len(S.slots)
    for st in range(1, 17): S.boff[st] = o.get("BOFF1", 8)
    bar = S.bars(o["BOFF"])
    for st in range(1, 21): S.dma_at_bar[st] = [(dma1(st + 3), st + 3)]
    S.dma_at_bar[21] = [(dma2_w(24), 24)]
    S.dma_at_bar[22] = [(dma2_w(25), 25)]
    S.dma_at_bar[23] = [(dma2_h(24), 24), (dma2_h(25), 25), (dma2_w(26), 26)]
    for st in range(24, 35): S.dma_at_bar[st] = [(dma2_w(st + 3), st + 3), (dma2_h(st + 3), st + 3)]
    S.dma_at_bar[24].insert(0, (dma2_h(26), 26))
    for st in range(35, 43): S.dma_at_bar[st] = [(dma2_h(st + 3), st + 3)]
    L = [f"s_lshl_b32 s{S_XO}, s{S_WAVE}, 1", f"s_add_u32 s{S_WO}, s{S_XO}, s{S_RT}", f"s_and_b32 s{S_WO}, s{S_WO}, 7",
         f"s_lshl_b32 s{S_WO}, s{S_WO}, 10", f"s_lshl_b32 s{S_XO}, s{S_XO}, 10", f"s_add_u32 m0, s{S_XO}, {L_ST}",
         f"s_lshl_b32 s{S_XO}, s{S_MT}, 13", f"s_add_u32 s{S_WO}, s{S_WO}, s{S_XO}", f"s_add_u32 s{S_WO}, s{S_WO}, {W_STATS}"]
    L += [f"buffer_load_dwordx4 v{V_L16}, {WS}, s{S_WO} offen offset:{j*1024} sc1 lds" for j in range(2)]
    S.dma_at_bar[13].insert(0, (L, 15))
    for i, t in enumerate(aug_ops()): S.event(p1 + 1 + i // 4, t)
    S.event(p1 + 2, f"ds_read_b128 {v(V_CT,4)}, v{V_SO} offset:16")
    G = []
    for t in range(8):
        G.append(At(done[t] + 3)); G += gelu_ops(t)
    qg = S.queue(G)
    R = Rec()
    flag_regs(R); g1_setup_scal(R); g1_setup_p2(R)
    R.add(At(o.get("tF1", 16))); R.add(Fn(S.timed("xs", lambda P: P.wait_for(o["f1"])))); R(flag_store(S_RS)); R.add(Mark("f1"))
    epi_setup(R)
    o["inv_consts"](R)
    R.add(Mark("consts"))
    rl = [f"buffer_load_dword v{V_FL}, off, {WS}, s{S_E1} sc1"]
    for t_ in [f"s_and_b32 s{S_E1}, s2, 7", f"s_lshl_b32 s{S_E1}, s{S_E1}, 9", f"s_add_u32 s{S_E1}, s{S_E1}, s{S_F4P}", f"s_sub_u32 s{S_E1}, s{S_E1}, 384"]: R(t_)
    R.add(At(bar[12] - 16)); R(rl[0])
    R.add(At(bar[13] - 8)); R.add(S.poll("F1", [V_FL], S_TOK, rl)); R.add(Mark("f1c"))
    R.add(At(bar[13] + 2)); R.add(DmaDone(15)); g2_setup(R)
    for t_ in f3_addr(): R(t_)
    R.add(Mark("g2setup")); R.add(At(p1 + 4)); g2_setup_b(R)
    if o.get("w2pf"):
        W = Rec()
        W.add(After("g2setup"))
        W(f"s_lshr_b32 s{S_E0}, s2, 3"); W(f"s_lshl2_add_u32 s{S_E0}, s{S_E0}, s{S_WAVE}"); W(f"s_lshl_b32 s{S_E0}, s{S_E0}, 14")
        W(f"s_mul_i32 s{S_E1}, s{S_KQ}, {896*2048}"); W(f"s_add_u32 s{S_E0}, s{S_E0}, s{S_E1}")
        n_ = len(o["w2pf"]); ln = 128 // n_
        W(f"v_min_u32 v121, {ln-1}, v0"); W(f"v_lshlrev_b32 v121, 7, v121")
        for k, t_ in enumerate(o["w2pf"]):
            W.add(At(t_)); W(f"buffer_load_dword v{122+k%4}, v121, s[{S_W}:{S_W+3}], s{S_E0} offen")
            W(f"s_add_u32 s{S_E0}, s{S_E0}, {ln*128}")
        o["extraq"] = W.L
    f3_check = lambda n: S.poll(f"F3{n}", [V_FL], S_TOK, f3_reload(n))
    R.L += [After("hs31", o["ack"][0]), S.wait_tag("h0"), flag_store(S_FX), Mark("f3a"),
            At(bar[24] - o["t3c"] - o["pl"])] + f3_reload(0) + [Gap(o["pl"]), f3_check(0), Mark("f3c"),
            After("hs51", o["ack"][1]), S.wait_tag("h1"), flag_store(S_FX, 128), Mark("f3b"),
            At(bar[35] - 40 - o["pl"])] + f3_reload(1) + [Gap(o["pl"]), f3_check(1), Mark("f3d"),
            After("hs71", o["ack"][2]), S.wait_tag("h2"), flag_store(S_FX, 256), Mark("f3e"),
            At(bar[39] - 6 - o["pl"])] + f3_reload(2) + [Gap(o["pl"]), f3_check(2), Mark("f3f")]
    qf = S.queue(R.L, vmlat=0)
    S.queues = [qf, {"L": h_stores(), "hold": -1, "vmlat": 0}, qg]
    if o.get("extraq"): S.queues.insert(1, {"L": o["extraq"], "hold": -1, "vmlat": 60})
    def entry(P):
        assert not any(not is_vm(x[0]) for x in S.dq[:1]) and S.dq[0][1] == 26
        o["entry"](P); P.label("L_g2_entry")
    S.pre_bar.setdefault(24, []).append(Fn(entry))
    o["rows_inv"](S, g0, bar)
    E = Rec()
    SP = [S_SP + d for d in range(4)]
    EX, V_L8 = 6, V_H1
    E.add(At(start2[4] - 30)); E.add(DmaDone(37))
    E(f"v_lshlrev_b32 v{V_L8}, 3, v0"); E(f"v_mov_b32 v{EX+3}, v{V_TOK}"); E(f"s_mov_b32 s{S_M16}, 0xffff"); E.add(Mark("l8"))
    for t in range(6):
        E.add(At(done2[t] + 3))
        acc = acc2(t); pk = V_PK
        for q in range(2):
            for i in range(4): E(f"v_cvt_pk_bf16_f32 v{pk+4*q+i}, v{acc+8*q+2*i}, v{acc+8*q+2*i+1}")
        E(f"v_cvt_pk_bf16_f32 v{EX+(t%2 if t < 4 else 2)}, v{acc+7}, v{acc+15}")
        for q in range(2): E(f"v_bfi_b32 v{pk+4*q+3}, s{S_M16}, v{pk+4*q+3}, v{V_TOK}")
        E.add(Mark(f"pack{t}"))
        so = SP[t // 2]
        for q in range(2): E(f"buffer_store_dwordx4 {v(pk+4*q,4)}, v{V_L16}, {WS}, s{so} offen offset:{(t%2)*2048+q*1024} sc1")
        if t in (1, 3):
            E(f"s_add_u32 s{so}, s{so}, 4096"); E(f"buffer_store_dwordx4 {v(EX,4)}, v{V_L16}, {WS}, s{so} offen sc1")
        if t >= 4: E(f"buffer_store_dwordx2 {v(EX+2,2)}, v{V_L8}, {WS}, s{so} offen offset:{2048 if t == 4 else 1536} sc1")
        if t == 4: E(f"s_add_u32 s{so}, s{so}, 1024")
        E.add(Mark(f"ps{t}"))
    S.queues.insert(len(S.queues) - o.get("eprio", 0), {"L": E.L, "hold": -1, "vmlat": 0})
    S0, S1 = blk(4), blk(5)
    GA, GB, GC, GD, GY = 112, 24, 10, blk(3), blk(6)
    V_XO, V_XR, V_YR, V_P5 = 2, 4, 60, 62
    T = V_T + 4
    I = Rec()
    I.add(After("rows_valu"))
    I(f"v_lshrrev_b32 v{T}, 5, v0"); I(f"v_lshlrev_b32 v{V_XO+1}, 4, v{T}")
    for q in range(2): I(f"buffer_load_dwordx4 {v(GY+4*q,4)}, v{V_XO+1}, s[{S_B}:{S_B+3}], s{S_B2} offen offset:{q*32}")
    I(f"v_bfe_u32 v{T+1}, v0, 2, 2"); I(f"v_bfe_u32 v{T+2}, v0, 4, 1"); I(f"v_lshl_add_u32 v{T+1}, v{T+1}, 2, v{T+2}")
    I(f"v_and_b32 v{T+2}, 3, v0"); I(f"v_lshl_add_u32 v{T+1}, v{T+1}, 2, v{T+2}"); I(f"v_lshlrev_b32 v{T+1}, 8, v{T+1}")
    I(f"v_add_u32 v{T+1}, {L_ST}, v{T+1}")
    I(f"v_and_b32 v{T+2}, 15, v0")
    I(f"v_lshl_add_u32 v{T+3}, s{S_WAVE}, 2, v{T}"); I(f"v_xor_b32 v{T+3}, v{T+3}, v{T+2}")
    I(f"v_lshl_add_u32 v{V_XR}, v{T+3}, 4, v{T+1}"); I(f"v_xor_b32 v{V_XR+1}, 32, v{V_XR}")
    for k in range(2):
        for q in range(2): I(f"ds_read_b128 {v(GB+8*k+4*q,4)}, v{V_XR+q} offset:{k*2048}")
    I(f"v_lshl_add_u32 v{T+3}, v{T}, 2, s{S_WAVE}"); I(f"v_xor_b32 v{T+3}, v{T+3}, v{T+2}")
    I(f"v_lshl_add_u32 v{V_YR}, v{T+3}, 4, v{T+1}"); I(f"v_xor_b32 v{V_YR+1}, 0x80, v{V_YR}")
    I(f"v_min_u32 v{T+2}, 15, v0"); I(f"v_and_b32 v{T+3}, 12, v{T+2}"); I(f"v_mul_u32_u24 v{T+3}, 3, v{T+3}")
    I(f"v_add_u32 v{T+2}, v{T+2}, v{T+3}"); I(f"v_lshl_add_u32 v{T+2}, s{S_WAVE}, 2, v{T+2}"); I(f"v_lshlrev_b32 v{V_P5}, 7, v{T+2}")
    tile_voff(I, T + 2, True)
    I(f"v_and_b32 v{V_XO}, 31, v0"); I(f"v_lshl_add_u32 v{V_XO}, v{V_XO}, 11, v{V_XO+1}")
    I(f"s_add_u32 s{S_E0}, s{S_OO}, 0x10000")
    I.add(Mark("adr"))
    unpack_add(I, S0, GB, first=True); unpack_add(I, S1, GB + 8, first=True)
    for i in range(8):
        t = V_T + 8 + 2 * (i % 2)
        I(f"v_lshlrev_b32 v{t}, 16, v{GY+i}"); I(f"v_and_b32 v{t+1}, 0xffff0000, v{GY+i}")
        for Sx in (S0, S1):
            for e in range(2): I(f"v_add_f32 v{Sx+2*i+e}, v{Sx+2*i+e}, v{t+e}")
    I.add(Mark("x_done"))
    Y2 = Rec()
    Y2.add(After("adr"))
    rl = f"buffer_load_dword v{V_XO+1}, v{V_P5}, {WS}, s{S_F5P} offen sc1"
    Y2.add(At(g0 + o["tY"] - o["plY"])); Y2(rl)
    Y2.add(Gap(o["plY"])); Y2.add(S.poll("FY", [V_XO + 1], S_TOK, [rl]))
    Y2.add(Fn(lambda P: S.push_dma(tile_dma(S_WS, S_YO, L_Y, " sc1"), o["stZ"]), 0)); Y2.add(Mark("Y"))
    I2 = Rec()
    I2.add(After("x_done")); I2.add(After("rows_inv_done"))
    SO = [SP[3], S_T0, S_T1, S_E1]
    for k in range(1, 4): I2(f"s_add_u32 s{SO[k]}, s{SP[3]}, {4096*k}")
    I2.add(After("pack3"))
    LD = {}
    ld = lambda r_, w, off: f"buffer_load_dwordx{w} {v(r_,w)}, v{V_L16 if w == 4 else V_L8}, {WS}, s{SO[off//4096]} offen offset:{off%4096} sc1"
    for name, g, nl, off, ex, xoff in (("A", GA, 4, 0, GD + 12, 4096), ("B", GB, 4, 5120, 40, 9216), ("C", GC, 2, 10240, 18, 12288), ("D", GD, 2, 13312, GD + 8, 12800)):
        LD[name] = (g, ex, [ld(g + 4 * u, 4, off + u * 1024) for u in range(nl)] + [ld(ex, nl, xoff)])
        I2.add(At(g0 + o["t" + name]))
        for t_ in LD[name][2]: I2(t_)
        I2.add(Mark(name))
    def take(name, *dst):
        g, ex, L = LD[name]; nl = len(L) - 1
        I.add(After(name, o["ll"]))
        regs = [g + 4 * u + 3 for u in range(nl)] + [ex + nl - 1]
        pre = tag_pre(regs, V_T + 8, S_TOK)
        I.add(Fn(S.timed("w" + name, lambda P: P(pre[0])), 8))
        for t_ in pre[1:]: I(t_)
        I.add(Fn(S.timed("F" + name, lambda P: tag_check(P, pre, V_T + 8, S_M16, L, lambda: S.nstamp(P, "F" + name + "="))), 16))
        for k, d in enumerate(dst): unpack_add(I, d, g + 8 * k, ex=ex + k)
    def ysum():
        I.add(After("Y")); I.add(At(bar[o["stZ"]] + 1))
        for k in range(2):
            for q in range(2): I(f"ds_read_b128 {v(GY+8*k+4*q,4)}, v{V_YR+q} offset:{L_Y-L_ST+k*2048}")
        return lambda: (unpack_add(I, S0, GY, scale=INV_SCALE), unpack_add(I, S1, GY + 8, scale=INV_SCALE), I.add(Mark("ysum")))
    def final(t, Sx, so):
        acc = acc2(t); pk = V_PK
        I.add(At(done2[t] + 3))
        for q in range(2):
            for i in range(8): I(f"v_add_f32 v{Sx+8*q+i}, v{Sx+8*q+i}, v{acc+8*q+i}")
            for i in range(4): I(f"v_cvt_pk_bf16_f32 v{pk+4*q+i}, v{Sx+8*q+2*i}, v{Sx+8*q+2*i+1}")
            I(f"buffer_store_dwordx4 {v(pk+4*q,4)}, v{V_XO}, s[{S_OUT}:{S_OUT+3}], s{so} offen offset:{q*32}{o.get('outpol','')}")
    for c in o.get("order", "AyYBC6D"):
        if c == "y": ys = ysum()
        elif c == "Y": ys()
        elif c in "AB": take(c, S0, S1)
        elif c == "C": take(c, S0)
        elif c == "D": take(c, S1)
        else:
            I.add(After("ps5")); final(6, S0, S_OO); I.add(Mark("final6"))
    I.add(Mark("sum7"))
    final(7, S1, S_E0)
    S.queues.insert(1, {"L": I2.L, "hold": -1, "vmlat": 0})
    S.queues.insert(1, {"L": Y2.L, "hold": -1, "vmlat": 0})
    S.queue(I.L, vmlat=o.get("vmlat", 24))
    st_ = None
    if stamp:
        pts = {-1: 0, 160: 1, p1: 2, start[6]: 3, g0: 4, g0 + 64: 5, g0 + 128: 6, start2[4]: 7, start2[6]: 8, start2[7]: 9, n: 10}
        if "pts" in o: pts = {k: j for j, k in enumerate(o["pts"])}
        if "ptsd" in o: pts = o["ptsd"]
        st_ = {k: (lambda P, j=j: stamp(P, j)) for k, j in pts.items()}
    ph1 = lambda i: i < p1 or g0 - 40 <= i < start2[4]
    dgap = lambda i, nd, left: 1 if 2 * nd > left - (o.get("dwin", 3) if S.swin(i) else 0) else (2 if ph1(i) or 3 * nd > left else o.get("dgap2", 3))
    bx = o.get("bx", {})
    def budget(i):
        ph = 0 if i < p1 else 1 if i < g0 else 2 if i < start2[4] else 3
        return 24 + 4 * (int((i + 1) * bx.get(ph, 0)) - int(i * bx.get(ph, 0)))
    S.sgap = lambda i: o["sgap"][0 if i < p1 else 1 if i < g0 else 2 if i < start2[4] else 3] if i < start2[7] else 0
    S.swin = lambda i: i > 40 and o["swin"][0 if i < p1 else 1 if i < g0 - 8 else 2 if i < start2[4] - 48 else 3]
    barx = lambda i: o.get("barx1", 0) if ph1(i) else o.get("barx2", 12)
    left = S.run(budget=budget, LA=o["LA"], LAT=o.get("LAT", 4), dma_gap=dgap, barx=barx, stamps=st_, vm_late=o.get("vm_late", 8), bud16=o.get("bud16", 8))
    edges = [0, 160, p1, start[6], g0, g0 + 128, start2[4], start2[6], n]
    print("over budget:", [sum(S.over.get(i, 0) for i in range(a_, b_)) for a_, b_ in zip(edges, edges[1:])])
    m = S.marks
    print("stream: slots", n, "p1", p1, "g0", g0, "left", left, "bars", bar[21], bar[22], bar[23], bar[24], bar[35], "marks", m)
    assert m["gelu3"] < g0 and m["gelu7"] < start2[4] and m["f1c"] < bar[13] and m["consts"] < p1 - 20
    assert m["f3a"] < bar[23] and m["g2setup"] < p1 and m["f3d"] < bar[35] and m["f3f"] < bar[39] and m["f3c"] < bar[24] and m["f4c"] < start2[4]
    assert m["pack0"] < start2[5] and m["pack1"] < start2[6] and m["pack2"] < start2[7] and m["hs71"] < m["pack0"] - 10
```

```python
from common import *
from stream import *
from rows import DROW, k2off
import fused as F

def angles(R, idx, arg0, step, T, emit):
    for n0 in range(0, len(idx), 2):
        pr = list(range(n0, min(n0 + 2, len(idx))))
        for e, n in enumerate(pr):
            k = idx[n]
            if k == 0: R(f"v_mov_b32 v{T+e}, v{arg0}")
            else: R(f"v_fmamk_f32 v{T+e}, v{step}, {hexf(float(k))}, v{arg0}")
        for e, n in enumerate(pr):
            R(f"v_cos_f32 v{T+2+2*e}, v{T+e}"); R(f"v_sin_f32 v{T+3+2*e}, v{T+e}")
        for e, n in enumerate(pr): emit(n, T + 2 + 2 * e, T + 3 + 2 * e, T + e)

def twiddle1(R, re, im, c, sn, tmp, conj):
    for j0 in range(0, 16, 2):
        for e in range(2): R(f"v_mul_f32 v{tmp+e}, v{re+j0+e}, v{sn+j0+e}")
        for e in range(2): R(f"v_mul_f32 v{re+j0+e}, v{re+j0+e}, v{c+j0+e}")
        for e in range(2):
            j = j0 + e
            R(f"v_fma_f32 v{re+j}, {'-' if conj else ''}v{im+j}, v{sn+j}, v{re+j}")
        for e in range(2):
            j = j0 + e
            R(f"v_fma_f32 v{im+j}, v{im+j}, v{c+j}, {'' if conj else '-'}v{tmp+e}")

def stage_addr2(R, A0, A1, s0, swave, base, t):
    R(f"v_add_u32 v{t}, -1, v0")
    R(f"v_and_b32 v{t}, 31, v{t}")
    R(f"s_bfe_u32 s{s0}, s2, 0x40003")
    R(f"v_xor_b32 v{t}, s{s0}, v{t}")
    R(f"v_lshlrev_b32 v{t}, 4, v{t}")
    R(f"v_lshrrev_b32 v{t+1}, 5, v0")
    R(f"v_lshl_add_u32 v{t}, v{t+1}, 11, v{t}")
    R(f"s_lshl_b32 s{s0}, s{swave}, 2")
    R(f"s_add_u32 s{s0}, s{s0}, {base}")
    R(f"v_add_u32 v{t}, s{s0}, v{t}")
    R(f"v_and_b32 v{t+1}, 31, v0")
    R(f"v_cmp_eq_u32 vcc, 0, v{t+1}")
    R(f"v_add_u32 v{t+1}, -1024, v{t}")
    R(f"v_cndmask_b32 v{A0}, v{t}, v{t+1}, vcc")
    R(f"v_cmp_eq_u32 vcc, 0, v0")
    R(f"v_add_u32 v{t+1}, 16384, v{A0}")
    R(f"v_cndmask_b32 v{A1}, v{A0}, v{t+1}, vcc")

TW, D1, D0, D2, Y0, Y1 = F.blk(4), 112, F.blk(6), 24, 10, 40
TT, VS = 2, 22
A0, A1, VG, AP = 60, 61, 62, 59
BA, BB = 224, 240

def inv_consts(R, T):
    Q = T + 8
    R(f"v_and_b32 v{T}, 0x13, v0")
    R(f"v_bfe_u32 v{T+1}, v0, 2, 1")
    R(f"v_lshl_add_u32 v{T}, v{T+1}, 3, v{T}")
    R(f"v_bfe_u32 v{T+1}, v0, 3, 1")
    R(f"v_lshl_add_u32 v{T}, v{T+1}, 2, v{T}")
    R(f"v_cvt_f32_u32 v{T}, v{T}")
    R(f"v_lshrrev_b32 v{T+1}, 5, v0")
    R(f"v_lshl_add_u32 v{T+1}, s{F.S_WAVE}, 1, v{T+1}")
    R(f"v_cvt_f32_u32 v{T+1}, v{T+1}")
    R(f"s_lshl_b32 s{F.S_T0}, s{F.S_WAVE}, 10"); R(f"s_add_u32 s{F.S_T0}, s{F.S_T0}, {F.L_Y}")
    R(f"v_add_u32 v{T+7}, s{F.S_T0}, v{F.V_L16}")
    R(f"v_mul_f32 v{T+2}, {hexf(1/1024)}, v{T}")
    R(f"v_mul_f32 v{T+3}, v{T+2}, v{T+1}")
    R(f"v_mul_f32 v{T+3}, 4.0, v{T+3}")
    for i in range(4):
        if i: R(f"v_add_f32 v{T+3}, v{T+3}, v{T+2}")
        R(f"v_cos_f32 v{Q+i}, v{T+3}"); R(f"v_sin_f32 v{Q+4+i}, v{T+3}")
    R(f"v_and_b32 v{T+2}, 31, v0")
    R(f"ds_write_b128 v{T+7}, {v(Q,4)}")
    R(f"v_cvt_f32_u32 v{T+2}, v{T+2}")
    R(f"v_mul_f32 v{T+2}, {hexf(1/32)}, v{T+2}")
    R(f"ds_write_b128 v{T+7}, {v(Q+4,4)} offset:4096")
    R(f"v_mul_f32 v{T+3}, v{T+2}, v{T+1}")
    R(f"v_mul_f32 v{T+3}, 4.0, v{T+3}")
    for i in range(4):
        if i: R(f"v_add_f32 v{T+3}, v{T+3}, v{T+2}")
        R(f"v_cos_f32 v{T+4}, v{T+3}"); R(f"v_sin_f32 v{T+5}, v{T+3}")
        if i == 3: R(f"v_mul_f32 v{T+2}, {hexf(1/32)}, v{T}")
        else: R(f"s_nop 0")
        R(f"v_cvt_pk_bf16_f32 v{Q+8+i}, v{T+4}, -v{T+5}")
    R(f"v_mul_f32 v{T+3}, v{T+2}, v{T+1}")
    R(f"ds_write_b128 v{T+7}, {v(Q+8,4)} offset:8192")
    R(f"v_add_f32 v{T+3}, v{T+3}, v{T+3}")
    R(f"s_lshr_b32 s{F.S_T0}, s{F.S_WAVE}, 1"); R(f"s_lshl_b32 s{F.S_T0}, s{F.S_T0}, 10"); R(f"s_and_b32 s{F.S_T1}, s{F.S_WAVE}, 1")
    R(f"s_lshl3_add_u32 s{F.S_T0}, s{F.S_T1}, s{F.S_T0}"); R(f"s_add_u32 s{F.S_T0}, s{F.S_T0}, {F.L_Y}")
    for e in range(2):
        if e: R(f"v_add_f32 v{T+3}, v{T+3}, v{T+2}")
        R(f"v_cos_f32 v{T+4}, v{T+3}"); R(f"v_sin_f32 v{T+5}, v{T+3}")
        R(f"v_add_u32 v{T+6}, s{F.S_T0}, v{F.V_L16}")
        R(f"v_cvt_pk_bf16_f32 v{Q+12+e}, v{T+4}, -v{T+5}"); R(f"v_cvt_pk_bf16_f32 v{Q+14+e}, v{T+5}, v{T+4}")
    R(f"ds_write_b64 v{T+6}, {v(Q+12,2)} offset:12288")
    R(f"ds_write_b64 v{T+6}, {v(Q+14,2)} offset:14336")

def inv_fetch(R):
    R(f"v_add_u32 v{TT}, {F.L_Y}, v{F.V_L16}")
    for k in range(4): R(f"ds_read_b128 {a(BB+4*k,4)}, v{TT} offset:{8192+k*1024}")
    for k in range(4): R(f"ds_read_b128 {a(BA+4*k,4)}, v{TT} offset:{12288+k*1024}")
    for k in range(8): R(f"ds_read_b128 {v(TW+4*k,4)}, v{TT} offset:{k*1024}")

def inv_dma(pol=" sc1"):
    L = [f"s_add_u32 m0, s{F.S_LW}, {F.L_Y}"]
    for u in range(4):
        L.append(f"buffer_load_dwordx4 v{VG}, {F.WS}, s{F.S_YD} offen offset:{u*1024}{pol} lds")
        if u < 3: L.append(f"s_add_u32 s{F.S_YD}, s{F.S_YD}, {0x40000-1024}")
    return L

def inv_data(R):
    s0 = F.S_RS
    for j in range(0, 8, 2): R(f"ds_read2st64_b32 {v(Y0+j,2)}, v{AP} offset0:{k2off(j)//256} offset1:{k2off(j+1)//256}")
    for j in range(8): R(f"ds_read_b32 v{Y1+j}, v{A1 if j == 0 else A0} offset:{k2off(j)+512}")
    R(f"v_lshlrev_b32 v{A1}, 31, v0")
    R(f"v_or_b32 v{A1}, 0.5, v{A1}")
    R(f"v_cmp_gt_u32 s[66:67], 32, v0")
    for par, Y in enumerate((Y0, Y1)):
        R(f"v_readlane_b32 s{s0+par}, v{Y}, 0")
        R(f"v_writelane_b32 v{Y}, 0, 0")
    R(f"v_cndmask_b32 v{A0}, 0, v{A1}, s[66:67]")
    for par in range(2): R(f"s_lshl_b32 s{s0+par}, s{s0+par}, 16")
    for par, (Y, d) in enumerate(((Y0, D0), (Y1, D2))):
        for q in range(2):
            for part, dd in enumerate((d, D1)):
                R(f"v_mfma_f32_32x32x16_bf16 {v(dd,16)}, {v(Y+4*q,4)}, {a(BA+8*part+4*q,4)}, {'0' if q==0 else v(dd,16)}")
        twiddle1(R, d, D1, TW, TW + 16, TT, True)
        R(f"v_fmac_f32 v{d}, s{s0+par}, v{A0}")
        for i in range(16): R(f"v_cvt_pk_bf16_f32 v{D1+i}, v{d+i}, v{D1+i}")
        for q in range(4):
            R(f"v_mfma_f32_32x32x16_bf16 {v(d,16)}, {v(D1+4*q,4)}, {a(BB+4*q,4)}, {'0' if q==0 else v(d,16)}")
    s0 = F.S_YR
    for rw in range(2):
        for q in range(2):
            for i in range(4):
                j = 8 * q + 2 * i
                t = Y0 + 2 * i
                for e in range(2): R(f"v_{'sub' if rw else 'add'}_f32 v{t+e}, v{D0+j+e}, v{D2+j+e}")
            for i in range(4): R(f"v_cvt_pk_bf16_f32 v{D1+8*rw+4*q+i}, v{Y0+2*i}, v{Y0+2*i+1}")
            R.add(Mark(f"y{2*rw+q}"))

def inv_stores(R):
    s0 = F.S_YR
    for rw in range(2):
        for q in range(2):
            R.add(After(f"y{2*rw+q}"))
            R(f"buffer_store_dwordx4 {v(D1+8*rw+4*q,4)}, v{F.V_L16}, {F.WS}, s{s0} offen offset:{q*1024} sc1", "yst")
        if rw == 0: R(f"s_add_u32 s{s0}, s{s0}, {1024*2048}")

def plain(P, L):
    for it in L:
        if isinstance(it, str): P(it)
        elif isinstance(it, tuple): P(it[0])
```

```python
from common import *
from stream import *
from rows import DROW, k2off, sincos_pack, twiddle, wave_reduce
import fused as F

class Inter:
    def __init__(s, P): s.P = P; s.side = []; s.gap = 8; s.n = 0; s.lock = False
    def push(s, L, sink): s.side += [(t, sink) for t in L]
    def one(s):
        while s.side:
            t, sink = s.side.pop(0)
            h = s.P(t)
            if h.kind == "vmem":
                sink.append(h); break
    def flush(s):
        while s.side: s.one()
    def __call__(s, text):
        h = s.P(text)
        s.n += 2 if text.split()[0] in TRANS else (8 if text.startswith("v_mfma") else 1)
        if s.side and not s.lock and s.n >= s.gap:
            s.n = 0; s.one()
        return h
    def __getattr__(s, k): return getattr(s.P, k)

def stage_addr3(R, A0, A1, AP, s0, swave, base, t):
    def pos(d, src):
        R(f"v_bfe_u32 v{t+1}, v{src}, 1, 2")
        R(f"v_bfe_u32 v{A0}, v{src}, 3, 2")
        R(f"v_and_b32 v{d}, 1, v{src}")
        R(f"v_lshl_add_u32 v{d}, v{A0}, 1, v{d}")
        R(f"v_lshl_add_u32 v{d}, v{t+1}, 3, v{d}")
        R(f"v_xor_b32 v{d}, s{s0}, v{d}")
        R(f"v_lshl_add_u32 v{d}, v{d}, 4, v{A1}")
    R(f"s_lshl_b32 s{s0}, s{swave}, 2")
    R(f"s_add_u32 s{s0}, s{s0}, {base}")
    R(f"v_lshrrev_b32 v{A1}, 5, v0")
    R(f"v_lshlrev_b32 v{A1}, 11, v{A1}")
    R(f"v_add_u32 v{A1}, s{s0}, v{A1}")
    R(f"s_bfe_u32 s{s0}, s2, 0x30003")
    R(f"v_add_u32 v{t}, -1, v0")
    pos(AP, 0)
    pos(t, t)
    R(f"v_and_b32 v{t+1}, 31, v0")
    R(f"v_cmp_eq_u32 vcc, 0, v{t+1}")
    R(f"v_add_u32 v{t+1}, -1024, v{t}")
    R(f"v_cndmask_b32 v{A0}, v{t}, v{t+1}, vcc")
    R(f"v_cmp_eq_u32 vcc, 0, v0")
    R(f"v_add_u32 v{t+1}, 16384, v{A0}")
    R(f"v_cndmask_b32 v{A1}, v{A0}, v{t+1}, vcc")

ST = 54
LROW, LSTAGE = F.L_AUX, F.L_AUX + 0x4000

def fwd_issue(P):
    st = ST
    P(f"s_lshr_b32 s{st}, s2, 3")
    P(f"s_and_b32 s{st+1}, s2, 7")
    P(f"s_lshl_b32 s{st+1}, s{st+1}, 2")
    P(f"s_add_u32 s{st+1}, s{st+1}, s{F.S_WAVE}")
    P(f"s_lshl_b32 s{st+1}, s{st+1}, 5")
    P(f"s_add_u32 s{st+2}, s{st+1}, s{st}")
    P(f"s_add_u32 m0, s{F.S_LW}, {LROW}")
    P(f"s_lshl_b32 s{st+1}, s{st+2}, 11")
    P(f"s_add_u32 s{st+3}, s{st+1}, {1024*2048-2048}")
    return [f"buffer_load_dwordx4 v{F.V_L16}, s[{F.S_X}:{F.S_X+3}], s{st+1+2*(j//2)} offen offset:{j*1024} lds" for j in range(4)]

def nq_issue(P):
    P(f"v_and_b32 v{NQ}, 3, v0"); P(f"v_lshl_add_u32 v{NQ}, s2, 2, v{NQ}")
    P(f"v_mul_u32_u24 v{NQ+2}, 2052, v{NQ}")
    P(f"s_mov_b64 exec, 15")
    P(f"global_load_dword v{NQ+1}, v{NQ+2}, s[4:5] offset:1024")
    P(f"global_load_dword v{NQ+2}, v{NQ+2}, s[6:7] offset:1024")
    P(f"s_mov_b64 exec, -1")

B1, TW, A2, X, D, PK, T = 64, 80, 112, 128, 144, 208, 240
NQ = 49
A0, A1, RA, AP = 60, 61, 62, 59

def fwd_consts(P):
    st = ST
    P(f"v_and_b32 v{T+8}, 31, v0")
    P(f"v_cvt_f32_u32 v{T+8}, v{T+8}")
    P(f"v_lshrrev_b32 v{T+9}, 5, v0")
    P(f"v_cvt_f32_u32 v{T+9}, v{T+9}")
    P(f"v_mul_f32 v{T+10}, {hexf(1/32)}, v{T+8}")
    P(f"v_mul_f32 v{T+11}, v{T+10}, v{T+9}")
    P(f"v_mul_f32 v{T+11}, {hexf(8.0)}, v{T+11}")
    for q in range(2):
        for jj in range(4):
            for e in range(2):
                k = 16 * q + 2 * jj + e
                if k == 0: P(f"v_mov_b32 v{T+e}, v{T+11}")
                else: P(f"v_fmamk_f32 v{T+e}, v{T+10}, {hexf(float(k))}, v{T+11}")
            P(f"v_cos_f32 v{T+2}, v{T}"); P(f"v_cos_f32 v{T+3}, v{T+1}")
            P(f"v_sin_f32 v{T+4}, v{T}"); P(f"v_sin_f32 v{T+5}, v{T+1}")
            P(f"v_cvt_pk_bf16_f32 v{B1+4*q+jj}, v{T+2}, v{T+3}")
            P(f"v_cvt_pk_bf16_f32 v{B1+8+4*q+jj}, -v{T+4}, -v{T+5}")
    P(f"v_bfe_u32 v{T}, v0, 2, 2")
    P(f"v_lshrrev_b32 v{T+1}, 5, v0")
    P(f"v_lshl_add_u32 v{T}, v{T+1}, 3, v{T}")
    P(f"v_lshlrev_b32 v{T}, 6, v{T}")
    P(f"v_bfe_u32 v{T+1}, v0, 4, 1")
    P(f"v_lshl_add_u32 v{T}, v{T+1}, 5, v{T}")
    P(f"v_and_b32 v{T+1}, 3, v0")
    P(f"v_lshl_add_u32 v{T}, v{T+1}, 3, v{T}")
    P(f"s_add_u32 s{st+3}, s{F.S_LW}, {LROW}")
    P(f"v_add_u32 v{RA}, s{st+3}, v{T}")
    P(f"v_mov_b32 v{T+13}, 0x3f803f80")
    P(f"v_mul_f32 v{T+10}, {hexf(1/1024)}, v{T+8}")
    P(f"v_mul_f32 v{T+11}, v{T+10}, v{T+9}")
    P(f"v_mul_f32 v{T+11}, 4.0, v{T+11}")
    for i in range(16):
        t = T + (i % 2)
        if DROW[i] == 0: P(f"v_mov_b32 v{t}, v{T+11}")
        else: P(f"v_fmamk_f32 v{t}, v{T+10}, {hexf(float(DROW[i]))}, v{T+11}")
        P(f"v_cos_f32 v{TW+i}, v{t}"); P(f"v_sin_f32 v{TW+16+i}, v{t}")
    P(f"v_bfe_u32 v{T+10}, v0, 1, 4")
    P(f"v_cvt_f32_u32 v{T+10}, v{T+10}")
    P(f"v_mul_f32 v{T+10}, {hexf(1/32)}, v{T+10}")
    P(f"v_and_b32 v{T+12}, 1, v0")
    P(f"v_cvt_f32_u32 v{T+12}, v{T+12}")
    P(f"v_mul_f32 v{T+11}, v{T+10}, v{T+9}")
    P(f"v_mul_f32 v{T+11}, 4.0, v{T+11}")
    P(f"v_fmac_f32 v{T+11}, {hexf(0.25)}, v{T+12}")
    sincos_pack(P, A2, T + 11, T + 10, DROW, T)
    stage_addr3(P, A0, A1, AP, st + 1, F.S_WAVE, LSTAGE, T)
    P(f"v_fma_f32 v{T+12}, v{T+12}, -2.0, 1.0")

def fwd_data(P, h, stamp=lambda P, k: None):
    st = ST; sg = st + 4; WS = F.WS
    P.wait_for(h)
    stamp(P, 'r0')
    for rw in range(2):
        for q in range(2):
            for hh in range(2):
                P(f"ds_read_b64_tr_b16 {v(X+8*rw+4*q+2*hh,2)}, v{RA} offset:{rw*2048+q*1024+hh*256}")
    for rw in range(2):
        for j in range(8):
            x = X + 8 * rw + j
            P(f"v_dot2_f32_bf16 v{T+3*rw}, v{x}, v{T+13}, {'0' if j == 0 else v(T+3*rw)}")
            P(f"v_dot2_f32_bf16 v{T+3*rw+1}, v{x}, v{x}, {'0' if j == 0 else v(T+3*rw+1)}")
    mf = []
    for rw in range(2):
        for q in range(2):
            for part in range(2):
                d = D + 32 * rw + 16 * part
                mf.append(f"v_mfma_f32_32x32x16_bf16 {v(d,16)}, {v(X+8*rw+4*q,4)}, {v(B1+8*part+4*q,4)}, {'0' if q==0 else v(d,16)}")
    R = Rec()
    for rw in range(2): R(f"v_mul_f32 v{T+3*rw+2}, v{T+3*rw}, v{T+12}")
    wave_reduce(R, [T + i for i in range(6)])
    for i in range(6): R(f"v_readlane_b32 s{sg+i}, v{T+i}, 63")
    L = R.L
    for i, m in enumerate(mf):
        P(m)
        for t_ in L[6 * i: 6 * i + 6]: P(t_)
    P(f"v_cmp_gt_f32 vcc, 0, v{T+12}")
    P(f"v_mov_b32 v{T}, s{sg}"); P(f"v_mov_b32 v{T+1}, s{sg+3}")
    P(f"v_mov_b32 v{T+2}, s{sg+1}"); P(f"v_mov_b32 v{T+3}, s{sg+4}")
    P(f"v_cndmask_b32 v{T}, v{T}, v{T+1}, vcc")
    P(f"v_cndmask_b32 v{T+2}, v{T+2}, v{T+3}, vcc")
    P(f"v_cmp_eq_f32 vcc, 0, v{T+8}")
    P(f"v_mov_b32 v{T+4}, {hexf(-1/32)}")
    P(f"v_mul_f32 v{T}, {hexf(-1/1024)}, v{T}")
    P(f"v_mul_f32 v{T+2}, {hexf(1/1024)}, v{T+2}")
    P(f"v_cndmask_b32 v{T+4}, 0, v{T+4}, vcc")
    P(f"v_fma_f32 v{T+2}, -v{T}, v{T}, v{T+2}")
    P(f"v_mul_f32 v{T+6}, s{sg+3}, v{T+4}")
    P(f"v_max_f32 v{T+2}, 0, v{T+2}")
    P(f"v_mul_f32 v{T+4}, s{sg}, v{T+4}")
    P(f"v_add_f32 v{T+2}, {hexf(1e-5)}, v{T+2}")
    P(f"v_rsq_f32 v{T+3}, v{T+2}")
    for rw in range(2):
        d = D + 32 * rw
        twiddle(P, d, d + 16, TW, TW + 16, T + 8, False, corr=T + 4 + 2 * rw)
        for i in range(16): P(f"v_cvt_pk_bf16_f32 v{PK+16*rw+i}, v{d+i}, v{d+16+i}")
    S = B1
    R = Rec()
    R(f"v_readlane_b32 s{sg+6}, v{T+3}, 0")
    R(f"v_readlane_b32 s{sg+7}, v{T+3}, 1")
    R(f"v_mul_f32 v{S+6}, v{T+2}, v{T+3}")
    R(f"v_cvt_pk_bf16_f32 v{S+1}, v{T}, v{T}")
    R(f"v_cvt_pk_bf16_f32 v{S}, v{S+6}, v{S+6}")
    R(f"v_and_b32 v{S+3}, 0xffff0000, v{S+1}")
    R(f"v_and_b32 v{S+2}, 0xffff0000, v{S}")
    R(f"v_sub_f32 v{S+3}, v{T}, v{S+3}")
    R(f"v_sub_f32 v{S+4}, v{S+6}, v{S+2}")
    R(f"v_mul_f32 v{S+5}, {hexf(GELU_C0)}, v{T+3}")
    R(f"v_cvt_pk_bf16_f32 v{S}, v{S+2}, v{S+4}")
    R(f"v_cvt_pk_bf16_f32 v{S+2}, v{S+3}, v{S+3}")
    R(f"v_mov_b32 v{S+3}, 0")
    R(f"v_mul_f32 v{S+4}, v{T+3}, v{T+3}")
    R(f"v_mov_b32 v{S+7}, 0")
    R(f"v_mul_f32 v{S+4}, v{S+4}, v{S+5}")
    R(f"v_lshlrev_b32 v{S+8}, 15, v0")
    R(f"v_mul_f32 v{S+4}, {hexf(0.044715)}, v{S+4}")
    R(f"s_lshl_b32 s{st+1}, s{st+2}, 5")
    R(f"s_add_u32 s{st+1}, s{st+1}, {F.W_STATS}")
    R(f"v_mov_b32 v{T}, s{sg+6}"); R(f"v_mov_b32 v{T+2}, s{sg+7}")
    R(f"s_add_u32 s{st+3}, s{F.S_LW}, {LSTAGE}")
    R(f"v_add_u32 v{T+8}, s{st+3}, v{F.V_L16}")
    R(f"v_lshrrev_b32 v{T+9}, 5, v0")
    R(f"v_and_b32 v{T+10}, 31, v0")
    R(f"v_lshlrev_b32 v{T+10}, 4, v{T+10}")
    R(f"v_lshl_add_u32 v{RA}, v{T+9}, 17, v{T+10}")
    R(f"s_lshl_b32 s{st+3}, s{F.S_WAVE}, 20")
    R(f"s_lshl_b32 s{st}, s2, 9")
    R(f"s_add_u32 s{st+3}, s{st+3}, s{st}")
    R(f"s_add_u32 s{st+3}, s{st+3}, {F.W_XBUF}")
    R(f"s_lshl_b32 s{st}, s{F.S_WAVE}, 28")
    R(f"v_and_b32 v{NQ+1}, 0xffff, v{NQ+1}")
    R(f"s_add_u32 s{st}, s{st}, {F.W_NQ}")
    R(f"v_lshl_or_b32 v{NQ+1}, v{NQ+2}, 16, v{NQ+1}")
    R(f"v_lshl_add_u32 v{NQ}, v{NQ}, 2, s{st}")
    L = R.L
    k = 0
    for q in range(4):
        for rw in range(2):
            d = D + 16 * rw
            P(f"v_mfma_f32_32x32x16_bf16 {v(d,16)}, {v(A2+4*q,4)}, {v(PK+16*rw+4*q,4)}, {'0' if q==0 else v(d,16)}")
            for t_ in L[k:k + 5]: P(t_)
            k += 5
    assert k >= len(L)
    hs = []
    P.lock = True
    P(f"s_mov_b64 exec, 15")
    hs.append(P(f"buffer_store_dword v{NQ+1}, v{NQ}, {WS}, 0 offen sc1"))
    P(f"s_mov_b64 exec, 3")
    hs.append(P(f"buffer_store_dwordx4 {v(S,4)}, v{S+8}, {WS}, s{st+1} offen sc1"))
    hs.append(P(f"buffer_store_dwordx4 {v(S+4,4)}, v{S+8}, {WS}, s{st+1} offen offset:16 sc1"))
    P(f"s_mov_b64 exec, -1")
    P.lock = False
    for rw in range(2):
        P(f"v_writelane_b32 v{D+16*rw}, s{sg+3*rw+2}, 0")
        P(f"v_writelane_b32 v{D+16*rw+1}, 0, 0")
    for j0 in range(0, 8, 2):
        for j in (j0, j0 + 1): P(f"v_pk_mul_f32 {v(D+16+2*j,2)}, {v(D+16+2*j,2)}, {v(T+2,2)} op_sel_hi:[1,0]")
        for j in (j0, j0 + 1): P(f"v_pk_fma_f32 {v(D+32+2*j,2)}, {v(D+2*j,2)}, {v(T,2)}, {v(D+16+2*j,2)} op_sel_hi:[1,0,1] neg_lo:[0,0,1] neg_hi:[0,0,1]")
        for j in (j0, j0 + 1): P(f"v_pk_fma_f32 {v(D+2*j,2)}, {v(D+2*j,2)}, {v(T,2)}, {v(D+16+2*j,2)} op_sel_hi:[1,0,1]")
        for j in (j0, j0 + 1): P(f"v_cvt_pk_bf16_f32 v{PK+8+j}, v{D+32+2*j}, v{D+33+2*j}")
        for j in (j0, j0 + 1): P(f"v_cvt_pk_bf16_f32 v{PK+j}, v{D+2*j}, v{D+2*j+1}")
        for j in (j0, j0 + 1):
            ad = A1 if j == 0 else A0
            P(f"ds_write_b32 v{ad}, v{PK+8+j} offset:{k2off(j)+512}")
        P(f"ds_write2st64_b32 v{AP}, v{PK+j0}, v{PK+j0+1} offset0:{k2off(j0)//256} offset1:{k2off(j0+1)//256}")
    P(f"s_and_b32 s{st}, s2, 7"); P(f"s_lshl_b32 s{st}, s{st}, 5"); P(f"s_lshr_b32 s{st+1}, s2, 3"); P(f"s_add_u32 s{st}, s{st}, s{st+1}")
    P(f"s_lshl_b32 s{st}, s{st}, 7"); P(f"s_lshl_b32 s{st+1}, s{F.S_WAVE}, 15"); P(f"s_add_u32 s{st}, s{st}, s{st+1}")
    P(f"s_add_u32 s{F.S_RS}, s{st}, {F.W_F1}")
    P.wait(lg=0); P.barrier()
    for u in range(4): P(f"ds_read_b128 {v(D+4*u,4)}, v{T+8} offset:{u*1024}")
    for u in range(4):
        hs.append(P(f"buffer_store_dwordx4 {v(D+4*u,4)}, v{RA}, {WS}, s{st+3} offen sc1"))
        if u < 3: P(f"s_add_u32 s{st+3}, s{st+3}, 0x40000")
    stamp(P, 'r1')
    return hs
```

```python
from common import *

class Gap:
    def __init__(s, n): s.n = n
class At:
    def __init__(s, slot): s.slot = slot
class Bar:
    def __init__(s): s.seen = None
class Fn:
    def __init__(s, f, c=4): s.f = f; s.c = c
class Mark:
    def __init__(s, name): s.name = name
class After:
    def __init__(s, name, d=0): s.name = name; s.d = d

class DmaDone:
    def __init__(s, st): s.st = st

class Rec:
    def __init__(s): s.L = []
    def __call__(s, text, tag=None): s.L.append(text if tag is None else (text, tag))
    def add(s, x): s.L.append(x)

CO = dict(dma=8, st=12, ld=8, dsw=16, br=12, ex=8)
def cost2(text):
    op = text.split()[0]
    if op in TRANS: return 8
    if op.startswith("buffer_") or op.startswith("global_"):
        if "store" in op: return CO["st"] if "x4" in op else 8
        return CO["dma"]
    if op.startswith("ds_write"): return CO["dsw"] if "b128" in op else 8
    if op.startswith("s_cbranch"): return CO["br"]
    if op == "s_nop": return 4 * (int(text.split()[1]) // 4 + 1)
    if "exec" in text: return CO["ex"]
    return 4
def is_vm(text): return text.startswith("buffer_") or text.startswith("global_")

class Stream:
    def __init__(s, P):
        s.P = P; s.slots = []; s.reads = []; s.first = {}; s.ev = {}; s.queues = []; s.tags = {}; s.marks = {}
        s.dma_at_bar = {}
        s.dma_h = {}; s.pre_bar = {}; s.post_bar = {}; s.dq = []; s.nbar = 0; s.boff = {}; s.over = {}; s.force_vm = {}; s.nstamp = lambda P, k: None; s.nvm0 = None
        s.last_st = -99; s.sgap = lambda i: 0; s.swin = lambda i: False
    def add(s, m): s.slots.append(m); return len(s.slots) - 1
    def read(s, st, cons, text): s.reads.append((st, cons, text))
    def event(s, slot, item): s.ev.setdefault(slot, []).append(item)
    def emit(s, it):
        P = s.P
        if isinstance(it, str): return P(it)
        if isinstance(it, tuple):
            h = P(it[0]); s.tags.setdefault(it[1], []).append(h); return h
        if isinstance(it, Fn): return it.f(P)
        if isinstance(it, Mark):
            s.marks[it.name] = P.cur; s.nstamp(P, it.name); return None
        raise ValueError(it)
    def timed(s, name, f):
        def g(P):
            s.nstamp(P, name + "<"); f(P); s.nstamp(P, name + ">")
        return g
    def wait_tag(s, tag): return Fn(s.timed(tag, lambda P: P.wait_for(s.tags[tag])))
    def poll(s, name, regs, stok, rl): return Fn(s.timed(name, lambda P: poll_check(P, regs, stok, rl, lambda: s.nstamp(P, name + "="))), 20)
    def push_dma(s, L, st, gate=-99):
        s.dma_h.setdefault(st, [])
        s.dq += [(t, st, gate) for t in L]
    def spent(s, n1): return sum(cost2(x.text) for x in s.P.out[n1:] if x.kind != "dir")
    def head(s, q, i, tail=False):
        P = s.P
        while q["L"]:
            if not tail and q["hold"] > i: return None
            it = q["L"][0]
            if isinstance(it, Gap):
                q["L"].pop(0); q["hold"] = i + it.n; continue
            if isinstance(it, At):
                if not tail and i < it.slot: return None
                q["L"].pop(0); continue
            if isinstance(it, After):
                if it.name not in s.marks or (not tail and i < s.marks[it.name] + it.d): return None
                q["L"].pop(0); continue
            if isinstance(it, DmaDone):
                if any(x[1] <= it.st for x in s.dq): return None
                q["L"].pop(0); continue
            if isinstance(it, Bar):
                if it.seen is None: it.seen = s.nbar
                if s.nbar == it.seen:
                    if not tail: return None
                    P.wait(lg=0); P.barrier(); s.nbar += 1
                q["L"].pop(0); continue
            if isinstance(it, Mark):
                q["L"].pop(0); s.emit(it); continue
            return it
        return None
    def ready(s, q, it, i):
        if isinstance(it, Fn): return it.c
        text = it if isinstance(it, str) else it[0]
        n, lg, vm = s.P.peek(text)
        if n > 1: return None
        if lg is not None and i - lg < s.lat: return None
        if vm is not None and i - vm < q["vmlat"]: return None
        return cost2(text) + 4 * min(n, 1) + (4 if lg is not None or vm is not None else 0)
    def fill(s, q, i, used, bud, vm_ok, only_vm=False):
        P = s.P
        while True:
            it = s.head(q, i)
            if it is None: break
            text = None if isinstance(it, Fn) else (it if isinstance(it, str) else it[0])
            if text and text.startswith("v_mfma"): break
            vm = bool(text and is_vm(text))
            if only_vm and not vm: break
            if vm and (not vm_ok[0] or used > s.vm_late): break
            big_st = vm and "store_dwordx" in text
            if big_st and i - s.last_st < s.sgap(i): break
            if vm and "store" in text and s.swin(i) and any(is_vm(x[0]) and x[2] < i for x in s.dq): break
            c = s.ready(q, it, i)
            if c is None or (used + c > bud and not (c > 12 and used <= 4 and bud >= 20)): break
            n1 = len(P.out)
            q["L"].pop(0); s.emit(it)
            used += s.spent(n1)
            if vm: vm_ok[0] = False
            if big_st: s.last_st = i
        return used
    def queue(s, L, vmlat=30):
        q = {"L": list(L), "hold": -1, "vmlat": vmlat}; s.queues.append(q); return q
    def bars(s, BOFF, first_stage=0):
        s.bar_at = {st: s.first[st] - s.boff.get(st, BOFF) for st in sorted(s.first) if st > first_stage}
        return s.bar_at
    def run(s, budget=24, LA=10, LAT=4, NB=12, dma_gap=None, barx=None, first_stage=0, stamps=None, PRE=5, vm_late=8, bud16=8):
        P = s.P; n = len(s.slots); bar_at = s.bar_at
        s.lat = LAT; s.vm_late = vm_late
        barpos = {p: st for st, p in bar_at.items()}
        prepos = {p - PRE: st for st, p in bar_at.items()}
        RD = []; lastuse = {}
        for (st, cons, text) in sorted(s.reads, key=lambda x: x[1]):
            dst = text.split()[1].rstrip(",")
            rel = lastuse.get(dst, -99); lastuse[dst] = cons
            dl = cons - 3
            if st is not None:
                if st in bar_at: rel = max(rel, bar_at[st])
                if st + 1 in bar_at: dl = min(dl, bar_at[st + 1] - 2)
            RD.append([rel, min(cons - LA, dl), dl, cons, text])
        rd_h = []
        P.cur = -1
        P.wait_for(s.dma_h[first_stage]); P.barrier(); s.nbar += 1
        if stamps and -1 in stamps: stamps[-1](P)
        while RD and RD[0][1] < 0:
            r_ = RD.pop(0); rd_h.append((r_[3], -1, P(r_[4])))
        P.wait_for([h for c, _, h in rd_h if c == 0])
        last_dma = -10
        for i in range(n):
            P.cur = i
            if stamps and i in stamps: stamps[i](P)
            P(s.slots[i])
            big = "32x32" in s.slots[i]
            if i in prepos:
                st = prepos[i]
                for L, stg in s.dma_at_bar.get(st, []): s.push_dma(L, stg, bar_at[st])
            sub = 0
            while True:
                n0 = len(P.out)
                bud = bud0 = budget(i) if big else bud16
                isbar = i in barpos and sub == 0
                if isbar:
                    st = barpos[i]
                    assert not any(x[1] <= st for x in s.dq), f"dma of stage {st} not issued at its barrier"
                    assert not any(r_[2] < i for r_ in RD[:4])
                    for it in s.pre_bar.get(st, []): s.emit(it)
                    s.nstamp(P, f"b{st}<")
                    if st in s.force_vm:
                        nvm = sum(1 for x in P.out if x.kind == "vmem")
                        if s.nvm0 is None: s.nvm0 = nvm
                        k = min([s.force_vm[st] + nvm - s.nvm0] + [len(P.vm) - 1 - P.vm.index(h) for h in s.dma_h[st] if h in P.vm])
                        P.wait(vm=k, lg=0, force=True)
                    else: P.wait_for(s.dma_h[st] + P.lg)
                    s.nstamp(P, f"b{st}=")
                    P.barrier(); s.nbar += 1
                    s.nstamp(P, f"b{st}>")
                    for it in s.post_bar.get(st, []): s.emit(it)
                    bud = min(bud, s.spent(n0) + barx(i))
                needw = any(c == i + 1 and h in P.lg for c, _, h in rd_h)
                if needw: bud -= 4
                vm_ok = [big and not isbar]
                ndma = sum(1 for x in s.dq if is_vm(x[0]) and x[2] < i)
                if vm_ok[0] and s.dq and is_vm(s.dq[0][0]) and s.dq[0][2] < i and (i - last_dma >= dma_gap(i, ndma, min([p for p in barpos if p > i] + [n]) - i) or sub):
                    t, st, _ = s.dq.pop(0)
                    s.dma_h[st].append(P(t)); last_dma = i; vm_ok[0] = False
                else:
                    for q in s.queues:
                        if vm_ok[0]: s.fill(q, i, 0, bud, vm_ok, only_vm=True)
                kb = 0
                while RD and RD[0][0] <= i and RD[0][1] <= i:
                    w = 2 if "b128" in RD[0][4] else 1
                    urgent = any(r_[2] <= i for r_ in RD[:8])
                    if not urgent and (kb + w > (4 if big else 2) or s.spent(n0) + 4 > bud): break
                    r_ = RD.pop(0); kb += w
                    rd_h.append((r_[3], i, P(r_[4])))
                rd_h = rd_h[-40:]
                if sub == 0:
                    for it in s.ev.get(i, []): s.emit(it)
                while s.dq and not is_vm(s.dq[0][0]) and s.spent(n0) + 4 <= bud:
                    P(s.dq.pop(0)[0])
                used = s.spent(n0)
                for q in s.queues: used = s.fill(q, i, used, bud, vm_ok)
                s.over[i] = s.over.get(i, 0) + max(0, used + (4 if needw else 0) - (24 if big else 8))
                mq = None
                for q in s.queues:
                    it = s.head(q, i)
                    if isinstance(it, str) and it.startswith("v_mfma") and s.ready(q, it, i) is not None: mq = q; break
                if mq is None: break
                P(mq["L"].pop(0)); big = True; sub += 1
            hs = [h for c, _, h in rd_h if c == i + 1 and h in P.lg]
            if hs: P.wait_for(hs + [h for c, sl, h in rd_h if sl <= i + 1 - LAT])
        P.cur = n
        if stamps and n in stamps: stamps[n](P)
        left = [len(q["L"]) for q in s.queues]
        for q in s.queues:
            while True:
                it = s.head(q, n, tail=True)
                if it is None: break
                q["L"].pop(0); s.emit(it)
        assert not any(q["L"] for q in s.queues) and not RD and not s.dq, ([q['L'][:2] for q in s.queues], RD[:2], s.dq[:2], s.marks)
        return left

_npoll = [0]
def poll_check(P, regs, stok, reload, mid=None, post=()):
    k = _npoll[0]; _npoll[0] += 1
    def chk():
        L = []
        if len(regs) == 1: L.append(f"v_cmp_ne_u32 vcc, s{stok}, v{regs[0]}")
        else:
            for r_ in regs: L.append(f"v_xor_b32 v{r_}, s{stok}, v{r_}")
            if len(regs) == 3: L.append(f"v_or3_b32 v{regs[0]}, v{regs[0]}, v{regs[1]}, v{regs[2]}")
            else: L.append(f"v_or_b32 v{regs[0]}, v{regs[0]}, v{regs[1]}")
            L.append(f"v_cmp_ne_u32 vcc, 0, v{regs[0]}")
        L.append(f"s_cbranch_vccnz L_spin{k}")
        return L
    for t in chk():
        if mid and t.startswith("s_cbranch"): mid()
        P(t)
    P.label(f"L_back{k}")
    P.tail += [f"L_spin{k}:", "s_cmp_eq_u32 s3, 0", f"s_cbranch_scc1 L_back{k}", "s_sub_u32 s3, s3, 1", "s_sleep 1"] + reload + ["s_waitcnt vmcnt(0)"] + list(post) + chk() + [f"s_branch L_back{k}"]

def tag_pre(regs, t, stok):
    regs = regs[::-1]
    L = [f"v_xor_b32 v{t}, s{stok}, v{regs[0]}"]
    for k in range(1, len(regs), 2):
        L += [f"v_xor_b32 v{t+1}, s{stok}, v{regs[k]}", f"v_xor_b32 v{t+2}, s{stok}, v{regs[k+1]}", f"v_or3_b32 v{t}, v{t}, v{t+1}, v{t+2}"]
    return L
def tag_check(P, pre, t, sm, reload, mid=None):
    k = _npoll[0]; _npoll[0] += 1
    chk = [f"v_cmp_lt_u32 vcc, s{sm}, v{t}", f"s_cbranch_vccnz L_spin{k}"]
    for x in chk:
        if mid and x.startswith("s_cbranch"): mid()
        P(x)
    P.label(f"L_back{k}")
    P.tail += [f"L_spin{k}:", "s_cmp_eq_u32 s3, 0", f"s_cbranch_scc1 L_back{k}", "s_sub_u32 s3, s3, 1", "s_sleep 2"] + reload + ["s_waitcnt vmcnt(0)"] + pre + chk + [f"s_branch L_back{k}"]
```

```python
import sys
from common import *
import rows2, rows3, col2
import fused as F
from stream import *
NAME = "parallel_sum__spectral_gfnet__dense_activation_gelu__prompt"
HEAD = open(f"cdna_kernels/{NAME}.s.ref").read().split("; Override launch")[0]
STAMPS = len(sys.argv) > 2 and sys.argv[2] == "1"
OPT = eval(sys.argv[3]) if len(sys.argv) > 3 else {}
O = dict(gapG=20, gapW=48, gapW2=40, wlag=3, xpos=32, plag=3, xat=[((0, 0), (0, 0)), ((0, 4), (0, 5)), ((1, 4), (1, 5))], preG=3, tF4=44, stY=35, stX=38, acky=30, f1gap=280, w2pf=[345, 378, 410, 443])
O.update(OPT)
if "rot" in O: F.ROTC = O["rot"]
F.FAKE = O.get("fake", 0)
F.HPOL = O.get("hpol", " sc1")
WS = F.WS

STG = O.get("st", ["k1", "c0", "r0", "r1", -1, 80, 160, 240, 320, 388, 453, 518, 584, 648, 712, 776, 808, 836, 864, 892, 920, 948, 976, 1004, 1032]) + \
      O.get("stf", ["fa", "fb", "w1>", "w2>", "f1", "w3>", "f8", "fp", "f3", "f4", (0, 0), (1, 0), (2, 0), (3, 0), "fe", "f6", "f7"])
class NS:
    def __init__(s, S, names): s.S = S; s.m = {n: i for i, n in enumerate(names)}
    def __call__(s, P, name):
        if name in s.m: s.S(P, s.m[name])
def tok(P):
    P(f"s_and_b32 s{F.S_TOK}, s{F.S_TOK}, -16"); P(f"s_add_u32 s{F.S_TOK}, s{F.S_TOK}, 0x{F.TOKINC:x}")

def rows_inv(S, g0, bar):
    R = Rec()
    R.add(At(g0 + 1)); R.add(After("gelu5"))
    rows2.inv_fetch(R)
    R(f"v_min_u32 v4, 7, v0"); R(f"v_lshlrev_b32 v4, 9, v4")
    R.add(Bar())
    rl = [f"buffer_load_dword v5, v4, {WS}, s{F.S_F4P} offen sc1"]
    R.add(At(bar[O["stY"]] - O["tF4"] - 20)); R(rl[0])
    R.add(Gap(20)); R.add(S.poll("F4", [5], F.S_TOK, rl))
    R.add(Mark("f4c"))
    R.add(Fn(lambda P: S.push_dma(rows2.inv_dma(), O["stY"]), 0))
    R.add(After("gelu6")); F.tile_voff(R, 2, False); R.add(Mark("xv")); R.add(Bar())
    R.add(Fn(lambda P: S.push_dma(F.tile_dma(F.S_X, F.S_XD, F.L_ST), O["stX"]), 0)); R.add(Mark("xd"))
    S.queues.insert(1, {"L": R.L, "hold": -1, "vmlat": 0})
    R = Rec()
    R.add(After("xv")); R.add(After("gelu7")); R.add(At(bar[O["stY"]] + 1))
    rows2.inv_data(R)
    R.add(At(bar[O["stX"]] + 1))
    R.add(Mark("rows_valu"))
    S.queue(R.L, vmlat=0)
    R = Rec()
    rows2.inv_stores(R)
    R.add(Mark("rows_inv_done"))
    R.add(Gap(O["acky"])); R.add(S.wait_tag("yst")); R(F.flag_store(F.S_F5F)); R.add(Mark("f5"))
    S.queue(R.L, vmlat=0)

def code_pf(P):
    P("s_getpc_b64 s[66:67]")
    P.label("L_pc")
    P(f"s_lshr_b32 s{F.S_T0}, s2, 3"); P(f"s_lshl2_add_u32 s{F.S_T0}, s{F.S_T0}, s{F.S_WAVE}")
    P(f"s_lshl_b32 s{F.S_T0}, s{F.S_T0}, 7")
    P(f"v_lshl_add_u32 v55, v0, 14, s{F.S_T0}")
    P(f"v_min_u32 v55, L_code_end-L_pc-4, v55")
    P(f"s_mov_b64 exec, 31")
    P(f"global_load_dword v55, v55, s[66:67]")
    P(f"s_mov_b64 exec, -1")

def w_pf(P):
    P(f"s_lshr_b32 s{F.S_T0}, s2, 3"); P(f"s_lshl_b32 s{F.S_T0}, s{F.S_T0}, 2"); P(f"s_add_u32 s{F.S_T0}, s{F.S_T0}, s{F.S_WAVE}")
    P(f"s_mul_i32 s{F.S_T0}, s{F.S_T0}, {8*2052}")
    P(f"s_and_b32 s{F.S_T1}, s2, 1"); P(f"s_mul_i32 s{F.S_T1}, s{F.S_T1}, 1028"); P(f"s_add_u32 s{F.S_T0}, s{F.S_T0}, s{F.S_T1}")
    P(f"s_lshl_b32 s{F.S_T1}, s{F.S_KQ}, 8"); P(f"s_add_u32 s{F.S_T0}, s{F.S_T0}, s{F.S_T1}")
    P(f"v_and_b32 v53, 3, v0"); P(f"v_bfe_u32 v54, v0, 2, 3"); P(f"v_mul_u32_u24 v54, 2052, v54")
    P(f"v_lshlrev_b32 v53, 7, v53")
    P(f"v_min_u32 v53, 252, v53")
    P(f"v_add3_u32 v54, v53, v54, s{F.S_T0}")
    P(f"s_mov_b64 exec, 0x77777777")
    P(f"global_load_dword v53, v54, s[4:5]")
    P(f"global_load_dword v54, v54, s[6:7]")
    P(f"s_mov_b64 exec, -1")

def build(name):
    P = Prog()
    S = Probe(*O["probe"]) if "probe" in O else Stamps(STAMPS, 0)
    P(f"s_load_dwordx2 s[{F.S_X}:{F.S_X+1}], s[0:1], 0")
    P(f"s_load_dwordx2 s[{F.S_WS}:{F.S_WS+1}], s[0:1], 80")
    P("s_load_dwordx8 s[8:15], s[0:1], 32")
    P(f"s_load_dwordx2 s[{F.S_OUT}:{F.S_OUT+1}], s[0:1], 64")
    P("s_load_dwordx4 s[4:7], s[0:1], 8")
    S.begin(P)
    N = NS(S, STG)
    P("s_cmp_ge_u32 s2, 256")
    P(f"s_cbranch_scc1 L_end")
    if O.get("scr"):
        P("s_and_b32 s3, s2, 7"); P("s_lshl_b32 s3, s3, 5"); P("s_lshr_b32 s2, s2, 3"); P("s_or_b32 s2, s2, s3")
    P("s_mov_b32 s3, 0x20000")
    F.ids(P)
    if O.get("cpf", 1): code_pf(P)
    P(f"s_mov_b32 s{F.S_X+2}, 0x400000"); P(f"s_mov_b32 s{F.S_X+3}, 0x20000")
    P(f"s_mov_b32 s{F.S_WS+2}, 0x10000000"); P(f"s_mov_b32 s{F.S_WS+3}, 0x20000")
    P(f"s_mov_b32 s{F.S_OUT+2}, 0x400000"); P(f"s_mov_b32 s{F.S_OUT+3}, 0x20000")
    L = rows3.fwd_issue(P)
    FC = Rec(); rows3.fwd_consts(FC)
    n0, n1 = O.get("pre0", 0), O.get("pre1", 100)
    for t in FC.L[:n0]: P(t)
    N(P, "k0")
    P.wait(lg=0)
    N(P, "k1")
    hr = [P(t) for t in L]
    P(f"s_load_dword s{F.S_TOK}, s[{F.S_WS}:{F.S_WS+1}], {F.W_EPOCH}")
    for t in FC.L[n0:n1]: P(t)
    rows3.nq_issue(P)
    if O.get("wpf", 1): w_pf(P)
    for t in FC.L[n1:]: P(t)
    tok(P)
    N(P, "c0")
    P("s_cmp_ge_u32 s2, 224")
    P(f"s_cbranch_scc1 L_fft")
    vm0, lg0, pend0 = list(P.vm), list(P.lg), getattr(S, "pend", None)
    F.g1_setup_dma(P)
    srd(P, F.S_W, 8, 1024*3584*2)
    srd(P, F.S_B, 10, 3584*2)
    St = Stream(P)
    I = rows3.Inter(P); I.gap = O["gapG"]
    for st in range(4): St.dma_h[st] = []
    for st in range(O["preG"]): I.push(F.dma1(st), St.dma_h[st])
    F.g1_setup_rest(I)
    N(P, "c1")
    hs = rows3.fwd_data(I, hr, stamp=N)
    I.flush()
    for st in range(O["preG"], 4): St.push_dma(F.dma1(st), st)
    o = dict(O); o.update(f1=hs, rows_inv=rows_inv, inv_consts=lambda R: rows2.inv_consts(R, F.blk(4)), entry=S.save)
    St.nstamp = N
    o["ptsd"] = {k: i for k, i in N.m.items() if isinstance(k, int)}
    F.build_stream(P, St, o, stamp=S if S.on else None)
    P(f"s_or_b32 s{F.S_T0}, s2, s{F.S_WAVE}")
    P(f"s_cmp_lg_u32 s{F.S_T0}, 0")
    P(f"s_cbranch_scc1 L_noep")
    P(f"s_mov_b32 s{F.S_T0}, {F.W_EPOCH}")
    P(F.flag_store(F.S_T0))
    P.label(f"L_noep")
    S.end(P, F.S_WAVE, ws=F.S_WS)
    P.label(f"L_end")
    P("s_endpgm")
    P.label(f"L_fft")
    P.vm, P.lg, S.pend = list(vm0), list(lg0), pend0
    P.cur = -1000
    C = col2
    srd(P, C.S_FW, 4, 2048*513*2)
    srd(P, C.S_FW + 4, 6, 2048*513*2)
    C.col_ids(P); C.w_setup(P)
    I = rows3.Inter(P); I.gap = O["gapW"]
    hw = []
    for sl in range(4): I.push(C.w_dma(sl), hw)
    R = Rec(); C.w_read_setup(R); C.x_setup(R); F.flag_regs(R)
    R(f"v_lshlrev_b32 v1, 7, v0")
    pre = R.L
    R = Rec()
    R(f"s_lshr_b32 s{F.S_E1}, s{C.S_SF}, 3"); R(f"s_lshl_b32 s{F.S_E1}, s{F.S_E1}, 15"); R(f"s_lshl_b32 s{F.S_T0}, s{F.S_WAVE}, 13")
    R(f"s_add_u32 s{F.S_E1}, s{F.S_E1}, s{F.S_T0}"); R(f"s_add_u32 s{F.S_E1}, s{F.S_E1}, {F.W_F1}")
    rl = [f"buffer_load_dword v{F.V_FL}, v1, {WS}, s{F.S_E1} offen sc1"]
    R(f"s_lshl_b32 s{F.S_FX}, s{F.S_WAVE}, 5"); R(f"s_add_u32 s{F.S_FX}, s{F.S_FX}, s{C.S_SF}")
    R(f"s_lshl_b32 s{F.S_FX}, s{F.S_FX}, 9"); R(f"s_add_u32 s{F.S_FX}, s{F.S_FX}, {F.W_F4}")
    CR = Rec(); C.consts(CR, parts=True)
    R.L += sum(CR.parts, [])
    cuts = [len(R.L)]
    F.hbase(R); F.g2_setup(R); F.g2_setup_b(R); cuts.append(len(R.L)); F.epi_setup(R)
    cuts.append(len(R.L))
    rows2.inv_consts(R, C.BLK[0][1])
    cuts.append(len(R.L))
    work = R.L
    for t in pre: I(t)
    hs = rows3.fwd_data(I, hr, stamp=N)
    I.gap = O["gapW2"]
    rd = []; ns = 0; st8 = 0
    hx = [[] for _ in range(4)]
    def slot_in():
        nonlocal ns, rd
        N(P, f'w{ns}<'); P.wait_for(hw[8 * ns + 7]); P.barrier(); N(P, f'w{ns}>')
        rd += C.w_reads(ns); ns += 1
    def x0():
        N(P, 'fp')
        poll_check(P, [F.V_FL], F.S_TOK, rl)
        P.wait(lg=0); P.barrier()
        N(P, 'f3')
        n0 = C.nyq_load(P)
        for t in C.x_dma(0):
            h = P(t)
            if h.kind == "vmem": hx[0].append(h)
        P(F.flag_store(F.S_FX))
        return n0
    def events(k):
        nonlocal st8, n0
        if ns < 3 and len(hw) >= 8 * ns + 8 + O["wlag"] and not rd: slot_in()
        if st8 == 0 and len(hw) >= O["xpos"] - O["plag"]: N(P, 'f1'); P(rl[0]); st8 = 1
        if st8 == 1 and len(hw) >= O["xpos"] and len(hw) % 4 == 0 and ns >= 2 and k > O["f1gap"]: n0 = x0(); st8 = 2
    n0 = None
    for k in range(len(work)):
        if k == O["f1gap"]:
            N(P, 'fa'); P.wait_for(hs); P(F.flag_store(F.S_RS)); N(P, 'fb')
        events(k)
        if work[k].startswith("ds_write"): assert ns > 0
        I(work[k])
        if rd and k % 4 == 0: I(rd.pop(0))
    print("W instrs left", 32 - len(hw), "slots read", ns, "state", st8)
    while I.side or st8 < 2 or ns < 3:
        events(9999)
        for t in rd: P(t)
        rd = []
        if I.side: I.one()
    wf = C.w_fill(0)
    for t in F.f3_addr() + wf[:24]: P(t)
    slot_in()
    for t in rd: P(t)
    C.flush_setup(P)
    for t in wf[24:]: P(t)
    C.pre_main(P, n0)
    N(P, 'f4')
    P.wait_for(hx[0]); P.barrier()
    xd = lambda q: [Fn(lambda P, t=t: hx[q].append(P(t)), 8) if is_vm(t) else t for t in C.x_dma(q)]
    extra = {(3, 0): F.dma2_w(24), (3, 4): F.dma2_w(25)}
    for q, (a_, b_) in zip((1, 2, 3), O["xat"]):
        extra.setdefault(a_, []).extend(xd(q)[:6]); extra.setdefault(b_, []).extend(xd(q)[6:])
    C.main(P, hx, extra, lambda P: None, stamp=N, BUD=O.get("cbud", 24))
    N(P, 'fe')
    for t in C.flush_reads(3) + F.dma2_w(26) + F.f3_reload(0): P(t)
    hy = [P(t) for t in C.flush_stores(3)]
    N(P, 'f8')
    poll_check(P, [F.V_FL], F.S_TOK, F.f3_reload(0), post=[F.flag_store(F.S_FX, 384)])
    P.barrier()
    N(P, 'f7')
    for t in F.dma2_h(24) + F.dma2_h(25): P(t)
    P(f"s_lshl2_add_u32 s{F.S_HB}, s2, s{F.S_WAVE}"); P(f"s_lshl_b32 s{F.S_HB}, s{F.S_HB}, 11"); P(f"s_add_u32 s{F.S_HB}, s{F.S_HB}, {F.W_DUMMY-224*8192}")
    P(f"v_mov_b32 v{F.V_SO}, 0")
    P.wait_for(hy)
    P(F.flag_store(F.S_FX, 384))
    N(P, 'f6')
    for t in F.dma2_h(26):
        if is_vm(t): break
        P(t)
    S.save(P)
    P.wait(vm=1, lg=0)
    P("s_branch L_g2_entry")
    return P

out = [HEAD.rstrip("\n")]
out.append(f"; @launch grid=(256,1,1) block=(256,1,1) lds=163840")
if STAMPS: out.append(f"; STAMPS {STG}")
out.append('.amdgcn_target "amdgcn-amd-amdhsa--gfx950"\n.text')
n = NAME + "_kernel"
P = build(n); print(P.count(), "instrs", P.nnop, "nops")
out.append(kernel_header(n) + P.text() + "L_code_end:\n")
out.append('.section .rodata,"a"')
out.append(kernel_desc(n, 512, 256))
open(sys.argv[1], "w").write("\n".join(out) + "\n")
```

```python
from common import *
from stream import *
from rows import DROW
from rows2 import angles, twiddle1
import fused as F

T = 24
V_XA, V_FLD, V_G, V_WD = 2, 10, 12, 40
S_FW = 84
BLK = [[64, 112, 128], [144, 160, 176]]
TW, WQ, FS = 80, 192, 224
FB = 40
AM, AW = 0, 128
S_SF, S_C0, S_C1, S_XG = F.S_XB, F.S_RT, F.S_ROT, F.S_HB

WSW = 0
S_WA, S_WH = F.S_XB1, (F.S_WB, F.S_KB)
def col_ids(P):
    P(f"s_lshl_b32 s{S_SF}, s{F.S_KQ}, 3")
    P(f"s_bfe_u32 s{S_C0}, s2, 0x20003")
    P(f"s_lshl_b32 s{S_C0}, s{S_C0}, 1")
    P(f"s_add_u32 s{S_SF}, s{S_SF}, s{S_C0}")
    P(f"s_and_b32 s{S_C0}, s2, 1")
    P(f"s_add_u32 s{S_SF}, s{S_SF}, s{S_C0}")

def w_setup(P):
    P(f"v_lshrrev_b32 v{V_WD}, 2, v0")
    P(f"v_mul_u32_u24 v{V_WD}, 2052, v{V_WD}")
    P(f"v_lshrrev_b32 v{V_WD+1}, 4, v0")
    P(f"v_xor_b32 v{V_WD+1}, v{V_WD+1}, v0")
    P(f"v_and_b32 v{V_WD+1}, 3, v{V_WD+1}")
    P(f"v_lshl_add_u32 v{V_WD}, v{V_WD+1}, 4, v{V_WD}")
    for j in range(1, 4): P(f"v_add_u32 v{V_WD+j}, {j*(16*2052-1024)}, v{V_WD}")
    P(f"s_and_b32 s{S_C0}, s{S_SF}, 1")
    P(f"s_mul_i32 s{S_C0}, s{S_C0}, 1028")
    P(f"s_lshr_b32 s{S_C1}, s{S_SF}, 1")
    P(f"s_lshl_b32 s{S_C1}, s{S_C1}, 6")
    P(f"s_add_u32 s{S_C0}, s{S_C0}, s{S_C1}")
    P(f"s_mul_i32 s{S_C1}, s{F.S_WAVE}, {128*2052}")
    P(f"s_add_u32 s{S_C0}, s{S_C0}, s{S_C1}")
    if WSW:
        P(f"s_bfe_u32 s{S_C1}, s2, 0x10003")
        P(f"s_lshl_b32 s{S_WA}, s{S_C1}, 15"); P(f"s_add_u32 s{S_WA}, s{S_WA}, s{F.S_LW2}")
        P(f"s_mul_i32 s{S_C1}, s{S_C1}, {512*2052}")
        P(f"s_add_u32 s{S_WH[0]}, s{S_C0}, s{S_C1}"); P(f"s_sub_u32 s{S_WH[1]}, s{S_C0}, s{S_C1}")

def nyq_load(P):
    P(f"s_or_b32 s{S_C1}, s{S_SF}, s{F.S_WAVE}")
    P(f"s_cmp_lg_u32 s{S_C1}, 0")
    P(f"s_cbranch_scc1 L_nonyq")
    t = FS + 16
    P(f"v_and_b32 v{t}, 31, v0"); P(f"v_lshrrev_b32 v{t+1}, 5, v0"); P(f"v_lshl_add_u32 v{t}, v{t+1}, 7, v{t}")
    P(f"v_lshlrev_b32 v{t}, 2, v{t}"); P(f"s_mov_b32 s{S_C1}, {F.W_NQ}")
    for i in range(16): P.raw(f"buffer_load_dword v{FS+i}, v{t}, {F.WS}, s{S_C1} offen offset:{DROW[i]*128} sc1")
    P.label("L_nonyq")
    return sum(1 for x in P.out if x.kind == "vmem")

def nyq_patch(P, n0):
    P(f"s_or_b32 s{F.S_T0}, s{S_SF}, s{F.S_WAVE}")
    P(f"s_cmp_lg_u32 s{F.S_T0}, 0")
    P(f"s_cbranch_scc1 L_nopatch")
    P(f"s_mov_b32 s{F.S_T0}, 0xffff"); P(f"s_mov_b32 s{F.S_T1}, 0x07060302")
    P.raw(f"s_waitcnt vmcnt({sum(1 for x in P.out if x.kind == 'vmem') - n0})")
    for i in range(16):
        P(f"v_bfi_b32 v{WQ+i}, s{F.S_T0}, v{FS+i}, v{WQ+i}")
        P(f"v_perm_b32 v{WQ+16+i}, v{WQ+16+i}, v{FS+i}, s{F.S_T1}")
    P.label("L_nopatch")

def w_dma(slot):
    arr, hf = slot // 2, slot % 2
    S = S_FW + 4 * arr
    L = []
    for u in range(2):
        sw = WSW and slot < 2
        L.append(f"s_xor_b32 m0, s{S_WA}, {slot*32768+u*4096}" if sw else f"s_add_u32 m0, s{F.S_LW2}, {slot*32768+u*4096}")
        L.append(f"s_add_u32 s{S_C1}, s{S_WH[hf] if sw else S_C0}, {(hf*512+u*64)*2052}")
        for j in range(4): L.append(f"buffer_load_dwordx4 v{V_WD+j}, s[{S}:{S+3}], s{S_C1} offen offset:{j*1024} lds")
    return L

def w_read_setup(P):
    P(f"v_bfe_u32 v{T}, v0, 2, 2")
    P(f"v_xor_b32 v{T}, s{F.S_WAVE}, v{T}")
    P(f"v_lshlrev_b32 v{T}, 4, v{T}")
    P(f"v_and_b32 v{T+1}, 31, v0")
    P(f"v_lshl_add_u32 v{T}, v{T+1}, 6, v{T}")
    P(f"v_lshrrev_b32 v{T+1}, 5, v0")
    P(f"v_lshl_add_u32 v{V_FLD}, v{T+1}, 13, v{T}")
    P(f"v_add_u32 v{V_FLD+1}, 0x10000, v{V_FLD}")
def w_reads(slot):
    arr, hf = slot // 2, slot % 2
    return [f"ds_read_b128 {a(AW+64*arr+4*i,4)}, v{V_FLD+arr} offset:{DROW[i]*2048}" for i in range(8 * hf, 8 * hf + 8)]

def consts(P, parts=False):
    P.parts = []
    def cut():
        P.parts.append(P.L); P.L = []
    P(f"s_and_b32 s{F.S_T0}, s{S_SF}, 1")
    P(f"v_cvt_f32_u32 v{T+13}, s{F.S_T0}")
    P(f"v_and_b32 v{T+8}, 31, v0")
    P(f"v_cvt_f32_u32 v{T+8}, v{T+8}")
    P(f"v_lshrrev_b32 v{T+9}, 5, v0")
    P(f"v_cvt_f32_u32 v{T+9}, v{T+9}")
    P(f"v_mul_f32 v{T+9}, 4.0, v{T+9}")
    cut()
    def two(base, fwd):
        def e(n, c, s, t):
            P(f"v_cvt_pk_bf16_f32 v{t}, v{c}, {'' if fwd else '-'}v{s}"); P(f"v_cvt_pk_bf16_f32 v{c}, {'-' if fwd else ''}v{s}, v{c}")
            P(f"v_accvgpr_write_b32 a{base+n}, v{t}"); P(f"v_accvgpr_write_b32 a{base+16+n}, v{c}")
        angles(P, DROW, T + 11, T + 10, T, e)
        cut()
    P(f"v_fma_f32 v{T+10}, v{T+8}, 2.0, v{T+13}")
    P(f"v_mul_f32 v{T+10}, {hexf(1/64)}, v{T+10}")
    P(f"v_mul_f32 v{T+11}, v{T+10}, v{T+9}")
    two(AM, True)
    P(f"v_mul_f32 v{T+10}, {hexf(1/2048)}, v{T+13}")
    P(f"v_fmac_f32 v{T+10}, {hexf(1/32)}, v{T+8}")
    P(f"v_mul_f32 v{T+11}, v{T+10}, v{T+9}")
    two(AM + 32, True)
    P(f"v_mul_f32 v{T+10}, {hexf(1/32)}, v{T+8}")
    P(f"v_mul_f32 v{T+12}, v{T+10}, v{T+13}")
    P(f"v_mul_f32 v{T+11}, v{T+10}, v{T+9}")
    P(f"v_fmac_f32 v{T+11}, {hexf(1/64)}, v{T+12}")
    two(AM + 64, False)
    P(f"v_mul_f32 v{T+11}, v{T+10}, v{T+9}")
    P(f"v_fmac_f32 v{T+11}, 0.5, v{T+12}")
    two(AM + 96, False)

def x_setup(P):
    P(f"s_and_b32 s{F.S_T0}, s{F.S_WAVE}, 1")
    P(f"v_lshrrev_b32 v{T}, 3, v0")
    P(f"v_xor_b32 v{T}, s{F.S_T0}, v{T}")
    P(f"v_and_b32 v{T+1}, 7, v0")
    P(f"v_lshlrev_b32 v{T+1}, 4, v{T+1}")
    P(f"v_lshl_add_u32 v{V_G}, v{T}, 9, v{T+1}")
    for j in range(1, 4): P(f"v_add_u32 v{V_G+j}, {j*3072}, v{V_G}")
    P(f"s_lshl_b32 s{S_XG}, s{S_SF}, 17")
    P(f"s_lshl_b32 s{F.S_T0}, s{F.S_WAVE}, 15")
    P(f"s_add_u32 s{S_XG}, s{S_XG}, s{F.S_T0}")
    P(f"s_lshl_b32 s{F.S_T0}, s{F.S_WAVE}, 1")
    P(f"v_and_b32 v{T}, 7, v0")
    P(f"v_xor_b32 v{T}, s{F.S_T0}, v{T}")
    P(f"v_lshlrev_b32 v{T}, 4, v{T}")
    P(f"v_lshrrev_b32 v{T+1}, 2, v0")
    P(f"v_xor_b32 v{T+1}, v{T+1}, v0")
    P(f"v_bfe_u32 v{T+1}, v{T+1}, 3, 1")
    P(f"v_lshl_add_u32 v{T}, v{T+1}, 7, v{T}")
    P(f"v_and_b32 v{T+1}, 31, v0")
    P(f"v_lshl_add_u32 v{V_XA}, v{T+1}, 10, v{T}")
    P(f"v_xor_b32 v{V_XA+1}, 16, v{V_XA}")
    P(f"v_add_u32 v{V_XA+2}, 0x10000, v{V_XA}")
    P(f"v_add_u32 v{V_XA+3}, 0x10000, v{V_XA+1}")

def flush_setup(P):
    P(f"v_add_u32 v{V_FLD}, s{F.S_LW2}, v{F.V_L16}")
    P(f"v_add_u32 v{V_FLD+1}, 0x10000, v{V_FLD}")

def x_dma(q):
    L = []
    for u in range(2):
        L.append(f"s_add_u32 m0, s{F.S_LW2}, {q*32768+u*4096}")
        L.append(f"s_add_u32 s{S_C1}, s{S_XG}, {F.W_XBUF+q*128+u*16384}")
        for j in range(4): L.append(f"buffer_load_dwordx4 v{V_G+j}, {F.WS}, s{S_C1} offen offset:{j*1024} sc1 lds")
    return L

def flush_reads(q):
    return [f"ds_read_b128 {v(FS+4*j,4)}, v{V_FLD+q//2} offset:{(q%2)*32768+j*1024}" for j in range(8)]
def flush_stores(q):
    L = []
    for u in range(2):
        L.append(f"s_add_u32 s{S_C1}, s{S_XG}, {F.W_YBUF+q*128+u*16384}")
        for j in range(4): L.append(f"buffer_store_dwordx4 {v(FS+16*u+4*j,4)}, v{V_G+j}, {F.WS}, s{S_C1} offen offset:{j*1024} sc1")
    return L

def mm(re, im, data, mat, data_is_a):
    L = []
    for q in range(4):
        for part, d in enumerate((re, im)):
            x, m = v(data + 4 * q, 4), a(mat + 16 * part + 4 * q, 4)
            A, B = (x, m) if data_is_a else (m, x)
            L.append(f"v_mfma_f32_32x32x16_bf16 {v(d,16)}, {A}, {B}, {'0' if q == 0 else v(d,16)}")
    return L
def pack(re, im): return [f"v_cvt_pk_bf16_f32 v{im+i}, v{re+i}, v{im+i}" for i in range(16)]
def v_tw(re, im, conj):
    R = Rec(); twiddle1(R, re, im, TW, TW + 16, T, conj); return R.L + pack(re, im)
def v_filter(re, im, e):
    L = []
    for j0 in range(0, 16, 2):
        t = T + 2 + 4 * ((j0 // 2) % 2)
        for k in range(2):
            for arr in range(2):
                src = WQ + 16 * arr + j0 + k
                L.append(f"v_lshlrev_b32 v{t+2*arr+k}, 16, v{src}" if e == 0 else f"v_and_b32 v{t+2*arr+k}, 0xffff0000, v{src}")
        for k in range(2): L.append(f"v_mul_f32 v{T+k}, v{re+j0+k}, v{t+2+k}")
        for k in range(2): L.append(f"v_mul_f32 v{re+j0+k}, v{re+j0+k}, v{t+k}")
        for k in range(2): L.append(f"v_fma_f32 v{re+j0+k}, -v{im+j0+k}, v{t+2+k}, v{re+j0+k}")
        for k in range(2): L.append(f"v_fma_f32 v{im+j0+k}, v{im+j0+k}, v{t+k}, v{T+k}")
    return L + pack(re, im)
def w_fill(q): return [f"v_accvgpr_read_b32 v{WQ+16*arr+i}, a{AW+64*arr+4*i+q}" for arr in range(2) for i in range(16)]
def xreads(q, e, dst): return [f"ds_read_b128 {v(dst+4*k,4)}, v{V_XA+e+2*(q//2)} offset:{(q%2)*32768+k*256}" for k in range(4)]
def xwrites(q, e, src): return [f"ds_write_b128 v{V_XA+e+2*(q//2)}, {v(src+4*k,4)} offset:{(q%2)*32768+k*256}" for k in range(4)]

def fcost(t):
    if isinstance(t, Fn): return t.c
    if t.startswith("ds_write") or t.startswith("buffer_store"): return 16
    if t.startswith("buffer_load"): return 8
    return 4

def cmul(re, im, c, sn, conj, n_plain):
    pk = []; pl = []
    npk = 8 - n_plain
    for g in range(0, npk, 2):
        js = [2 * p for p in range(g, min(g + 2, npk))]
        tt = {j: v(T + 2 * k, 2) for k, j in enumerate(js)}
        for j in js: pk.append(f"v_pk_mul_f32 {tt[j]}, {v(re+j,2)}, {v(sn+j,2)}")
        for j in js: pk.append(f"v_pk_mul_f32 {v(re+j,2)}, {v(re+j,2)}, {v(c+j,2)}")
        for j in js: pk.append(f"v_pk_fma_f32 {v(re+j,2)}, {v(im+j,2)}, {v(sn+j,2)}, {v(re+j,2)}" + (" neg_lo:[1,0,0] neg_hi:[1,0,0]" if conj else ""))
        for j in js: pk.append(f"v_pk_fma_f32 {v(im+j,2)}, {v(im+j,2)}, {v(c+j,2)}, {tt[j]}" + ("" if conj else " neg_lo:[0,0,1] neg_hi:[0,0,1]"))
    for j0 in range(2 * npk, 16, 2):
        for e in range(2): pl.append(f"v_mul_f32 v{T+e}, v{re+j0+e}, v{sn+j0+e}")
        for e in range(2): pl.append(f"v_mul_f32 v{re+j0+e}, v{re+j0+e}, v{c+j0+e}")
        for e in range(2): pl.append(f"v_fma_f32 v{re+j0+e}, {'-' if conj else ''}v{im+j0+e}, v{sn+j0+e}, v{re+j0+e}")
        for e in range(2): pl.append(f"v_fma_f32 v{im+j0+e}, v{im+j0+e}, v{c+j0+e}, {'' if conj else '-'}v{T+e}")
    return pk, pl

def merge(A, B):
    G = []; cur = []
    for t in B:
        cur.append(t)
        if not (isinstance(t, str) and t.startswith("s_")): G.append(cur); cur = []
    if cur: G.append(cur)
    out = []; k = 0
    for i, t in enumerate(A):
        while k < len(G) and k * len(A) <= i * len(G): out += G[k]; k += 1
        out.append(t)
    for g in G[k:]: out += g
    return out

def step2(P, M, mul, misc, head=(), BUD=24):
    fixed = sum(fcost(t) for t in misc)
    if mul:
        re, im = mul[0], mul[1]
        n = max(0, min(8, (8 * BUD - fixed - 64 + 8) // 32))
        pk, pl = cmul(*mul, n)
        V = merge(pl + pack(re, im), misc)
    else: pk, V = [], list(misc)
    for t in head: t.f(P) if isinstance(t, Fn) else P(t)
    for t in pk: P(t)
    for k, m in enumerate(M):
        P(m); used = 0
        while V and (used + fcost(V[0]) <= BUD or used == 0 or k == len(M) - 1):
            it = V.pop(0); used += fcost(it)
            it.f(P) if isinstance(it, Fn) else P(it)

def pre_main(P, n0):
    nyq_patch(P, n0)
    for i in range(32): P(f"v_lshlrev_b32 v{FS+i}, 16, v{WQ+i}")

def main(P, hx, extra, pre_end, stamp=lambda P, k: None, BUD=24):
    blk = [list(BLK[0]), list(BLK[1])]
    U0 = FS
    def bar(q):
        def f(P):
            P.wait(lg=0)
            if q < 4: P.wait_for(hx[q])
            P.barrier()
        return Fn(f, 12)
    un0 = [f"v_lshlrev_b32 v{U0+i}, 16, v{WQ+i}" for i in range(32)]
    un1 = [f"v_and_b32 v{WQ+i}, 0xffff0000, v{WQ+i}" for i in range(32)]
    for e in range(2):
        for t in xreads(0, e, blk[e][2]): P(t)
    carry = []
    def fl(q, s):
        L = []
        if s == 0: q -= 1; s = 8
        if q < 1: return L
        st = [0, 1] if s == 2 else [s - 1] if s > 2 else []
        rd = [0, 1] if s == 1 else [s] if s < 8 else []
        for j in st:
            if j % 4 == 0: L.append(f"s_add_u32 s{S_C0}, s{S_XG}, {F.W_YBUF+(q-1)*128+(j//4)*16384}")
            L.append(f"buffer_store_dwordx4 {v(FB+4*(j%4),4)}, v{V_G+j%4}, {F.WS}, s{S_C0} offen offset:{(j%4)*1024} sc1")
        for j in rd: L.append(f"ds_read_b128 {v(FB+4*(j%4),4)}, v{V_FLD+(q-1)//2} offset:{((q-1)%2)*32768+j*1024}")
        return L
    for q in range(4):
        (pa, qa, ra), (pb, qb, rb) = blk
        ex = lambda s: ([bar(q + 1)] if s == (1 if q else 6) else []) + fl(q, s) + list(extra.get((q, s), []))
        ua, ub = (un0[:16], un0[16:]) if q else ([], [])
        st2 = lambda M, mul, misc: step2(P, M, mul, misc, BUD=BUD)
        stamp(P, (q, 0))
        st2(mm(pa, qa, ra, AM, True), None, merge(carry, ex(0)))
        stamp(P, (q, 1))
        st2(mm(pb, qb, rb, AM, True), (pa, qa, TW, TW + 16, False), merge(ua, ex(1)))
        stamp(P, (q, 2))
        st2(mm(pa, ra, qa, AM + 32, False), (pb, qb, TW, TW + 16, False), merge(ub, ex(2)))
        stamp(P, (q, 3))
        st2(mm(pb, rb, qb, AM + 32, False), (pa, ra, U0, U0 + 16, True), merge(un1, ex(3)))
        stamp(P, (q, 4))
        st2(mm(pa, qa, ra, AM + 64, True), (pb, rb, WQ, WQ + 16, True), ex(4))
        stamp(P, (q, 5))
        st2(mm(pb, qb, rb, AM + 64, True), (pa, qa, TW, TW + 16, True), ex(5))
        stamp(P, (q, 6))
        st2(mm(pa, ra, qa, AM + 96, False), (pb, qb, TW, TW + 16, True), ex(6))
        nx = q < 3
        wf = w_fill(q + 1) if nx else []
        stamp(P, (q, 7))
        po = lambda re, im, e: sum(([*pack(re, im)[4*k:4*k+4], xwrites(q, e, im)[k]] for k in range(4)), [])
        st2(mm(pb, rb, qb, AM + 96, False), None, ex(7) + wf[:8] + (xreads(q + 1, 0, qa) if nx else []) + wf[8:12] + po(pa, ra, 0))
        carry = wf[12:20] + (xreads(q + 1, 1, qb) if nx else []) + wf[20:24] + po(pb, rb, 1)
        if nx: extra[(q + 1, 1)] = wf[24:] + list(extra.get((q + 1, 1), []))
        blk = [[pa, ra, qa], [pb, rb, qb]]
    for t in fl(4, 0) + carry: P(t)
    pre_end(P)
    P.wait(lg=0); P.barrier()
```

```python
from common import *
from stream import *

W_EPOCH = 0x0
W_NQ = 0x1000
W_STATS = 0x10000
W_F1 = 0x20000
W_F5 = 0x40000
W_F4 = 0x60000
W_F3 = 0x80000
W_CS = 0x100000
W_DUMMY = 0x180000
W_XBUF, W_YBUF, W_YROW, W_PART, W_H = 0x200000, 0x600000, 0xA00000, 0xE00000, 0x1E00000
HT = 57344
TOKINC = 0x9E3779B0
TAGM = 0xbfffbfff
L_AUX = 0x20000
L_ST = L_AUX
L_Y = L_AUX + 0x4000

S_X, S_W, S_WS, S_B, S_OUT = 16, 20, 24, 28, 32
(S_WAVE, S_MT, S_KQ, S_J, S_RT, S_XB, S_XB1, S_WB, S_HB, S_T0, S_T1, S_LW, S_LW2, S_XO, S_WO, S_ROT, S_KB, S_TOK,
 S_H1, S_HA, S_HB0, S_HB1, S_HB2, S_F3, S_NEED, S_E0, S_E1, S_FX) = range(36, 64)
S_RS = 64
S_KW, S_LB = 4, 5
S_K0 = 8
S_W2, S_PF = 84, 88
S_M16, S_XD, S_HT0 = 72, 74, 75
S_SP, S_SFL, S_OO, S_YO, S_B2, S_F5P, S_F4P, S_YD, S_YR, S_F5F = 68, 72, 76, 77, 78, 79, 80, 81, 82, 83
P_X, P_WS, P_W1, P_W2, P_OUT = 4, 6, 8, 12, 102

V_DX, V_DW, V_RX, V_RW, V_L16, V_SO, V_FL = 2, 6, 10, 16, 20, 22, 23
V_ONE, V_CS, V_AUG, V_T, V_PK, V_B, V_CT, V_BA, V_ACC = 24, 28, 32, 36, 48, 64, 112, 120, 128
CS, AUG = (V_CS, V_CT + 4), (V_AUG, V_ONE)
V_TOK, V_L0, V_H1, V_DW2 = 56, 57, 63, 122
NB = 12
def blk(t): return V_ACC + 16 * t
def acc1(t): return blk(t)
WS = f"s[{S_WS}:{S_WS+3}]"

def ids(P):
    P("v_lshrrev_b32 v1, 6, v0")
    P(f"v_readfirstlane_b32 s{S_WAVE}, v1")
    P("v_and_b32 v0, 63, v0")
    P(f"s_and_b32 s{S_T0}, s2, 1")
    P(f"s_lshl_b32 s{S_T0}, s{S_T0}, 2")
    P(f"s_bfe_u32 s{S_T1}, s2, 0x20003")
    P(f"s_add_u32 s{S_MT}, s{S_T0}, s{S_T1}")
    P(f"s_bfe_u32 s{S_KQ}, s2, 0x20001")
    P(f"s_lshr_b32 s{S_J}, s2, 5")
    P(f"s_lshl_b32 s{S_LW}, s{S_WAVE}, 12")
    P(f"s_lshl_b32 s{S_LW2}, s{S_WAVE}, 13")
    P(f"v_lshlrev_b32 v{V_L16}, 4, v0")

def w_dma_voff(P, stride, T, hb, base=None, V_DW=V_DW):
    P(f"v_lshrrev_b32 v{T}, 4, v0")
    P(f"v_lshlrev_b32 v{T+1}, 1, v{T}")
    P(f"v_and_b32 v{T+2}, 15, v0")
    P(f"v_xor_b32 v{T+1}, v{T+1}, v{T+2}")
    P(f"v_mul_u32_u24 v{T}, {stride}, v{T}")
    P(f"v_lshl_add_u32 v{V_DW}, v{T+1}, 4, v{T}")
    if base is not None: P(f"v_add_u32 v{V_DW}, s{base}, v{V_DW}")
    P(f"v_xor_b32 v{V_DW+3}, 128, v{V_DW}")
    for j in range(1, 4):
        P(f"v_add_u32 v{V_DW+j}, {j*(4*stride-1024)}, v{V_DW + 3*((j >> hb) & 1)}")

FAKE = 0
FULLF = 0
ALIAS = 0
SWP = 0
RP = 0
STAG = 0
HDUP = 0
ROT2 = 0
RMASK = 15
HPOL = " sc1"
ROTC = [f"s_add_u32 s{S_ROT}, s{S_MT}, s{S_J}", f"s_and_b32 s{S_ROT}, s{S_ROT}, 1", f"s_lshl_b32 s{S_ROT}, s{S_ROT}, 3"]
def g1_setup_dma(P):
    T = V_T
    P(f"s_lshl_b32 s{S_RT}, s{S_KQ}, 1")
    P(f"s_add_u32 s{S_RT}, s{S_RT}, 2")
    P("v_lshrrev_b32 v1, 3, v0")
    P(f"v_lshrrev_b32 v{T}, 4, v0")
    P(f"v_and_b32 v{T+1}, 7, v0")
    P(f"v_xor_b32 v{T+1}, v{T+1}, v{T}")
    P(f"v_lshlrev_b32 v1, 11, v1")
    P(f"v_lshl_add_u32 v{V_DX}, v{T+1}, 4, v1")
    P(f"v_xor_b32 v{V_DX+1}, 64, v{V_DX}")
    P(f"v_add_u32 v{V_DX+1}, {8*2048-1024}, v{V_DX+1}")
    P(f"v_add_u32 v{V_DX+2}, {16*2048-2048}, v{V_DX}")
    P(f"v_add_u32 v{V_DX+3}, {16*2048-2048}, v{V_DX+1}")
    w_dma_voff(P, 7168, T, 1)
    P(f"s_lshl_b32 s{S_XB}, s{S_MT}, 19")
    P(f"s_add_u32 s{S_T0}, s{S_WAVE}, s{S_RT}")
    P(f"s_and_b32 s{S_T0}, s{S_T0}, 7")
    P(f"s_lshl_b32 s{S_T0}, s{S_T0}, 16")
    P(f"s_add_u32 s{S_XB1}, s{S_XB}, s{S_T0}")
    for t_ in ROTC: P(t_)
    if RP & 3: P(f"s_lshr_b32 s{S_PF+1}, s{S_MT}, 2")
    if RP & 1: P(f"s_add_u32 s{S_ROT}, s{S_ROT}, s{S_PF+1}")
    P(f"s_mul_i32 s{S_T0}, s{S_KQ}, 7")
    P(f"s_add_u32 s{S_T0}, s{S_T0}, s{S_J}")
    P(f"s_lshl_b32 s{S_HB}, s{S_T0}, 8")
    P(f"s_mul_i32 s{S_T0}, s{S_WAVE}, {16*7168}")
    P(f"s_add_u32 s{S_WB}, s{S_T0}, s{S_HB}")
    if SWP:
        P(f"s_lshl1_add_u32 s{S_PF+1}, s{S_WB}, {512*7168}")
        P(f"s_lshr_b32 s{S_T0}, s{S_MT}, 2"); P(f"s_mul_i32 s{S_T1}, s{S_T0}, {512*7168}"); P(f"s_add_u32 s{S_WB}, s{S_WB}, s{S_T1}")
        P(f"s_lshl_b32 s{S_T0}, s{S_T0}, 10"); P(f"s_add_u32 s{S_XB1}, s{S_XB1}, s{S_T0}")
    if FAKE & 1:
        P(f"s_mov_b32 s{S_WB}, s{S_T0}"); P(f"s_mov_b32 s{S_XB}, 0"); P(f"s_lshl_b32 s{S_XB1}, s{S_WAVE}, 16"); P(f"s_mov_b32 s{S_RT}, 0")

V_C3 = 14
def c3_setup(P, T=V_T, S_T0=S_T0, kinds="xw"):
    X, W = V_C3, V_C3 + 1
    if "x" in kinds:
        P(f"s_lshl2_add_u32 s{S_T0}, s{S_J}, s{S_WAVE}"); P(f"s_mul_i32 s{S_T0}, s{S_T0}, 5")
        P(f"v_min_u32 v{T}, 4, v0"); P(f"v_add_u32 v{T}, s{S_T0}, v{T}"); P(f"v_min_u32 v{T}, 127, v{T}")
        P(f"v_lshl_add_u32 v{T}, s{S_RT}, 5, v{T}"); P(f"v_and_b32 v{T}, 255, v{T}"); P(f"v_lshlrev_b32 v{X}, 11, v{T}")
    if "w" not in kinds: return
    P(f"s_lshr_b32 s{S_T0}, s2, 3"); P(f"s_lshl2_add_u32 s{S_T0}, s{S_T0}, s{S_WAVE}"); P(f"s_mul_i32 s{S_T0}, s{S_T0}, 5")
    P(f"v_min_u32 v{T}, 9, v0"); P(f"v_lshrrev_b32 v{T+1}, 1, v{T}"); P(f"v_add_u32 v{T+1}, s{S_T0}, v{T+1}"); P(f"v_min_u32 v{T+1}, 511, v{T+1}")
    P(f"v_mul_u32_u24 v{T+1}, 7, v{T+1}"); P(f"v_and_b32 v{T}, 1, v{T}"); P(f"v_add_u32 v{T}, v{T}, v{T+1}")
    P(f"s_mul_i32 s{S_T0}, s{S_KQ}, 14"); P(f"s_add_u32 s{S_T0}, s{S_T0}, 4"); P(f"s_lshr_b32 s{S_T0}, s{S_T0}, 3")
    P(f"v_add_lshl_u32 v{W}, v{T}, s{S_T0}, 10")
def c3_x(h, d): return [f"buffer_load_dword v{d}, v{V_C3}, s[{S_X}:{S_X+3}], s{S_XB} offen offset:{384+1024*h}"]
def c3_w(h, d): return ([f"s_mov_b32 s{S_WO}, {512*7168}"] if h else []) + [f"buffer_load_dword v{d}, v{V_C3+1}, s[{S_W}:{S_W+3}], {'s%d' % S_WO if h else 0} offen offset:384"]

def hbase(P):
    P(f"s_lshl_b32 s{S_T0}, s{S_MT}, 2")
    P(f"s_add_u32 s{S_T0}, s{S_T0}, s{S_KQ}")
    P(f"s_lshl_b32 s{S_F3}, s{S_T0}, 14")
    P(f"s_add_u32 s{S_F3}, s{S_F3}, {W_F3}")
    P(f"s_mul_i32 s{S_HA}, s{S_T0}, {8*HT}")
    P(f"s_add_u32 s{S_HA}, s{S_HA}, {W_H}")

def g1_setup_rest(P):
    T = V_T
    P(f"v_and_b32 v{T+1}, 15, v0")
    P(f"v_bfe_u32 v{T+2}, v0, 1, 3")
    P(f"v_lshrrev_b32 v{T+3}, 4, v0")
    P(f"v_xor_b32 v{T+2}, v{T+2}, v{T+3}")
    P(f"v_lshlrev_b32 v{T+2}, 4, v{T+2}")
    P(f"v_lshl_add_u32 v{V_RX}, v{T+1}, 7, v{T+2}")
    P(f"v_xor_b32 v{V_RX+1}, 64, v{V_RX}")
    for q in range(2): P(f"v_add_u32 v{V_RX+2+q}, 0x10000, v{V_RX+q}")
    P(f"v_bfe_u32 v{T+4}, v0, 2, 2")
    P(f"v_lshl_add_u32 v{T+5}, v{T+3}, 3, v{T+4}")
    P(f"v_bfe_u32 v{T+6}, v0, 2, 3")
    P(f"s_lshl_b32 s{S_T1}, s{S_WAVE}, 1")
    P(f"v_xor_b32 v{T+6}, s{S_T1}, v{T+6}")
    P(f"v_and_b32 v{T+7}, 3, v0")
    P(f"v_lshl_add_u32 v{T+6}, v{T+6}, 2, v{T+7}")
    P(f"v_lshlrev_b32 v{T+6}, 3, v{T+6}")
    P(f"v_lshl_add_u32 v{V_RW+1}, v{T+5}, 8, v{T+6}")
    g2_setup_b(P, V_RW + 1)
    P(f"v_lshlrev_b32 v{V_SO}, 5, v{T+1}")
    P(f"v_add_u32 v{V_SO}, {L_ST}, v{V_SO}")
    P(f"v_cmp_eq_u32 vcc, 0, v{T+1}")
    P(f"v_mov_b32 v{T+8}, 0x3f803f80")
    for i in range(4): P(f"v_cndmask_b32 v{V_ONE+i}, 0, v{T+8}, vcc")
    P(f"v_lshlrev_b32 v{T+1}, 1, v{T+1}")
    P(f"s_lshl_b32 s{S_T1}, s{S_WAVE}, 6")
    P(f"s_add_u32 s{S_T0}, s{S_HB}, s{S_T1}")
    for fa in range(2): P(f"buffer_load_ushort v{V_AUG+fa}, v{T+1}, s[{S_B}:{S_B+3}], s{S_T0} offen offset:{32*fa}")

def g1_setup_scal(P):
    hbase(P)
    P(f"s_lshl_b32 s{S_T0}, s{S_J}, 2")
    P(f"s_add_u32 s{S_T0}, s{S_T0}, s{S_WAVE}")
    P(f"s_lshl_b32 s{S_T1}, s{S_T0}, 11")
    P(f"s_add_u32 s{S_HB}, s{S_HA}, s{S_T1}")
    P(f"s_lshl_b32 s{S_T0}, s{S_T0}, 9")
    P(f"s_add_u32 s{S_FX}, s{S_F3}, s{S_T0}")

def flag_regs(P):
    P(f"v_mov_b32 v{V_TOK}, s{S_TOK}")
    if FULLF:
        P(f"v_lshrrev_b32 v{V_L0}, 5, v0"); P(f"v_lshlrev_b32 v{V_L0}, 28, v{V_L0}"); P(f"v_add_lshl_u32 v{V_L0}, v{V_L0}, v0, 2")
    else: P(f"v_min_u32 v{V_L0}, 1, v0"); P(f"v_lshlrev_b32 v{V_L0}, 30, v{V_L0}")

def epi_setup(P):
    T0, T1 = S_T0, S_T1
    for d in range(1, 5):
        P(f"s_add_u32 s{T0}, s{S_KQ}, {d}"); P(f"s_and_b32 s{T0}, s{T0}, 3"); P(f"s_lshl_b32 s{T0}, s{T0}, 1")
        P(f"s_andn2_b32 s{T1}, s2, 6"); P(f"s_or_b32 s{T0}, s{T0}, s{T1}")
        P(f"s_lshl2_add_u32 s{T0}, s{T0}, s{S_WAVE}")
        P(f"s_mul_i32 s{T1}, s{T0}, 15360"); P(f"s_add_u32 s{S_SP+d-1}, s{T1}, {W_PART + (0 if d == 4 else (d-1)*5120)}")
    P(f"s_lshl2_add_u32 s{T0}, s{S_MT}, s{S_KQ}"); P(f"s_lshl_b32 s{T0}, s{T0}, 17")
    P(f"s_lshl2_add_u32 s{T1}, s{S_J}, s{S_WAVE}"); P(f"s_lshl_b32 s{S_B2}, s{T1}, 6"); P(f"s_lshl_b32 s{T1}, s{S_J}, 6")
    P(f"s_add_u32 s{S_OO}, s{T0}, s{S_B2}"); P(f"s_andn2_b32 s{S_XD}, s{S_OO}, 0xc0")
    if ALIAS & 2:
        P(f"s_bfe_u32 s{S_YO}, s{T0}, 0x30012"); P(f"s_lshl3_add_u32 s{T1}, s{S_YO}, s{S_J}"); P(f"s_lshl_b32 s{T1}, s{T1}, 6")
        P(f"s_lshr_b32 s{S_YO}, s{S_MT}, 2"); P(f"s_lshl_b32 s{S_YO}, s{S_YO}, 19"); P(f"s_add_u32 s{T1}, s{T1}, s{S_YO}")
        P(f"s_and_b32 s{S_YO}, s{S_KQ}, 1"); P(f"s_lshl_b32 s{S_YO}, s{S_YO}, 21"); P(f"s_add_u32 s{T1}, s{T1}, s{S_YO}")
        P(f"s_add_u32 s{S_YO}, s{T1}, {W_YBUF}")
    else:
        P(f"s_add_u32 s{S_YO}, s{T0}, s{T1}"); P(f"s_add_u32 s{S_YO}, s{S_YO}, {W_YROW}")
    P(f"s_lshr_b32 s{T0}, s{T0}, 4"); P(f"s_and_b32 s{T0}, s{T0}, 0x1e000"); P(f"s_add_u32 s{S_F5P}, s{T0}, {W_F5}")
    P(f"s_lshr_b32 s{T0}, s2, 6"); P(f"s_lshl2_add_u32 s{T0}, s{T0}, s{S_WAVE}"); P(f"s_lshl_b32 s{T0}, s{T0}, 12")
    P(f"s_add_u32 s{S_F4P}, s{T0}, {W_F4+384}")
    P(f"s_lshl_b32 s{T0}, s{S_WAVE}, 20"); P(f"s_lshl_b32 s{T1}, s2, 9"); P(f"s_add_u32 s{T0}, s{T0}, s{T1}")
    P(f"s_add_u32 s{S_YD}, s{T0}, {W_YBUF}")
    P(f"s_and_b32 s{T0}, s2, 7"); P(f"s_lshl2_add_u32 s{T0}, s{T0}, s{S_WAVE}"); P(f"s_lshl_b32 s{T0}, s{T0}, 5")
    P(f"s_lshr_b32 s{T1}, s2, 3"); P(f"s_add_u32 s{T0}, s{T0}, s{T1}")
    if ALIAS & 2: P(f"s_mov_b32 s{S_YR}, s{S_YD}")
    else: P(f"s_lshl_b32 s{T1}, s{T0}, 11"); P(f"s_add_u32 s{S_YR}, s{T1}, {W_YROW}")
    P(f"s_lshl_b32 s{T1}, s{T0}, 7"); P(f"s_add_u32 s{S_F5F}, s{T1}, {W_F5}")

def g2_setup(P, fft):
    T = V_T + 8
    srd(P, S_W if fft else S_W2, P_W2, 3584 * 1024 * 2)
    srd(P, S_B, P_W2 + 2, 2048)
    P(f"s_mul_i32 s{S_T1}, s{S_KQ}, {896*2048}")
    P(f"s_lshl_b32 s{S_T0}, s{S_WAVE}, 15")
    P(f"s_add_u32 s{S_T1}, s{S_T1}, s{S_T0}")
    P(f"s_lshl_b32 s{S_T0}, s{S_J}, 8")
    P(f"s_add_u32 s{S_T1}, s{S_T1}, s{S_T0}")
    w_dma_voff(P, 2048, T, 0, S_T1, V_DW if fft else V_DW2)
    P(f"v_bfe_u32 v{T}, v0, 2, 3")
    P(f"s_lshl_b32 s{S_T0}, s{S_WAVE}, 1")
    P(f"v_xor_b32 v{T}, s{S_T0}, v{T}")
    P(f"v_and_b32 v{T+2}, 1, v0")
    P(f"v_lshl_add_u32 v{T}, v{T}, 1, v{T+2}")
    P(f"v_bfe_u32 v{T+2}, v0, 1, 1")
    P(f"v_lshl_add_u32 v{T}, v{T}, 1, v{T+2}")
    P(f"v_lshrrev_b32 v{T+1}, 2, v0")
    P(f"v_lshlrev_b32 v{T}, 3, v{T}")
    P(f"v_lshl_add_u32 v{V_BA}, v{T+1}, 8, v{T}")
    P(f"v_add_u32 v{V_L16+1}, 0x10000, v{V_L16}")
    SR = S_J
    if ROT2 and not fft:
        SR = S_H1
        P(f"s_and_b32 s{SR}, s{S_MT}, 3"); P(f"s_lshl1_add_u32 s{SR}, s{SR}, s{S_J}")
        if RP & 4: P(f"s_lshr_b32 s{S_T0}, s{S_MT}, 2"); P(f"s_add_u32 s{SR}, s{SR}, s{S_T0}")
        P(f"s_sub_u32 s{S_T0}, s{SR}, 7"); P(f"s_min_u32 s{SR}, s{SR}, s{S_T0}")
    if fft:
        P(f"s_mul_i32 s{S_H1}, s{S_WAVE}, {HT}")
        P(f"s_add_u32 s{S_H1}, s{S_H1}, s{S_HA}")
        P(f"v_add_u32 v{V_H1}, s{S_H1}, v{V_L16}")
    else:
        P(f"s_lshl_b32 s{S_KW}, s{SR}, 18")
    P(f"s_lshl_b32 s{S_T0}, s{SR}, 3")
    P(f"s_mul_i32 s{S_T1}, s{S_WAVE}, 6")
    P(f"s_add_u32 s{S_T1}, s{S_T1}, s{S_T0}")
    for u in range(3):
        d = S_HB0 + u
        P(f"s_add_u32 s{d}, s{S_T1}, {32+2*u}")
        P(f"s_sub_u32 s{S_NEED}, s{d}, 56")
        P(f"s_min_u32 s{d}, s{d}, s{S_NEED}")
        P(f"s_lshl_b32 s{d}, s{d}, 10")
        P(f"s_add_u32 s{d}, s{d}, s{S_HA}")
        if u == 1: P(f"s_sub_u32 s{d}, s{d}, 2048")
    P(f"s_add_u32 s{S_T1}, s{SR}, s{S_WAVE}")
    P(f"s_sub_u32 s{S_NEED}, s{S_T1}, 7")
    P(f"s_min_u32 s{S_T1}, s{S_T1}, s{S_NEED}")
    P(f"s_lshl_b32 s{S_T1}, s{S_T1}, 13")
    P(f"s_add_u32 s{S_HA}, s{S_HA}, s{S_T1}")
    P(f"s_mul_i32 s{S_LB}, s{S_WAVE}, 6144")

def g2_setup_b(P, src=V_BA):
    P(f"v_add_u32 v{V_RW}, 0x4000, v{src}")
    P(f"v_add_u32 v{V_RW+2}, 0x14000, v{src}")
    P(f"v_xor_b32 v{V_RW+1}, 32, v{V_RW}")
    P(f"v_xor_b32 v{V_RW+3}, 32, v{V_RW+2}")

WSH = 2
def dma1(stage):
    slot = (stage % 4) * 0x8000; u = stage % 16
    L = [f"s_xor_b32 s{S_XB1}, s{S_XB1}, 0x{0x40400 if SWP else 0x40000:x}"] if stage == 16 else []
    if RP & 2 and stage in (8, 16, 24): L += [f"s_xor_b32 s{S_ROT}, s{S_ROT}, s{S_PF+1}"]
    if SWP and u == 8: L += [f"s_xor_b32 s{S_XB1}, s{S_XB1}, 0x400"] + ([f"s_sub_u32 s{S_WB}, s{S_PF+1}, s{S_WB}"] if stage == 8 else [])
    L += [f"s_add_u32 m0, s{S_LW}, 0x{slot:x}", f"s_add_u32 s{S_KB}, s{S_ROT}, {u}", f"s_and_b32 s{S_KB}, s{S_KB}, {RMASK}"] + (
          [f"s_or_b32 s{S_KB}, s{S_KB}, 8"] if RMASK == 7 and u >= 8 and not SWP else []) + [
          f"s_lshl_b32 s{S_XO}, s{S_KB}, 7", f"s_add_u32 s{S_XO}, s{S_XO}, s{S_XB1}"]
    for j in range(4): L.append(f"buffer_load_dwordx4 v{V_DX+j}, s[{S_X}:{S_X+3}], s{S_XO} offen offset:{j*1024} lds")
    s = stage - 16 - WSH
    if stage < 16:
        L += [f"s_add_u32 m0, s{S_LW}, 0x{w1slot(stage)*0x8000+0x4000:x}", f"s_mul_i32 s{S_WO}, s{S_KB}, {64*7168}", f"s_add_u32 s{S_WO}, s{S_WO}, s{S_WB}"]
        for j in range(4): L.append(f"buffer_load_dwordx4 v{V_DW+j}, s[{S_W}:{S_W+3}], s{S_WO} offen offset:{j*1024} lds")
    elif 0 <= s < 14 and not WEARLY: L += dma1_w2(s)
    return L

WEARLY = 0
def w2slot(s): return (16 + WSH + s) % 4
def w1slot(st): return (st + WSH) % 4 if WEARLY else st % 4
def dma1_w2(s):
    L = [f"s_add_u32 m0, s{S_LW}, 0x{w2slot(s)*0x8000+0x4000:x}"]
    if s: L += [f"s_add_u32 s{S_KW}, s{S_KW}, 0x20000"]
    if s and s % 2 == 0: L += [f"s_sub_u32 s{S_WO}, s{S_KW}, {14*0x20000}", f"s_min_u32 s{S_KW}, s{S_KW}, s{S_WO}"]
    for j in range(4): L.append(f"buffer_load_dwordx4 v{V_DW2+j}, s[{S_W2}:{S_W2+3}], s{S_KW} offen offset:{j*1024} lds")
    return L

def dma2_w(stage):
    slot = (stage % 4) * 0x8000; s = stage - 24
    L = [f"s_add_u32 m0, s{S_LW}, 0x{slot+0x4000:x}", f"s_mov_b32 s{S_WO}, {s*0x20000}"]
    for j in range(4): L.append(f"buffer_load_dwordx4 v{V_DW+j}, s[{S_W}:{S_W+3}], s{S_WO} offen offset:{j*1024} lds")
    return L

def dma2_h4(stage, pol=" sc1"):
    slot = (stage % 4) * 0x8000; s = stage - 24
    L = [f"s_add_u32 m0, s{S_LW}, 0x{slot:x}", f"s_mov_b32 s{S_XO}, {s*4096}"]
    for j in range(4): L.append(f"buffer_load_dwordx4 v{V_H1}, {WS}, s{S_XO} offen offset:{j*1024}{pol} lds")
    return L

def dma2_h(stage, pos, half, pol=" sc1"):
    slot = (stage % 4) * 0x8000
    L = []
    if half == 0:
        for sb in range(2):
            L += [f"s_add_u32 m0, s{S_LW2}, 0x{slot+sb*4096:x}", f"s_add_u32 s{S_XO}, s{S_HA}, {pos*HT+sb*4096}"]
            for j in range(4): L.append(f"buffer_load_dwordx4 v{V_L16}, {WS}, s{S_XO} offen offset:{j*1024}{pol} lds")
    else:
        for un in range(3):
            if un != 1: L.append(f"s_add_u32 m0, s{S_LB}, 0x{slot+(4096 if un == 2 else 0):x}")
            L.append(f"s_add_u32 s{S_XO}, s{S_HB0+un}, {pos*HT}")
            for j in range(2):
                L.append(f"buffer_load_dwordx4 v{V_L16}, {WS}, s{S_XO} offen offset:{(2048 if un == 1 else 0)+j*1024}{pol} lds")
    return L

def flag_store(soff, imm=0):
    return f"buffer_store_dword v{V_TOK}, v{V_L0}, {WS}, s{soff} offen offset:{imm} sc1"

def gelu_ops(t):
    acc = acc1(t)
    pk = V_PK
    L = []
    for g in range(4):
        c3, c1, sd = V_CT + 4 * (g // 2), V_CT + 4 * (g // 2) + 1, V_CT + 4 * (g // 2) + 2
        if g % 2 == 0 and 2 * t + g // 2 < 15: L.append(f"ds_read_b128 {v(V_CT+4*(1-g//2),4)}, v{V_SO} offset:{(2*t+g//2+1)*512+16}")
        if t == 7 and g == 0: L.append(Mark("ct15"))
        A = [acc + 4 * g + i for i in range(4)]
        T = [V_T + 4 * (g % 2) + i for i in range(4)]
        for i in range(4): L.append(f"v_mul_f32 v{T[i]}, v{A[i]}, v{A[i]}")
        for i in range(4): L.append(f"v_fma_f32 v{T[i]}, v{T[i]}, v{c3}, v{c1}")
        for i in range(4): L.append(f"v_mul_f32 v{T[i]}, v{A[i]}, v{T[i]}")
        for i in range(4): L.append(f"v_exp_f32 v{T[i]}, v{T[i]}")
        for i in range(4): L.append(f"v_fma_f32 v{T[i]}, v{T[i]}, v{sd}, v{sd}")
        for i in range(4): L.append(f"v_rcp_f32 v{T[i]}, v{T[i]}")
        for i in range(4): L.append(f"v_mul_f32 v{T[i]}, v{A[i]}, v{T[i]}")
        if g % 2 == 0 and t > 0: L.append(After(f"hs{t-1}{g//2}"))
        L.append(f"v_cvt_pk_bf16_f32 v{pk+2*g}, v{T[0]}, v{T[1]}")
        L.append(f"v_cvt_pk_bf16_f32 v{pk+2*g+1}, v{T[2]}, v{T[3]}")
        if g == 1: L.append(Mark(f"half{t}"))
    L.append(Mark(f"gelu{t}"))
    return L

def h_stores():
    L = []
    for t in range(8):
        for q in range(2):
            L += [After(f"gelu{t}" if q else f"half{t}"),
                  (f"buffer_store_dwordx4 {v(V_PK+4*q,4)}, v{V_L16}, {WS}, s{S_HB} offen offset:{q*1024}{HPOL}", f"h{t//2}")]
            if HDUP >> t & 1: L += [(f"buffer_store_dwordx4 {v(V_PK+4*q,4)}, v{V_L16}, {WS}, s{S_HB} offen offset:{q*1024}", f"h{t//2}")]
            L += [Mark(f"hs{t}{q}")]
        if t < 7: L.append(f"s_add_u32 s{S_HB}, s{S_HB}, {HT}")
    return L

def aug_ops():
    T = V_T + 8
    L = [f"v_cmp_gt_u32 s[66:67], 16, v0"]
    for fa in (1, 0):
        L += [f"v_cvt_pk_bf16_f32 v{T}, v{CS[fa]}, v{CS[fa]}",
              f"v_lshl_or_b32 v{T+2}, v{V_AUG+fa}, 16, v{V_AUG+fa}",
              f"v_and_b32 v{T}, 0xffff0000, v{T}",
              f"v_sub_f32 v{T+1}, v{CS[fa]}, v{T}",
              f"v_cndmask_b32 v{AUG[fa]}, 0, v{T+2}, s[66:67]",
              f"v_cvt_pk_bf16_f32 v{AUG[fa]+1}, v{T}, v{T+1}",
              f"v_cvt_pk_bf16_f32 v{AUG[fa]+2}, v{T}, v{T+1}",
              f"v_mov_b32 v{AUG[fa]+3}, 0"]
    return L

def f3_reload(n):
    return [f"buffer_load_dword v{V_FL}, v1, {WS}, s{S_F3} offen offset:{n*128} sc1"]
def f3_addr():
    return ["v_min_u32 v1, 6, v0", f"v_lshl_add_u32 v1, v1, 2, s{S_WAVE}", "v_lshlrev_b32 v1, 9, v1"]
def f3_check(n):
    return Fn(lambda P: poll_check(P, [V_FL], S_TOK, f3_reload(n)), 20)

INV_SCALE = 2.0 / (2048.0 * 1024.0)

def unpack_add(R, S, src, first=False, scale=None, ex=None):
    for i in range(8):
        t = V_T + 8 + 2 * (i % 2)
        if first:
            R(f"v_lshlrev_b32 v{S+2*i}, 16, v{src+i}"); R(f"v_and_b32 v{S+2*i+1}, 0xffff0000, v{src+i}")
        else:
            R(f"v_lshlrev_b32 v{t}, 16, v{src+i}")
            if ex is not None and i == 3: R(f"v_lshlrev_b32 v{t+1}, 16, v{ex}")
            else: R(f"v_and_b32 v{t+1}, 0xffff0000, v{ex if ex is not None and i == 7 else src+i}")
            for e in range(2):
                if scale is None: R(f"v_add_f32 v{S+2*i+e}, v{S+2*i+e}, v{t+e}")
                else: R(f"v_fmac_f32 v{S+2*i+e}, {hexf(scale)}, v{t+e}")

def tile_dma(S, so, lds, pol="", inc=(32768,) * 3):
    L = [f"s_add_u32 m0, s{S_LW}, {lds}"]
    for u in range(4):
        L.append(f"buffer_load_dwordx4 v{V_SO}, s[{S}:{S+3}], s{so} offen offset:{u*1024}{pol} lds")
        if u < 3: L.append(f"s_add_u32 s{so}, s{so}, {inc[u]-1024}")
    return L
def tile_voff(R, t, y):
    R(f"v_lshrrev_b32 v{t}, 4, v0"); R(f"v_lshl_add_u32 v{t}, s{S_WAVE}, 2, v{t}")
    al = y and ALIAS & 2
    R(f"v_xor_b32 v{V_SO}, v{t}, v0"); R(f"v_lshlrev_b32 v{t}, {12 if al else 11}, v{t}")
    if y:
        R(f"v_bfe_u32 v{t+1}, v{V_SO}, 2, 2"); R(f"v_lshl_add_u32 v{t}, v{t+1}, {17 if al else 9}, v{t}"); R(f"v_and_b32 v{V_SO}, 3, v{V_SO}")
    else: R(f"v_and_b32 v{V_SO}, 15, v{V_SO}")
    R(f"v_lshl_add_u32 v{V_SO}, v{V_SO}, 4, v{t}")

def build_stream(P, S, opt, stamp=None, fft=False):
    o = dict(LA=10, BOFF=7, ack=(24, 24, 40, 40), pl=(20, 20, 20, 20), plY=20, swin=(0, 0, 0, 0), sgap=(0, 0, 0, 0), ll=34, cF3=(3, 3, 3, 3),
             budr=(), pst=(0,) * 6, dgr=(), ph3=216)
    o.update(opt)
    bf = [0]
    def bfrag():
        b = V_B + 4 * (bf[0] % NB); bf[0] += 1; return b
    def pair(acc, tb, A, b, init):
        return S.add(tuple(f"v_mfma_f32_16x16x32_bf16 {v(acc+8*tb+4*fa,4)}, {A[fa]}, {v(b,4)}, {'0' if init else v(acc+8*tb+4*fa,4)}" for fa in (tb, 1 - tb)))
    wf = lambda q: (a(8*q, 4), a(8*q+4, 4))
    acc2 = (lambda t: blk([0, 1, 2, 3, 7, 0, 1, 2][t])) if fft else (lambda t: blk(t % 2))
    done = {}; done2 = {}; start2 = {}
    def aug(t):
        for tb in range(2):
            b = bfrag()
            i = pair(acc1(t), tb, [v(x, 4) for x in AUG], b, False)
            S.read(None, i, f"ds_read_b128 {v(b,4)}, v{V_SO} offset:{t*1024+tb*512}")
        return i
    def wreads(st, i, q, off, hs, sl=None):
        if sl is None: sl = st % 4
        for fa in range(2):
            for h in range(2):
                S.read(st, i, f"ds_read_b64_tr_b16 {a(8*q+4*fa+2*h,2)}, v{V_RW+2*(sl//2)+fa} offset:{off+h*hs}")
    p1 = g0 = 0
    for st in range(0 if fft else 32):
        hi = st % 4 // 2; base = (st % 2) * 0x8000
        if st == 16: p1 = len(S.slots)
        for q2 in range(2):
            q = st % 16 * 2 + q2
            if st >= 16 and q in (1, 2):
                for t in range(4 * q - 4, 4 * q): done[t] = aug(t)
            if q2 == 0: S.first[st] = len(S.slots)
            for t in range(4):
                for tb in range(2):
                    b = bfrag()
                    i = pair(acc1(t + st // 16 * 4), tb, wf(q), b, q == 0)
                    if t == 0 and tb == 0:
                        if st < 16: wreads(st, i, q, w1slot(st) % 2 * 0x8000 + q2 * 8192, 1024, w1slot(st))
                        elif 0 <= q - 2 * WSH < 28:
                            sl = w2slot(st - 16 - WSH)
                            wreads(st, i, q - 2 * WSH, sl % 2 * 0x8000 + q2 * 8192, 4096, sl)
                    S.read(st, i, f"ds_read_b128 {v(b,4)}, v{V_RX+2*hi+q2} offset:{base+t*4096+tb*2048}")
                if st == 31 and q2: done[4 + t] = i
            if st < (2 if o.get("csx") else 16): csd = S.add(tuple(f"v_mfma_f32_16x16x32_bf16 {v(CS[fa],4)}, {v(V_ONE,4)}, {wf(q)[fa]}, {'0' if q == 0 else v(CS[fa],4)}" for fa in range(2)))
    g0 = len(S.slots)
    for st in range(24, 38 if fft else 0):
        hi = st % 4 // 2; base = (st % 2) * 0x8000
        for q2 in range(2):
            q = (st - 24) * 2 + q2
            if q2 == 0: S.first[st] = len(S.slots)
            for t in range(4):
                for tb in range(2):
                    b = bfrag()
                    i = pair(acc2(t), tb, wf(q), b, q == 0)
                    if t == 0 and tb == 0: wreads(st, i, q, base + q2 * 8192, 4096)
                    S.read(st, i, f"ds_read_b128 {v(b,4)}, v{V_L16+hi} offset:{base+t*4096+q2*2048+tb*1024}")
                done2[t] = i
    T0 = 30 if fft else 32
    for t in range(4 if fft else 0, 8):
        start2[t] = len(S.slots)
        for q in range(28):
            st = T0 + 2 * t + (q >= 16)
            hi = st % 4 // 2; base = (st % 2) * 0x8000
            if q in (0, 16): S.first[st] = len(S.slots)
            for tb in range(2):
                b = bfrag()
                i = pair(acc2(t), tb, wf(q), b, q == 0)
                S.read(st, i, f"ds_read_b128 {v(b,4)}, v{V_L16+hi} offset:{base+(q%16)*2048+tb*1024}")
        done2[t] = len(S.slots) - 1
    n = len(S.slots)
    if not fft:
        for st in range(1, 33): S.boff[st] = o.get("BOFF1", 8)
    bar = S.bars(o["BOFF"], 24 if fft else 0)
    bF3 = o["bF3"]
    if fft:
        for st in range(25, 35): S.dma_at_bar[st] = [(dma2_w(st + 3), st + 3), (dma2_h4(st + 3), st + 3)]
    else:
        for st in range(1, 29): S.dma_at_bar[st] = [(dma1(st + 3), st + 3)]
        if WEARLY:
            for s_ in range(14): S.dma_at_bar[o.get("wbar", (13, 14, 15, 16))[s_] if s_ < 4 else 13 + WSH + s_].append((dma1_w2(s_), 16 + WSH + s_))
    for u in range(8 if fft else 0, 16):
        S.dma_at_bar.setdefault(max(T0 + u - 3, bF3[u // 4]), []).append((dma2_h(T0 + u, u // 2, u % 2), T0 + u))
    S.gate = {k: g0 + v_ for k, v_ in o.get("gate", {}).items()}
    f3_check = lambda n: S.poll(f"F3{n}", [V_FL], S_TOK, f3_reload(n))
    polls = []
    for k in range(2 if fft else 0, 4):
        c = bar[bF3[k]] - o["cF3"][k]
        polls += [At(c - o["pl"][k])] + f3_reload(k) + [At(c), f3_check(k), Mark(f"c3{k}")]
    if fft:
        S.queue(polls, vmlat=0)
        for m_ in ("gelu3", "ct15", "hs71"): S.marks[m_] = -99
    else:
        L = [f"s_lshl_b32 s{S_XO}, s{S_WAVE}, 1", f"s_add_u32 s{S_WO}, s{S_XO}, s{S_RT}", f"s_and_b32 s{S_WO}, s{S_WO}, 7",
             f"s_lshl_b32 s{S_WO}, s{S_WO}, 10", f"s_lshl_b32 s{S_XO}, s{S_XO}, 10", f"s_add_u32 m0, s{S_XO}, {L_ST}",
             f"s_lshl_b32 s{S_XO}, s{S_MT}, 13", f"s_add_u32 s{S_WO}, s{S_WO}, s{S_XO}", f"s_add_u32 s{S_WO}, s{S_WO}, {W_STATS}"]
        L += [f"buffer_load_dwordx4 v{V_L16}, {WS}, s{S_WO} offen offset:{j*1024} sc1 lds" for j in range(2)]
        bS = o.get("bS", 13)
        if STAG:
            sl_ = [f"buffer_load_dwordx4 v{V_L16}, {WS}, s{S_E1} offen offset:{j*1024} sc1 lds" for j in range(2)]
            L = [f"s_lshl_b32 m0, s{S_WAVE}, 11", f"s_add_u32 m0, m0, {L_ST}"] + sl_
        S.dma_at_bar[bS].insert(0, (L, bS + 2))
        if not o.get("csx"):
            for i, t in enumerate(aug_ops()): S.event(p1 + 1 + i // 3, t)
        S.event(p1 + 2, f"ds_read_b128 {v(V_CT,4)}, v{V_SO} offset:16")
        G = []
        for t in range(8):
            G.append(At(done[t] + 3)); G += gelu_ops(t)
        R = Rec()
        flag_regs(R); g1_setup_scal(R)
        R.add(At(o.get("tF1", 16))); R.add(Fn(S.timed("xs", lambda P: P.wait_for(o["f1"])))); R(flag_store(S_RS)); R.add(Mark("f1"))
        epi_setup(R)
        o["inv_consts"](R)
        R.add(Mark("consts"))
        g2_setup(R, False)
        for t_ in f3_addr(): R(t_)
        R.add(Mark("g2setup"))
        if STAG:
            G2 = blk(7)
            for t_ in [f"s_lshl_b32 s{S_E1}, s{S_WAVE}, 1", f"s_add_u32 s{S_E1}, s{S_E1}, s{S_RT}", f"s_and_b32 s{S_E1}, s{S_E1}, 7",
                       f"s_lshl3_add_u32 s{S_E1}, s{S_MT}, s{S_E1}", f"s_lshl_b32 s{S_E1}, s{S_E1}, 10", f"s_add_u32 s{S_E1}, s{S_E1}, {W_STATS}",
                       f"s_and_b32 s{S_E0}, s{S_TOK}, 0x{TAGM:x}", f"v_lshl_add_u32 v{G2+2}, s{S_WAVE}, 11, v{V_L16}", f"v_add_u32 v{G2+2}, {L_ST+12}, v{G2+2}"]: R(t_)
            R.add(Mark("f1c"))
            rd_ = f"ds_read2st64_b32 {v(G2,2)}, v{G2+2} offset0:0 offset1:4"
            R.add(At(bar[bS + 2] + 1)); R(rd_); R.add(Gap(4))
            R.add(S.poll("ST", [G2 + 1, G2], S_E0, [f"s_mov_b32 s{S_NEED}, m0"] + L[:2] + ["s_nop 0"] + L[2:] + ["s_waitcnt vmcnt(0)", rd_, f"s_mov_b32 m0, s{S_NEED}", "s_waitcnt lgkmcnt(0)"]))
            R.add(Mark("stc"))
        else:
            rl = [f"buffer_load_dword v{V_FL}, off, {WS}, s{S_E1} sc1"]
            for t_ in [f"s_and_b32 s{S_E1}, s2, 7", f"s_lshl_b32 s{S_E1}, s{S_E1}, 9", f"s_add_u32 s{S_E1}, s{S_E1}, s{S_F4P}", f"s_sub_u32 s{S_E1}, s{S_E1}, 384"]: R(t_)
            R.add(At(bar[12] - 16)); R(rl[0])
            R.add(At(bar[13] - 8)); R.add(S.poll("F1", [V_FL], S_TOK, rl)); R.add(Mark("f1c"))
        if o.get("csx"):
            X = Rec(); G_ = blk(6); SC = S_PF + 3
            X.add(After("f1"))
            X(f"s_mul_i32 s{SC}, s{S_KQ}, 7"); X(f"s_add_u32 s{SC}, s{SC}, s{S_J}"); X(f"s_lshl2_add_u32 s{SC}, s{SC}, s{S_WAVE}")
            X(f"s_lshl_b32 s{SC}, s{SC}, 11"); X(f"s_add_u32 s{SC}, s{SC}, {W_CS}")
            X(f"v_lshrrev_b32 v{G_}, 4, v0"); X(f"v_lshlrev_b32 v{G_}, 20, v{G_}"); X(f"v_add_u32 v{G_}, s{S_MT}, v{G_}")
            X(f"v_lshl_add_u32 v{G_}, v{G_}, 8, v{V_L16}")
            X.add(At(csd + 3)); X(f"v_mov_b32 v{CS[0]+1}, v{CS[1]}"); X(f"v_mov_b32 v{CS[0]+3}, v{V_TOK}")
            X.add(At(o.get("tCS", 46))); X(f"buffer_store_dwordx4 {v(CS[0],4)}, v{G_}, {WS}, s{SC} offen sc1"); X.add(Mark("cs"))
            cl = [f"buffer_load_dwordx4 {v(G_+4+4*u,4)}, v{V_L16}, {WS}, s{SC} offen offset:{u*1024} sc1" for u in range(2)]
            X.add(At(bar[o["csx"]] + o.get("tCL", 9)))
            for t_ in cl: X(t_)
            X.add(Gap(o.get("lCL", 40))); X.add(S.poll("CS", [G_ + 11, G_ + 7], S_TOK, cl))
            for fa in range(2): X(f"v_add_f32 v{CS[fa]}, v{G_+4+fa}, v{G_+8+fa}")
            X.add(After("g2setup"))
            for t_ in aug_ops(): X(t_)
            X.add(Mark("aug"))
            S.queue(X.L, vmlat=0)
        R.add(At(p1 + 4)); g2_setup_b(R); R.add(Mark("g2b"))
        S.queue(R.L + polls, vmlat=0)
        FS = []
        for k in range(4): FS += [After(f"hs{2*k+1}1", o["ack"][k]), S.wait_tag(f"h{k}"), flag_store(S_FX, 128 * k), Mark(f"f3{k}")]
        S.queue(FS, vmlat=0)
        if o.get("w2pf"):
            W = Rec()
            W.add(After("g2setup"))
            W(f"s_lshr_b32 s{S_PF}, s2, 3"); W(f"s_lshl2_add_u32 s{S_PF}, s{S_PF}, s{S_WAVE}"); W(f"s_lshl_b32 s{S_PF}, s{S_PF}, 14")
            W(f"s_mul_i32 s{S_PF+1}, s{S_KQ}, {896*2048}"); W(f"s_add_u32 s{S_PF}, s{S_PF}, s{S_PF+1}")
            n_ = len(o["w2pf"]); ln = 128 // n_
            W(f"v_min_u32 v121, {ln-1}, v0"); W(f"v_lshlrev_b32 v121, 7, v121")
            for k, t_ in enumerate(o["w2pf"]):
                W.add(At(p1 + t_)); W(f"buffer_load_dword v{126+k%2}, v121, s[{S_W2}:{S_W2+3}], s{S_PF} offen")
                W(f"s_add_u32 s{S_PF}, s{S_PF}, {ln*128}")
            S.queue(W.L, vmlat=60)
        if o.get("w2f"):
            W = Rec()
            A, C = S_PF, S_PF + 2
            c3 = o.get("c3", 0) & 4
            W.add(After("g2setup"))
            W(f"s_lshr_b32 s{A}, s2, 3"); W(f"s_lshl2_add_u32 s{A}, s{A}, s{S_WAVE}"); W(f"s_lshl_b32 s{A}, s{A}, 14")
            W(f"s_mul_i32 s{C}, s{S_KQ}, {896*2048}"); W(f"s_add_u32 s{A}, s{A}, s{C}")
            W(f"v_and_b32 v126, {3 if c3 else 1}, v0"); W(f"v_lshlrev_b32 v126, 2, v126"); W(f"s_mov_b32 s{C}, 0xb3fe"); W(f"v_bfe_u32 v126, s{C}, v126, 4")
            W(f"v_bfe_u32 v121, v0, 2, 3"); W(f"v_lshl_add_u32 v121, v121, 4, v126"); W(f"v_lshlrev_b32 v121, 7, v121")
            L = [(p1 + o["w2f"], [f"buffer_load_dword v126, v121, s[{S_W2}:{S_W2+3}], s{A} offen"])]
            if o.get("c3", 0) & 2:
                W(f"v_xor_b32 v{V_C3}, 0x40000, v{V_C3}")
                L += [(p1 + o["c3x"][h], c3_x(h, [127, V_C3 + 1][h])) for h in range(2)]
            for t_, l_ in sorted(L):
                W.add(At(t_))
                for x_ in l_: W(x_)
            S.queue(W.L, vmlat=60)
        if o.get("ppf"):
            W = Rec()
            W.add(After("consts"))
            n_ = len(o["ppf"]); ln = -(-120 // n_)
            W(f"v_min_u32 v{V_C3}, {ln-1}, v0"); W(f"v_lshlrev_b32 v{V_C3}, 7, v{V_C3}"); W(f"s_mov_b32 s{S_PF+1}, s{S_SP+3}")
            for k, t_ in enumerate(o["ppf"]):
                W.add(At(t_)); W(f"buffer_load_dword v{[127, V_C3+1][k%2]}, v{V_C3}, {WS}, s{S_PF+1} offen{o.get('ppol', '')}")
                W(f"s_add_u32 s{S_PF+1}, s{S_PF+1}, {ln*128}")
            S.queue(W.L, vmlat=60)
        if o.get("pst3"):
            W = Rec()
            W.add(After("consts"))
            W(f"v_min_u32 v{V_C3}, 39, v0"); W(f"v_lshlrev_b32 v{V_C3}, 7, v{V_C3}")
            for k, t_ in enumerate(o["pst3"]):
                W.add(At(t_)); W(f"buffer_store_dword v{V_C3}, v{V_C3}, {WS}, s{S_SP+k} offen{o.get('ppol', '')}")
            S.queue(W.L, vmlat=60)
        if o.get("w2s"):
            W = Rec()
            A, B, C, D = S_PF, S_PF + 1, S_PF + 2, S_PF + 3
            W.add(After("g2setup"))
            W(f"s_and_b32 s{C}, s{S_MT}, 3"); W(f"s_lshl2_add_u32 s{A}, s{C}, s{S_WAVE}")
            W(f"s_lshl_b32 s{C}, s{C}, 30")
            W(f"v_lshrrev_b32 v121, 1, v0"); W(f"v_lshlrev_b32 v121, 4, v121"); W(f"v_and_b32 v126, 1, v0"); W(f"v_add_u32 v121, v121, v126")
            W(f"v_lshlrev_b32 v121, 7, v121")
            if o.get("w2all", 0) == 0: W(f"v_subrev_u32 v121, s{C}, v121")
            W(f"s_lshl2_add_u32 s{B}, s{S_J}, s{A}"); W(f"s_lshl1_add_u32 s{C}, s{S_J}, s{A}"); W(f"s_sub_u32 s{C}, s{C}, 14")
            W.add(Fn(lambda P: (P(f"s_cmp_lt_u32 s{A}, 14"), P(f"s_cselect_b32 s{A}, s{B}, s{C}"), P(f"s_cselect_b32 s{D}, s{S_J}, 7")), 12))
            W(f"s_lshl_b32 s{D}, s{D}, 8"); W(f"s_mul_i32 s{C}, s{S_KQ}, {896*2048}"); W(f"s_add_u32 s{D}, s{D}, s{C}")
            W(f"s_add_u32 s{B}, s{A}, 14")
            for x in (A, B):
                W(f"s_sub_u32 s{C}, s{x}, 28"); W(f"s_min_u32 s{x}, s{x}, s{C}"); W(f"s_lshl_b32 s{x}, s{x}, 16"); W(f"s_add_u32 s{x}, s{x}, s{D}")
            n_ = len(o["w2s"])
            for k, t_ in enumerate(o["w2s"]):
                W.add(At(p1 + t_)); W(f"buffer_load_dword v{126+k%2}, v121, s[{S_W2}:{S_W2+3}], s{A if k < n_ // 2 else B} offen")
                if n_ == 8 and k < 7: W(f"v_add_u32 v121, 0x40000000, v121")
            S.queue(W.L, vmlat=60)
        S.queue(h_stores(), vmlat=0)
        S.queue(G)
    o["rows_inv"](S, g0, bar, o, blk(4) if fft else blk(2))
    E = Rec()
    SP = [S_SP + d for d in range(4)]
    EX, V_L8 = 6, V_H1
    if fft: E.add(At(start2[4] - 30)); E.add(DmaDone(37)); E.add(After("y3"))
    else: E.add(At(g0 + 30))
    PK2 = V_PK if fft else 10
    E(f"v_lshlrev_b32 v{V_L8}, 3, v0"); E(f"v_mov_b32 v{EX+3}, v{V_TOK}"); E(f"s_mov_b32 s{S_M16}, 0xffff"); E.add(Mark("l8"))
    for t in range(6):
        E.add(At(done2[t] + 3))
        acc = acc2(t); pk = PK2
        for q in range(2):
            for i in range(4): E(f"v_cvt_pk_bf16_f32 v{pk+4*q+i}, v{acc+8*q+2*i}, v{acc+8*q+2*i+1}")
        E(f"v_cvt_pk_bf16_f32 v{EX+(t%2 if t < 4 else 2)}, v{acc+7}, v{acc+15}")
        for q in range(2): E(f"v_bfi_b32 v{pk+4*q+3}, s{S_M16}, v{pk+4*q+3}, v{V_TOK}")
        E.add(Mark(f"pack{t}"))
        so = SP[t // 2]
        E.add(At(g0 + o["pst"][t]))
        for q in range(2): E(f"buffer_store_dwordx4 {v(pk+4*q,4)}, v{V_L16}, {WS}, s{so} offen offset:{(t%2)*2048+q*1024} sc1")
        if t in (1, 3):
            E(f"s_add_u32 s{so}, s{so}, 4096"); E(f"buffer_store_dwordx4 {v(EX,4)}, v{V_L16}, {WS}, s{so} offen sc1")
        if t >= 4: E(f"buffer_store_dwordx2 {v(EX+2,2)}, v{V_L8}, {WS}, s{so} offen offset:{2048 if t == 4 else 1536} sc1")
        if t == 4: E(f"s_add_u32 s{so}, s{so}, 1024")
        E.add(Mark(f"ps{t}"))
    S.queues.insert(len(S.queues) - o.get("eprio", 0), {"L": E.L, "hold": -1, "vmlat": 0})
    S0, S1 = blk(4), blk(5)
    GB, GY = 24, blk(6)
    GR = dict(A=(112, blk(3) + 12), B=(24, 40), C=(10, 18), D=(blk(3), blk(3) + 8)) if fft else dict(A=(blk(2), 40), B=(blk(3), 24), C=(blk(7), blk(7) + 8), D=(112, 120))
    V_XO, V_XR, V_YR, V_P5 = 2, 4, 60, 62
    T = V_T + 4
    I = Rec()
    B2 = GY
    if o.get("tb2") and not fft:
        B2 = blk(7)
        I.add(After("gelu7")); I.add(At(g0 + o["tb2"]))
        I(f"v_and_b32 v{B2+4}, 48, v0")
        I(f"buffer_load_dwordx4 {v(B2,4)}, v{B2+4}, s[{S_B}:{S_B+3}], s{S_B2} offen"); I.add(Mark("b2"))
    I.add(After("rows_valu"))
    def swaps(r_, n=1):
        for k in range(n):
            for e in range(2): I(f"v_permlane32_swap_b32 v{r_+4*k+e}, v{r_+4*k+2+e}")
    I(f"v_lshrrev_b32 v{T}, 4, v0"); I(f"v_lshlrev_b32 v{V_XO+1}, 4, v{T}")
    if B2 == GY: I(f"buffer_load_dwordx4 {v(GY,4)}, v{V_XO+1}, s[{S_B}:{S_B+3}], s{S_B2} offen")
    I(f"v_bfe_u32 v{T+1}, v0, 2, 2")
    I(f"v_and_b32 v{T+2}, 3, v0"); I(f"v_lshl_add_u32 v{T+1}, v{T+1}, 4, v{T+2}"); I(f"v_lshlrev_b32 v{T+1}, 8, v{T+1}")
    I(f"v_add_u32 v{T+1}, {L_ST}, v{T+1}")
    I(f"v_and_b32 v{T+2}, 15, v0")
    I(f"v_lshl_add_u32 v{T+3}, s{S_WAVE}, 2, v{T}"); I(f"v_xor_b32 v{T+3}, v{T+3}, v{T+2}")
    I(f"v_lshl_add_u32 v{V_XR}, v{T+3}, 4, v{T+1}")
    for u in range(4): I(f"ds_read_b128 {v(GB+4*u,4)}, v{V_XR} offset:{u*1024}")
    I(f"v_lshl_add_u32 v{T+3}, v{T}, 2, s{S_WAVE}"); I(f"v_xor_b32 v{T+3}, v{T+3}, v{T+2}")
    I(f"v_lshl_add_u32 v{V_YR}, v{T+3}, 4, v{T+1}")
    I(f"v_lshl_add_u32 v{V_XO}, v{T+2}, 11, v{V_XO+1}")
    I(f"v_min_u32 v{T+2}, 15, v0"); I(f"v_and_b32 v{T+3}, 12, v{T+2}"); I(f"v_mul_u32_u24 v{T+3}, 3, v{T+3}")
    I(f"v_add_u32 v{T+2}, v{T+2}, v{T+3}"); I(f"v_lshl_add_u32 v{T+2}, s{S_WAVE}, 2, v{T+2}")
    if ALIAS & 2: I.add(After("rows_inv_done"))
    I(f"v_lshlrev_b32 v{V_P5}, 7, v{T+2}")
    tile_voff(I, T + 2, True)
    I.add(Mark("adr"))
    swaps(GB, 4)
    unpack_add(I, S0, GB, first=True); unpack_add(I, S1, GB + 8, first=True)
    swaps(B2)
    for i in range(4):
        t = V_T + 8 + 2 * (i % 2)
        I(f"v_lshlrev_b32 v{t}, 16, v{B2+i}"); I(f"v_and_b32 v{t+1}, 0xffff0000, v{B2+i}")
        for Sx in (S0, S0 + 8, S1, S1 + 8):
            for e in range(2): I(f"v_add_f32 v{Sx+2*i+e}, v{Sx+2*i+e}, v{t+e}")
    I.add(Mark("x_done"))
    Y2 = Rec()
    Y2.add(After("adr"))
    rl = f"buffer_load_dword v{V_XO+1}, v{V_P5}, {WS}, s{S_F5P} offen sc1"
    Y2.add(At(g0 + o["tY"] - o["plY"])); Y2(rl)
    Y2.add(Gap(o["plY"])); Y2.add(S.poll("FY", [V_XO + 1], S_TOK, [rl]))
    Y2.add(Fn(lambda P: S.push_dma(tile_dma(S_WS, S_YO, L_Y, " sc1", (0x10000, 0xf0000, 0x10000) if ALIAS & 2 else (32768,) * 3), o["stZ"]), 0)); Y2.add(Mark("Y"))
    I2 = Rec()
    I2.add(After("x_done" if fft else "adr")); I2.add(After("rows_inv_done"))
    SO = [SP[3], S_T0, S_T1, S_E1]
    for k in range(1, 4): I2(f"s_add_u32 s{SO[k]}, s{SP[3]}, {4096*k}")
    I2.add(After("pack3" if fft else "l8"))
    LD = {}
    ld = lambda r_, w, off: f"buffer_load_dwordx{w} {v(r_,w)}, v{V_L16 if w == 4 else V_L8}, {WS}, s{SO[off//4096]} offen offset:{off%4096} sc1"
    for name, nl, off, xoff in (("A", 4, 0, 4096), ("B", 4, 5120, 9216), ("C", 2, 10240, 12288), ("D", 2, 13312, 12800)):
        g, ex = GR[name]
        LD[name] = (g, ex, [ld(g + 4 * u, 4, off + u * 1024) for u in range(nl)] + [ld(ex, nl, xoff)])
        if name == "B": I2.add(After("x_done"))
        I2.add(At(g0 + o["t" + name]))
        for t_ in LD[name][2]: I2(t_)
        I2.add(Mark(name))
    def take(name, *dst):
        g, ex, L = LD[name]; nl = len(L) - 1
        I.add(After(name, o["ll"]))
        regs = [g + 4 * u + 3 for u in range(nl)] + [ex + nl - 1]
        pre = tag_pre(regs, V_T + 8, S_TOK)
        I.add(Fn(S.timed("w" + name, lambda P: P(pre[0])), 8))
        for t_ in pre[1:]: I(t_)
        I.add(Fn(S.timed("F" + name, lambda P: tag_check(P, pre, V_T + 8, S_M16, L, lambda: S.nstamp(P, "F" + name + "="))), 16))
        for k, d in enumerate(dst): unpack_add(I, d, g + 8 * k, ex=ex + k)
    def ysum():
        I.add(After("Y")); I.add(At(bar[o["stZ"]] + 1))
        for u in range(4): I(f"ds_read_b128 {v(GY+4*u,4)}, v{V_YR} offset:{L_Y-L_ST+u*1024}")
        return lambda: (swaps(GY, 4), unpack_add(I, S0, GY, scale=INV_SCALE), unpack_add(I, S1, GY + 8, scale=INV_SCALE), I.add(Mark("ysum")))
    def final(t, Sx):
        acc = acc2(t); pk = V_PK
        I.add(At(done2[t] + 3))
        st = lambda q: (swaps(pk + 4 * q), I(f"buffer_store_dwordx4 {v(pk+4*q,4)}, v{V_XO}, s[{S_OUT}:{S_OUT+3}], s{S_OO} offen{o.get('outpol','')}"),
                        I(f"s_add_u32 s{S_OO}, s{S_OO}, 0x8000"))
        for q in range(2):
            for i in range(8):
                I(f"v_add_f32 v{Sx+8*q+i}, v{Sx+8*q+i}, v{acc+8*q+i}")
                if q == 1 and i == 1: st(0)
            for i in (0, 2, 1, 3): I(f"v_cvt_pk_bf16_f32 v{pk+4*q+i}, v{Sx+8*q+2*i}, v{Sx+8*q+2*i+1}")
        st(1)
    for c in o.get("order", "AyYBC6D"):
        if c == "y": ys = ysum()
        elif c == "Y": ys()
        elif c in "AB": take(c, S0, S1)
        elif c == "C": take(c, S0)
        elif c == "D": take(c, S1)
        else:
            I.add(After("ps5")); final(6, S0); I.add(Mark("final6"))
    I.add(Mark("sum7"))
    final(7, S1)
    S.queues.insert(1, {"L": I2.L, "hold": -1, "vmlat": 0})
    S.queues.insert(1, {"L": Y2.L, "hold": -1, "vmlat": 0})
    S.queue(I.L, vmlat=o.get("vmlat", 24))
    st_ = None
    if stamp: st_ = {k: (lambda P, j=j: stamp(P, j)) for k, j in o["ptsd"].items()}
    e3 = g0 + o["ph3"]
    ph = lambda i: 0 if i < p1 else 1 if i < g0 else 2 if i < e3 else 3
    ph1 = (lambda i: i < start2[4]) if fft else (lambda i: i < g0)
    def dgap(i, nd, left):
        for a_, b_, g_ in o["dgr"]:
            if a_ <= i - g0 < b_: return g_
        return dgap0(i, nd, left)
    dgap0 = lambda i, nd, left: 1 if 2 * nd > left - (o.get("dwin", 3) if S.swin(i) else 0) else (2 if ph1(i) or 3 * nd > left else o.get("dgap2", 3))
    def budget(i):
        x = o["bud"][ph(i)]
        for a_, b_, x_ in o["budr"]:
            if a_ <= i - g0 < b_: x = x_
        n_ = int((i + 1) * x) - int(i * x)
        return 4 * ((n_ + 1) // 2), 4 * (n_ // 2)
    S.sgap = lambda i: o["sgap"][ph(i)] if i < start2[7] else 0
    S.swin = lambda i: i > 40 and o["swin"][ph(i)]
    barx = lambda i: o.get("barx1", 0) if ph1(i) else o.get("barx2", 12)
    left = S.run(budget=budget, LA=o["LA"], LAT=o.get("LAT", 4), dma_gap=dgap, barx=barx, stamps=st_, first_stage=24 if fft else 0,
                 vm_late=o.get("vm_late", 4), kbmax=o.get("kbmax", 2))
    edges = [0, p1 // 2, p1, p1 + 136][:0 if fft else 4] + [g0, g0 + 112, g0 + 224, g0 + 336, n]
    print("issue cycles:", [sum(S.over.get(i, 0) for i in range(a_, b_)) for a_, b_ in zip(edges, edges[1:])])
    m = S.marks
    print("stream: slots", n, "p1", p1, "g0", g0, "left", left, "bars", {k: v_ - g0 for k, v_ in bar.items() if k > 27}, "marks", {k: v_ - g0 for k, v_ in m.items()})
    for k in range(2 if fft else 0, 4): assert m[f"c3{k}"] < bar[bF3[k]]
    if fft: assert m["pack0"] < start2[5] and m["pack1"] < start2[6] and m["pack2"] < start2[7]
    else:
        assert m["gelu1"] < g0 and m["f1c"] < bar[13] and m["consts"] < p1 - 20 and m["g2setup"] < bar[13] - 6 and m["g2b"] < bar[16 + WSH]
        for t in range(6): assert m[f"pack{t}"] < start2[t + 2]
        if o.get("csx"): assert m["aug"] < p1 - 2
        if STAG: assert m["stc"] < bar[16] < p1 + 8 - o["LA"] and m["f1c"] < bar[bS] - 6
```

```python
from common import *
from stream import *
from rows import DROW, k2off
import fused as F

def angles(R, idx, arg0, step, T, emit):
    for n0 in range(0, len(idx), 2):
        pr = list(range(n0, min(n0 + 2, len(idx))))
        for e, n in enumerate(pr):
            k = idx[n]
            if k == 0: R(f"v_mov_b32 v{T+e}, v{arg0}")
            else: R(f"v_fmamk_f32 v{T+e}, v{step}, {hexf(float(k))}, v{arg0}")
        for e, n in enumerate(pr):
            R(f"v_cos_f32 v{T+2+2*e}, v{T+e}"); R(f"v_sin_f32 v{T+3+2*e}, v{T+e}")
        for e, n in enumerate(pr): emit(n, T + 2 + 2 * e, T + 3 + 2 * e, T + e)

def twiddle1(R, re, im, c, sn, tmp, conj):
    for j0 in range(0, 16, 2):
        for e in range(2): R(f"v_mul_f32 v{tmp+e}, v{re+j0+e}, v{sn+j0+e}")
        for e in range(2): R(f"v_mul_f32 v{re+j0+e}, v{re+j0+e}, v{c+j0+e}")
        for e in range(2):
            j = j0 + e
            R(f"v_fma_f32 v{re+j}, {'-' if conj else ''}v{im+j}, v{sn+j}, v{re+j}")
        for e in range(2):
            j = j0 + e
            R(f"v_fma_f32 v{im+j}, v{im+j}, v{c+j}, {'' if conj else '-'}v{tmp+e}")

def stage_addr2(R, A0, A1, s0, swave, base, t):
    R(f"v_add_u32 v{t}, -1, v0")
    R(f"v_and_b32 v{t}, 31, v{t}")
    R(f"s_bfe_u32 s{s0}, s2, 0x40003")
    R(f"v_xor_b32 v{t}, s{s0}, v{t}")
    R(f"v_lshlrev_b32 v{t}, 4, v{t}")
    R(f"v_lshrrev_b32 v{t+1}, 5, v0")
    R(f"v_lshl_add_u32 v{t}, v{t+1}, 11, v{t}")
    R(f"s_lshl_b32 s{s0}, s{swave}, 2")
    R(f"s_add_u32 s{s0}, s{s0}, {base}")
    R(f"v_add_u32 v{t}, s{s0}, v{t}")
    R(f"v_and_b32 v{t+1}, 31, v0")
    R(f"v_cmp_eq_u32 vcc, 0, v{t+1}")
    R(f"v_add_u32 v{t+1}, -1024, v{t}")
    R(f"v_cndmask_b32 v{A0}, v{t}, v{t+1}, vcc")
    R(f"v_cmp_eq_u32 vcc, 0, v0")
    R(f"v_add_u32 v{t+1}, 16384, v{A0}")
    R(f"v_cndmask_b32 v{A1}, v{A0}, v{t+1}, vcc")

D1, D0, D2, Y0, Y1 = 112, F.blk(6), 24, 48, 40
TT, VS = 2, 22
A0, A1, VG, AP = 60, 61, 62, 59
BA, BB = 224, 240

def inv_consts(R, T):
    Q = T + 8
    R(f"v_and_b32 v{T}, 0x13, v0")
    R(f"v_bfe_u32 v{T+1}, v0, 2, 1")
    R(f"v_lshl_add_u32 v{T}, v{T+1}, 3, v{T}")
    R(f"v_bfe_u32 v{T+1}, v0, 3, 1")
    R(f"v_lshl_add_u32 v{T}, v{T+1}, 2, v{T}")
    R(f"v_cvt_f32_u32 v{T}, v{T}")
    R(f"v_lshrrev_b32 v{T+1}, 5, v0")
    R(f"v_lshl_add_u32 v{T+1}, s{F.S_WAVE}, 1, v{T+1}")
    R(f"v_cvt_f32_u32 v{T+1}, v{T+1}")
    R(f"s_lshl_b32 s{F.S_T0}, s{F.S_WAVE}, 10"); R(f"s_add_u32 s{F.S_T0}, s{F.S_T0}, {F.L_Y}")
    R(f"v_add_u32 v{T+7}, s{F.S_T0}, v{F.V_L16}")
    R(f"v_mul_f32 v{T+2}, {hexf(1/1024)}, v{T}")
    R(f"v_mul_f32 v{T+3}, v{T+2}, v{T+1}")
    R(f"v_mul_f32 v{T+3}, 4.0, v{T+3}")
    for i in range(4):
        if i: R(f"v_add_f32 v{T+3}, v{T+3}, v{T+2}")
        R(f"v_cos_f32 v{Q+i}, v{T+3}"); R(f"v_sin_f32 v{Q+4+i}, v{T+3}")
    R(f"v_and_b32 v{T+2}, 31, v0")
    R(f"ds_write_b128 v{T+7}, {v(Q,4)}")
    R(f"v_cvt_f32_u32 v{T+2}, v{T+2}")
    R(f"v_mul_f32 v{T+2}, {hexf(1/32)}, v{T+2}")
    R(f"ds_write_b128 v{T+7}, {v(Q+4,4)} offset:4096")
    R(f"v_mul_f32 v{T+3}, v{T+2}, v{T+1}")
    R(f"v_mul_f32 v{T+3}, 4.0, v{T+3}")
    for i in range(4):
        if i: R(f"v_add_f32 v{T+3}, v{T+3}, v{T+2}")
        R(f"v_cos_f32 v{T+4}, v{T+3}"); R(f"v_sin_f32 v{T+5}, v{T+3}")
        if i == 3: R(f"v_mul_f32 v{T+2}, {hexf(1/32)}, v{T}")
        else: R(f"s_nop 0")
        R(f"v_cvt_pk_bf16_f32 v{Q+8+i}, v{T+4}, -v{T+5}")
    R(f"v_mul_f32 v{T+3}, v{T+2}, v{T+1}")
    R(f"ds_write_b128 v{T+7}, {v(Q+8,4)} offset:8192")
    R(f"v_add_f32 v{T+3}, v{T+3}, v{T+3}")
    R(f"s_lshr_b32 s{F.S_T0}, s{F.S_WAVE}, 1"); R(f"s_lshl_b32 s{F.S_T0}, s{F.S_T0}, 10"); R(f"s_and_b32 s{F.S_T1}, s{F.S_WAVE}, 1")
    R(f"s_lshl3_add_u32 s{F.S_T0}, s{F.S_T1}, s{F.S_T0}"); R(f"s_add_u32 s{F.S_T0}, s{F.S_T0}, {F.L_Y}")
    for e in range(2):
        if e: R(f"v_add_f32 v{T+3}, v{T+3}, v{T+2}")
        R(f"v_cos_f32 v{T+4}, v{T+3}"); R(f"v_sin_f32 v{T+5}, v{T+3}")
        R(f"v_add_u32 v{T+6}, s{F.S_T0}, v{F.V_L16}")
        R(f"v_cvt_pk_bf16_f32 v{Q+12+e}, v{T+4}, -v{T+5}"); R(f"v_cvt_pk_bf16_f32 v{Q+14+e}, v{T+5}, v{T+4}")
    R(f"ds_write_b64 v{T+6}, {v(Q+12,2)} offset:12288")
    R(f"ds_write_b64 v{T+6}, {v(Q+14,2)} offset:14336")

def inv_fetch(R, TW):
    R(f"v_add_u32 v{TT}, {F.L_Y}, v{F.V_L16}")
    for k in range(4): R(f"ds_read_b128 {a(BB+4*k,4)}, v{TT} offset:{8192+k*1024}")
    for k in range(4): R(f"ds_read_b128 {a(BA+4*k,4)}, v{TT} offset:{12288+k*1024}")
    for k in range(8): R(f"ds_read_b128 {v(TW+4*k,4)}, v{TT} offset:{k*1024}")

def inv_dma(pol=" sc1"):
    L = [f"s_add_u32 m0, s{F.S_LW}, {F.L_Y}"]
    for u in range(4):
        L.append(f"buffer_load_dwordx4 v{VG}, {F.WS}, s{F.S_YD} offen offset:{u*1024}{pol} lds")
        if u < 3: L.append(f"s_add_u32 s{F.S_YD}, s{F.S_YD}, {0x40000-1024}")
    return L

def inv_data(R, TW):
    s0 = F.S_RS
    for j in range(0, 8, 2): R(f"ds_read2st64_b32 {v(Y0+j,2)}, v{AP} offset0:{k2off(j)//256} offset1:{k2off(j+1)//256}")
    for j in range(8): R(f"ds_read_b32 v{Y1+j}, v{A1 if j == 0 else A0} offset:{k2off(j)+512}")
    R(f"v_lshlrev_b32 v{A1}, 31, v0")
    R(f"v_or_b32 v{A1}, 0.5, v{A1}")
    R(f"v_cmp_gt_u32 s[66:67], 32, v0")
    for par, Y in enumerate((Y0, Y1)):
        R(f"v_readlane_b32 s{s0+par}, v{Y}, 0")
        R(f"v_writelane_b32 v{Y}, 0, 0")
    R(f"v_cndmask_b32 v{A0}, 0, v{A1}, s[66:67]")
    for par in range(2): R(f"s_lshl_b32 s{s0+par}, s{s0+par}, 16")
    for par, (Y, d) in enumerate(((Y0, D0), (Y1, D2))):
        for q in range(2):
            for part, dd in enumerate((d, D1)):
                R(f"v_mfma_f32_32x32x16_bf16 {v(dd,16)}, {v(Y+4*q,4)}, {a(BA+8*part+4*q,4)}, {'0' if q==0 else v(dd,16)}")
        twiddle1(R, d, D1, TW, TW + 16, TT, True)
        R(f"v_fmac_f32 v{d}, s{s0+par}, v{A0}")
        for i in range(16): R(f"v_cvt_pk_bf16_f32 v{D1+i}, v{d+i}, v{D1+i}")
        for q in range(4):
            R(f"v_mfma_f32_32x32x16_bf16 {v(d,16)}, {v(D1+4*q,4)}, {a(BB+4*q,4)}, {'0' if q==0 else v(d,16)}")
    s0 = F.S_YR
    for rw in range(2):
        for q in range(2):
            for i in range(4):
                j = 8 * q + 2 * i
                t = Y0 + 2 * i
                for e in range(2): R(f"v_{'sub' if rw else 'add'}_f32 v{t+e}, v{D0+j+e}, v{D2+j+e}")
            for i in range(4): R(f"v_cvt_pk_bf16_f32 v{D1+8*rw+4*q+i}, v{Y0+2*i}, v{Y0+2*i+1}")
            R.add(Mark(f"y{2*rw+q}"))

def inv_stores(R):
    s0 = F.S_YR
    for rw in range(2):
        for q in range(2):
            R.add(After(f"y{2*rw+q}"))
            if F.ALIAS & 2:
                R(f"buffer_store_dwordx4 {v(D1+8*rw+4*q,4)}, v{VG}, {F.WS}, s{s0} offen sc1", "yst")
                if rw + q < 2: R(f"s_add_u32 s{s0}, s{s0}, 0x40000")
            else: R(f"buffer_store_dwordx4 {v(D1+8*rw+4*q,4)}, v{F.V_L16}, {F.WS}, s{s0} offen offset:{q*1024} sc1", "yst")
        if rw == 0 and not F.ALIAS & 2: R(f"s_add_u32 s{s0}, s{s0}, {1024*2048}")

def plain(P, L):
    for it in L:
        if isinstance(it, str): P(it)
        elif isinstance(it, tuple): P(it[0])
```

```python
from common import *
from stream import *
from rows import DROW, k2off, sincos_pack, twiddle, wave_reduce
import fused as F

class Inter:
    def __init__(s, P): s.P = P; s.side = []; s.gap = 8; s.n = 0; s.lock = False
    def push(s, L, sink): s.side += [(t, sink) for t in L]
    def one(s):
        while s.side:
            t, sink = s.side.pop(0)
            h = s.P(t)
            if h.kind == "vmem":
                sink.append(h); break
    def flush(s):
        while s.side: s.one()
    def __call__(s, text):
        h = s.P(text)
        s.n += 2 if text.split()[0] in TRANS else (8 if text.startswith("v_mfma") else 1)
        if s.side and not s.lock and s.n >= s.gap:
            s.n = 0; s.one()
        return h
    def __getattr__(s, k): return getattr(s.P, k)

def stage_addr3(R, A0, A1, AP, s0, swave, base, t):
    def pos(d, src):
        R(f"v_bfe_u32 v{t+1}, v{src}, 1, 2")
        R(f"v_bfe_u32 v{A0}, v{src}, 3, 2")
        R(f"v_and_b32 v{d}, 1, v{src}")
        R(f"v_lshl_add_u32 v{d}, v{A0}, 1, v{d}")
        R(f"v_lshl_add_u32 v{d}, v{t+1}, 3, v{d}")
        R(f"v_xor_b32 v{d}, s{s0}, v{d}")
        R(f"v_lshl_add_u32 v{d}, v{d}, 4, v{A1}")
    R(f"s_lshl_b32 s{s0}, s{swave}, 2")
    R(f"s_add_u32 s{s0}, s{s0}, {base}")
    R(f"v_lshrrev_b32 v{A1}, 5, v0")
    R(f"v_lshlrev_b32 v{A1}, 11, v{A1}")
    R(f"v_add_u32 v{A1}, s{s0}, v{A1}")
    R(f"s_bfe_u32 s{s0}, s2, 0x30003")
    R(f"v_add_u32 v{t}, -1, v0")
    pos(AP, 0)
    pos(t, t)
    R(f"v_and_b32 v{t+1}, 31, v0")
    R(f"v_cmp_eq_u32 vcc, 0, v{t+1}")
    R(f"v_add_u32 v{t+1}, -1024, v{t}")
    R(f"v_cndmask_b32 v{A0}, v{t}, v{t+1}, vcc")
    R(f"v_cmp_eq_u32 vcc, 0, v0")
    R(f"v_add_u32 v{t+1}, 16384, v{A0}")
    R(f"v_cndmask_b32 v{A1}, v{A0}, v{t+1}, vcc")

ST = 54
LROW, LSTAGE = F.L_AUX, F.L_AUX + 0x4000

def fwd_issue(P):
    st = ST
    P(f"s_lshr_b32 s{st}, s2, 3")
    P(f"s_and_b32 s{st+1}, s2, 7")
    P(f"s_lshl_b32 s{st+1}, s{st+1}, 2")
    P(f"s_add_u32 s{st+1}, s{st+1}, s{F.S_WAVE}")
    P(f"s_lshl_b32 s{st+1}, s{st+1}, 5")
    P(f"s_add_u32 s{st+2}, s{st+1}, s{st}")
    P(f"s_add_u32 m0, s{F.S_LW}, {LROW}")
    P(f"s_lshl_b32 s{st+1}, s{st+2}, 11")
    P(f"s_add_u32 s{st+3}, s{st+1}, {1024*2048-2048}")
    return [f"buffer_load_dwordx4 v{F.V_L16}, s[{F.S_X}:{F.S_X+3}], s{st+1+2*(j//2)} offen offset:{j*1024} lds" for j in range(4)]

def nq_issue(P):
    P(f"v_and_b32 v{NQ}, 3, v0"); P(f"v_lshl_add_u32 v{NQ}, s2, 2, v{NQ}")
    P(f"v_mul_u32_u24 v{NQ+2}, 2052, v{NQ}")
    P(f"s_mov_b64 exec, 15")
    P(f"global_load_dword v{NQ+1}, v{NQ+2}, s[4:5] offset:1024")
    P(f"global_load_dword v{NQ+2}, v{NQ+2}, s[6:7] offset:1024")
    P(f"s_mov_b64 exec, -1")

B1, TW, A2, X, D, PK, T = 64, 80, 112, 128, 144, 208, 240
NQ = 49
A0, A1, RA, AP = 60, 61, 62, 59

def fwd_consts(P):
    st = ST
    P(f"v_and_b32 v{T+8}, 31, v0")
    P(f"v_cvt_f32_u32 v{T+8}, v{T+8}")
    P(f"v_lshrrev_b32 v{T+9}, 5, v0")
    P(f"v_cvt_f32_u32 v{T+9}, v{T+9}")
    P(f"v_mul_f32 v{T+10}, {hexf(1/32)}, v{T+8}")
    P(f"v_mul_f32 v{T+11}, v{T+10}, v{T+9}")
    P(f"v_mul_f32 v{T+11}, {hexf(8.0)}, v{T+11}")
    for q in range(2):
        for jj in range(4):
            for e in range(2):
                k = 16 * q + 2 * jj + e
                if k == 0: P(f"v_mov_b32 v{T+e}, v{T+11}")
                else: P(f"v_fmamk_f32 v{T+e}, v{T+10}, {hexf(float(k))}, v{T+11}")
            P(f"v_cos_f32 v{T+2}, v{T}"); P(f"v_cos_f32 v{T+3}, v{T+1}")
            P(f"v_sin_f32 v{T+4}, v{T}"); P(f"v_sin_f32 v{T+5}, v{T+1}")
            P(f"v_cvt_pk_bf16_f32 v{B1+4*q+jj}, v{T+2}, v{T+3}")
            P(f"v_cvt_pk_bf16_f32 v{B1+8+4*q+jj}, -v{T+4}, -v{T+5}")
    P(f"v_bfe_u32 v{T}, v0, 2, 2")
    P(f"v_lshrrev_b32 v{T+1}, 5, v0")
    P(f"v_lshl_add_u32 v{T}, v{T+1}, 3, v{T}")
    P(f"v_lshlrev_b32 v{T}, 6, v{T}")
    P(f"v_bfe_u32 v{T+1}, v0, 4, 1")
    P(f"v_lshl_add_u32 v{T}, v{T+1}, 5, v{T}")
    P(f"v_and_b32 v{T+1}, 3, v0")
    P(f"v_lshl_add_u32 v{T}, v{T+1}, 3, v{T}")
    P(f"s_add_u32 s{st+3}, s{F.S_LW}, {LROW}")
    P(f"v_add_u32 v{RA}, s{st+3}, v{T}")
    P(f"v_mov_b32 v{T+13}, 0x3f803f80")
    P(f"v_mul_f32 v{T+10}, {hexf(1/1024)}, v{T+8}")
    P(f"v_mul_f32 v{T+11}, v{T+10}, v{T+9}")
    P(f"v_mul_f32 v{T+11}, 4.0, v{T+11}")
    for i in range(16):
        t = T + (i % 2)
        if DROW[i] == 0: P(f"v_mov_b32 v{t}, v{T+11}")
        else: P(f"v_fmamk_f32 v{t}, v{T+10}, {hexf(float(DROW[i]))}, v{T+11}")
        P(f"v_cos_f32 v{TW+i}, v{t}"); P(f"v_sin_f32 v{TW+16+i}, v{t}")
    P(f"v_bfe_u32 v{T+10}, v0, 1, 4")
    P(f"v_cvt_f32_u32 v{T+10}, v{T+10}")
    P(f"v_mul_f32 v{T+10}, {hexf(1/32)}, v{T+10}")
    P(f"v_and_b32 v{T+12}, 1, v0")
    P(f"v_cvt_f32_u32 v{T+12}, v{T+12}")
    P(f"v_mul_f32 v{T+11}, v{T+10}, v{T+9}")
    P(f"v_mul_f32 v{T+11}, 4.0, v{T+11}")
    P(f"v_fmac_f32 v{T+11}, {hexf(0.25)}, v{T+12}")
    sincos_pack(P, A2, T + 11, T + 10, DROW, T)
    stage_addr3(P, A0, A1, AP, st + 1, F.S_WAVE, LSTAGE, T)
    P(f"v_fma_f32 v{T+12}, v{T+12}, -2.0, 1.0")

def fwd_data(P, h, stamp=lambda P, k: None):
    st = ST; sg = st + 4; WS = F.WS
    P.wait_for(h)
    stamp(P, 'r0')
    for rw in range(2):
        for q in range(2):
            for hh in range(2):
                P(f"ds_read_b64_tr_b16 {v(X+8*rw+4*q+2*hh,2)}, v{RA} offset:{rw*2048+q*1024+hh*256}")
    for rw in range(2):
        for j in range(8):
            x = X + 8 * rw + j
            P(f"v_dot2_f32_bf16 v{T+3*rw}, v{x}, v{T+13}, {'0' if j == 0 else v(T+3*rw)}")
            P(f"v_dot2_f32_bf16 v{T+3*rw+1}, v{x}, v{x}, {'0' if j == 0 else v(T+3*rw+1)}")
    mf = []
    for rw in range(2):
        for q in range(2):
            for part in range(2):
                d = D + 32 * rw + 16 * part
                mf.append(f"v_mfma_f32_32x32x16_bf16 {v(d,16)}, {v(X+8*rw+4*q,4)}, {v(B1+8*part+4*q,4)}, {'0' if q==0 else v(d,16)}")
    R = Rec()
    for rw in range(2): R(f"v_mul_f32 v{T+3*rw+2}, v{T+3*rw}, v{T+12}")
    wave_reduce(R, [T + i for i in range(6)])
    for i in range(6): R(f"v_readlane_b32 s{sg+i}, v{T+i}, 63")
    L = R.L
    for i, m in enumerate(mf):
        P(m)
        for t_ in L[6 * i: 6 * i + 6]: P(t_)
    P(f"v_cmp_gt_f32 vcc, 0, v{T+12}")
    P(f"v_mov_b32 v{T}, s{sg}"); P(f"v_mov_b32 v{T+1}, s{sg+3}")
    P(f"v_mov_b32 v{T+2}, s{sg+1}"); P(f"v_mov_b32 v{T+3}, s{sg+4}")
    P(f"v_cndmask_b32 v{T}, v{T}, v{T+1}, vcc")
    P(f"v_cndmask_b32 v{T+2}, v{T+2}, v{T+3}, vcc")
    P(f"v_cmp_eq_f32 vcc, 0, v{T+8}")
    P(f"v_mov_b32 v{T+4}, {hexf(-1/32)}")
    P(f"v_mul_f32 v{T}, {hexf(-1/1024)}, v{T}")
    P(f"v_mul_f32 v{T+2}, {hexf(1/1024)}, v{T+2}")
    P(f"v_cndmask_b32 v{T+4}, 0, v{T+4}, vcc")
    P(f"v_fma_f32 v{T+2}, -v{T}, v{T}, v{T+2}")
    P(f"v_mul_f32 v{T+6}, s{sg+3}, v{T+4}")
    P(f"v_max_f32 v{T+2}, 0, v{T+2}")
    P(f"v_mul_f32 v{T+4}, s{sg}, v{T+4}")
    P(f"v_add_f32 v{T+2}, {hexf(1e-5)}, v{T+2}")
    P(f"v_rsq_f32 v{T+3}, v{T+2}")
    for rw in range(2):
        d = D + 32 * rw
        twiddle(P, d, d + 16, TW, TW + 16, T + 8, False, corr=T + 4 + 2 * rw)
        for i in range(16): P(f"v_cvt_pk_bf16_f32 v{PK+16*rw+i}, v{d+i}, v{d+16+i}")
    S = B1
    R = Rec()
    R(f"v_readlane_b32 s{sg+6}, v{T+3}, 0")
    R(f"v_readlane_b32 s{sg+7}, v{T+3}, 1")
    R(f"v_mul_f32 v{S+6}, v{T+2}, v{T+3}")
    R(f"v_cvt_pk_bf16_f32 v{S+1}, v{T}, v{T}")
    R(f"v_cvt_pk_bf16_f32 v{S}, v{S+6}, v{S+6}")
    R(f"v_and_b32 v{S+3}, 0xffff0000, v{S+1}")
    R(f"v_and_b32 v{S+2}, 0xffff0000, v{S}")
    R(f"v_sub_f32 v{S+3}, v{T}, v{S+3}")
    R(f"v_sub_f32 v{S+4}, v{S+6}, v{S+2}")
    R(f"v_mul_f32 v{S+5}, {hexf(GELU_C0)}, v{T+3}")
    R(f"v_cvt_pk_bf16_f32 v{S}, v{S+2}, v{S+4}")
    R(f"v_cvt_pk_bf16_f32 v{S+2}, v{S+3}, v{S+3}")
    if F.STAG: R(f"s_and_b32 s{st+1}, s{F.S_TOK}, 0x{F.TAGM:x}")
    R(f"v_mov_b32 v{S+3}, {'s%d' % (st+1) if F.STAG else 0}")
    R(f"v_mul_f32 v{S+4}, v{T+3}, v{T+3}")
    R(f"v_mov_b32 v{S+7}, {'s%d' % (st+1) if F.STAG else 0}")
    R(f"v_mul_f32 v{S+4}, v{S+4}, v{S+5}")
    R(f"v_lshlrev_b32 v{S+8}, 15, v0")
    R(f"v_mul_f32 v{S+4}, {hexf(0.044715)}, v{S+4}")
    R(f"s_lshl_b32 s{st+1}, s{st+2}, 5")
    R(f"s_add_u32 s{st+1}, s{st+1}, {F.W_STATS}")
    R(f"v_mov_b32 v{T}, s{sg+6}"); R(f"v_mov_b32 v{T+2}, s{sg+7}")
    R(f"s_add_u32 s{st+3}, s{F.S_LW}, {LSTAGE}")
    R(f"v_add_u32 v{T+8}, s{st+3}, v{F.V_L16}")
    R(f"v_lshrrev_b32 v{T+9}, 5, v0")
    R(f"v_and_b32 v{T+10}, 31, v0")
    R(f"v_lshlrev_b32 v{T+10}, 4, v{T+10}")
    R(f"v_lshl_add_u32 v{RA}, v{T+9}, 17, v{T+10}")
    R(f"s_lshl_b32 s{st+3}, s{F.S_WAVE}, 20")
    R(f"s_lshl_b32 s{st}, s2, 9")
    R(f"s_add_u32 s{st+3}, s{st+3}, s{st}")
    R(f"s_add_u32 s{st+3}, s{st+3}, {F.W_XBUF}")
    R(f"s_lshl_b32 s{st}, s{F.S_WAVE}, 28")
    R(f"v_and_b32 v{NQ+1}, 0xffff, v{NQ+1}")
    R(f"s_add_u32 s{st}, s{st}, {F.W_NQ}")
    R(f"v_lshl_or_b32 v{NQ+1}, v{NQ+2}, 16, v{NQ+1}")
    R(f"v_lshl_add_u32 v{NQ}, v{NQ}, 2, s{st}")
    L = R.L
    k = 0
    for q in range(4):
        for rw in range(2):
            d = D + 16 * rw
            P(f"v_mfma_f32_32x32x16_bf16 {v(d,16)}, {v(A2+4*q,4)}, {v(PK+16*rw+4*q,4)}, {'0' if q==0 else v(d,16)}")
            for t_ in L[k:k + 5]: P(t_)
            k += 5
    assert k >= len(L)
    hs = []
    P.lock = True
    P(f"s_mov_b64 exec, 15")
    hs.append(P(f"buffer_store_dword v{NQ+1}, v{NQ}, {WS}, 0 offen sc1"))
    P(f"s_mov_b64 exec, 3")
    hs.append(P(f"buffer_store_dwordx4 {v(S,4)}, v{S+8}, {WS}, s{st+1} offen sc1"))
    hs.append(P(f"buffer_store_dwordx4 {v(S+4,4)}, v{S+8}, {WS}, s{st+1} offen offset:16 sc1"))
    P(f"s_mov_b64 exec, -1")
    P.lock = False
    for rw in range(2):
        P(f"v_writelane_b32 v{D+16*rw}, s{sg+3*rw+2}, 0")
        P(f"v_writelane_b32 v{D+16*rw+1}, 0, 0")
    for j0 in range(0, 8, 2):
        for j in (j0, j0 + 1): P(f"v_pk_mul_f32 {v(D+16+2*j,2)}, {v(D+16+2*j,2)}, {v(T+2,2)} op_sel_hi:[1,0]")
        for j in (j0, j0 + 1): P(f"v_pk_fma_f32 {v(D+32+2*j,2)}, {v(D+2*j,2)}, {v(T,2)}, {v(D+16+2*j,2)} op_sel_hi:[1,0,1] neg_lo:[0,0,1] neg_hi:[0,0,1]")
        for j in (j0, j0 + 1): P(f"v_pk_fma_f32 {v(D+2*j,2)}, {v(D+2*j,2)}, {v(T,2)}, {v(D+16+2*j,2)} op_sel_hi:[1,0,1]")
        for j in (j0, j0 + 1): P(f"v_cvt_pk_bf16_f32 v{PK+8+j}, v{D+32+2*j}, v{D+33+2*j}")
        for j in (j0, j0 + 1): P(f"v_cvt_pk_bf16_f32 v{PK+j}, v{D+2*j}, v{D+2*j+1}")
        for j in (j0, j0 + 1):
            ad = A1 if j == 0 else A0
            P(f"ds_write_b32 v{ad}, v{PK+8+j} offset:{k2off(j)+512}")
        P(f"ds_write2st64_b32 v{AP}, v{PK+j0}, v{PK+j0+1} offset0:{k2off(j0)//256} offset1:{k2off(j0+1)//256}")
    P(f"s_and_b32 s{st}, s2, 7"); P(f"s_lshl_b32 s{st}, s{st}, 5"); P(f"s_lshr_b32 s{st+1}, s2, 3"); P(f"s_add_u32 s{st}, s{st}, s{st+1}")
    P(f"s_lshl_b32 s{st}, s{st}, 7"); P(f"s_lshl_b32 s{st+1}, s{F.S_WAVE}, 15"); P(f"s_add_u32 s{st}, s{st}, s{st+1}")
    P(f"s_add_u32 s{F.S_RS}, s{st}, {F.W_F1}")
    P.wait(lg=0); P.barrier()
    for u in range(4): P(f"ds_read_b128 {v(D+4*u,4)}, v{T+8} offset:{u*1024}")
    for u in range(4):
        hs.append(P(f"buffer_store_dwordx4 {v(D+4*u,4)}, v{RA}, {WS}, s{st+3} offen sc1"))
        if u < 3: P(f"s_add_u32 s{st+3}, s{st+3}, 0x40000")
    stamp(P, 'r1')
    return hs
```

```python
from common import *

class Gap:
    def __init__(s, n): s.n = n
class At:
    def __init__(s, slot): s.slot = slot
class Bar:
    def __init__(s): s.seen = None
class Fn:
    def __init__(s, f, c=4): s.f = f; s.c = c
class Mark:
    def __init__(s, name): s.name = name
class After:
    def __init__(s, name, d=0): s.name = name; s.d = d

class DmaDone:
    def __init__(s, st): s.st = st

class Rec:
    def __init__(s): s.L = []
    def __call__(s, text, tag=None): s.L.append(text if tag is None else (text, tag))
    def add(s, x): s.L.append(x)

CO = dict(dma=8, st=12, ld=8, dsw=16, br=12, ex=8)
def cost2(text):
    op = text.split()[0]
    if op in TRANS: return 8
    if op.startswith("buffer_") or op.startswith("global_"):
        if "store" in op: return CO["st"] if "x4" in op else 8
        return CO["dma"]
    if op.startswith("ds_write"): return CO["dsw"] if "b128" in op else 8
    if op.startswith("s_cbranch"): return CO["br"]
    if op == "s_nop": return 4 * (int(text.split()[1]) // 4 + 1)
    if "exec" in text: return CO["ex"]
    return 4
def is_vm(text): return text.startswith("buffer_") or text.startswith("global_")

class Stream:
    def __init__(s, P):
        s.P = P; s.slots = []; s.reads = []; s.first = {}; s.ev = {}; s.queues = []; s.tags = {}; s.marks = {}
        s.dma_at_bar = {}
        s.dma_h = {}; s.pre_bar = {}; s.post_bar = {}; s.dq = []; s.nbar = 0; s.boff = {}; s.over = {}; s.force_vm = {}; s.nstamp = lambda P, k: None; s.nvm0 = None
        s.gate = {}; s.rlate = 2; s.last_st = -99; s.sgap = lambda i: 0; s.swin = lambda i: False
    def add(s, m): s.slots.append(m); return len(s.slots) - 1
    def read(s, st, cons, text): s.reads.append((st, cons, text))
    def event(s, slot, item): s.ev.setdefault(slot, []).append(item)
    def emit(s, it):
        P = s.P
        if isinstance(it, str): return P(it)
        if isinstance(it, tuple):
            h = P(it[0]); s.tags.setdefault(it[1], []).append(h); return h
        if isinstance(it, Fn): return it.f(P)
        if isinstance(it, Mark):
            s.marks[it.name] = P.cur; s.nstamp(P, it.name); return None
        raise ValueError(it)
    def timed(s, name, f):
        def g(P):
            s.nstamp(P, name + "<"); f(P); s.nstamp(P, name + ">")
        return g
    def wait_tag(s, tag): return Fn(s.timed(tag, lambda P: P.wait_for(s.tags[tag])))
    def poll(s, name, regs, stok, rl): return Fn(s.timed(name, lambda P: poll_check(P, regs, stok, rl, lambda: s.nstamp(P, name + "="))), 20)
    def push_dma(s, L, st, gate=-99):
        s.dma_h.setdefault(st, [])
        s.dq += [(t, st, gate) for t in L]
    def spent(s, n1): return sum(cost2(x.text) for x in s.P.out[n1:] if x.kind != "dir")
    def head(s, q, i, tail=False):
        P = s.P
        while q["L"]:
            if not tail and q["hold"] > i: return None
            it = q["L"][0]
            if isinstance(it, Gap):
                q["L"].pop(0); q["hold"] = i + it.n; continue
            if isinstance(it, At):
                if not tail and i < it.slot: return None
                q["L"].pop(0); continue
            if isinstance(it, After):
                if it.name not in s.marks or (not tail and i < s.marks[it.name] + it.d): return None
                q["L"].pop(0); continue
            if isinstance(it, DmaDone):
                if any(x[1] <= it.st for x in s.dq): return None
                q["L"].pop(0); continue
            if isinstance(it, Bar):
                if it.seen is None: it.seen = s.nbar
                if s.nbar == it.seen:
                    if not tail: return None
                    P.wait(lg=0); P.barrier(); s.nbar += 1
                q["L"].pop(0); continue
            if isinstance(it, Mark):
                q["L"].pop(0); s.emit(it); continue
            return it
        return None
    def ready(s, q, it, i):
        if isinstance(it, Fn): return it.c
        text = it if isinstance(it, str) else it[0]
        n, lg, vm = s.P.peek(text)
        if n > 1: return None
        if lg is not None and i - lg < s.lat: return None
        if vm is not None and i - vm < q["vmlat"]: return None
        return cost2(text) + 4 * min(n, 1) + (4 if lg is not None or vm is not None else 0)
    def fill(s, q, i, used, bud, vm_ok, only_vm=False):
        P = s.P
        while True:
            it = s.head(q, i)
            if it is None: break
            text = None if isinstance(it, Fn) else (it if isinstance(it, str) else it[0])
            if text and text.startswith("v_mfma"): break
            vm = bool(text and is_vm(text))
            if only_vm and not vm: break
            if vm and (not vm_ok[0] or used > s.vm_late): break
            big_st = vm and "store_dwordx" in text
            if big_st and i - s.last_st < s.sgap(i): break
            if vm and "store" in text and s.swin(i) and any(is_vm(x[0]) and x[2] < i for x in s.dq): break
            c = s.ready(q, it, i)
            if c is None or (used + c > bud and not (used == 0 or c > 12 and used <= 4)): break
            n1 = len(P.out)
            q["L"].pop(0); s.emit(it)
            used += s.spent(n1)
            if vm: vm_ok[0] = False
            if big_st: s.last_st = i
        return used
    def queue(s, L, vmlat=30):
        q = {"L": list(L), "hold": -1, "vmlat": vmlat}; s.queues.append(q); return q
    def bars(s, BOFF, first_stage=0):
        s.bar_at = {st: s.first[st] - s.boff.get(st, BOFF) for st in sorted(s.first) if st > first_stage}
        return s.bar_at
    def run(s, budget=24, LA=10, LAT=4, NB=12, dma_gap=None, barx=None, first_stage=0, stamps=None, PRE=5, vm_late=8, kbmax=2):
        P = s.P; n = len(s.slots); bar_at = s.bar_at
        s.lat = LAT; s.vm_late = vm_late
        barpos = {p: st for st, p in bar_at.items()}
        prepos = {p - PRE: st for st, p in bar_at.items()}
        RD = []; lastuse = {}
        for (st, cons, text) in sorted(s.reads, key=lambda x: x[1]):
            dst = text.split()[1].rstrip(",")
            rel = lastuse.get(dst, -99) + 0.5; lastuse[dst] = cons
            dl = cons - 3
            if st is not None:
                if st in bar_at: rel = max(rel, bar_at[st])
                if st + 1 in bar_at: dl = min(dl, bar_at[st + 1] - 2)
            RD.append([rel, min(cons - LA, dl), dl, cons, text])
        rd_h = []
        P.cur = -1
        P.wait_for(s.dma_h[first_stage]); P.barrier(); s.nbar += 1
        if stamps and -1 in stamps: stamps[-1](P)
        while RD and RD[0][1] < 0:
            r_ = RD.pop(0); rd_h.append((r_[3], -1, P(r_[4])))
        P.wait_for([h for c, _, h in rd_h if c == 0])
        last_dma = -10
        carry = 0
        for i in range(n):
            P.cur = i
            if stamps and i in stamps: stamps[i](P)
            if i in prepos:
                st = prepos[i]
                for L, stg in s.dma_at_bar.get(st, []): s.push_dma(L, stg, max(bar_at[st], s.gate.get(stg, -99)))
            sub = 0
            vm_ok = [i not in barpos]
            ev = list(s.ev.get(i, []))
            while True:
                if sub < 2: P(s.slots[i][sub])
                n0 = len(P.out)
                nom = budget(i)[sub] if sub < 2 else 24
                bud = max(8, nom - carry) if sub < 2 else nom
                isbar = i in barpos and sub == 0
                if isbar:
                    st = barpos[i]
                    assert not any(x[1] <= st for x in s.dq), f"dma of stage {st} not issued at its barrier"
                    assert not any(r_[2] < i for r_ in RD[:4])
                    for it in s.pre_bar.get(st, []): s.emit(it)
                    s.nstamp(P, f"b{st}<")
                    P.wait_for(s.dma_h[st] + P.lg)
                    s.nstamp(P, f"b{st}=")
                    P.barrier(); s.nbar += 1
                    s.nstamp(P, f"b{st}>")
                    for it in s.post_bar.get(st, []): s.emit(it)
                    bud = min(bud, s.spent(n0) + barx(i))
                needw = sub > 0 and any(c == i + 1 and h in P.lg for c, _, h in rd_h)
                if needw: bud -= 4
                if sub > 1: vm_ok = [True]
                ndma = sum(1 for x in s.dq if is_vm(x[0]) and x[2] < i)
                for q in s.queues:
                    it = s.head(q, i)
                    if vm_ok[0] and isinstance(it, str) and it.startswith(("buffer_store_dword ", "buffer_load_dword ")): s.fill(q, i, 0, bud, vm_ok, only_vm=True)
                if vm_ok[0] and s.dq and is_vm(s.dq[0][0]) and s.dq[0][2] < i and (i - last_dma >= dma_gap(i, ndma, min([p for p in barpos if p > i] + [n]) - i) or sub > 1):
                    t, st, _ = s.dq.pop(0)
                    s.dma_h[st].append(P(t)); last_dma = i; vm_ok[0] = False
                else:
                    for q in s.queues:
                        if vm_ok[0]: s.fill(q, i, 0, bud, vm_ok, only_vm=True)
                kb = 0
                while RD and RD[0][0] <= i + (0.5 if sub else 0) and RD[0][1] <= i:
                    w = 2 if "b128" in RD[0][4] else 1
                    urgent = sub > 0 and any(r_[2] <= i for r_ in RD[:8])
                    late = sub == 1 and kb == 0 and RD[0][1] <= i - s.rlate
                    if not (urgent or late) and (kb + w > (kbmax if sub < 2 else 4) or s.spent(n0) + 4 > bud): break
                    r_ = RD.pop(0); kb += w
                    rd_h.append((r_[3], i, P(r_[4])))
                rd_h = rd_h[-40:]
                while ev and (sub > 0 or s.spent(n0) + 4 <= bud): s.emit(ev.pop(0))
                while s.dq and not is_vm(s.dq[0][0]) and s.spent(n0) + 4 <= bud:
                    P(s.dq.pop(0)[0])
                used = s.spent(n0)
                for q in s.queues: used = s.fill(q, i, used, bud, vm_ok)
                if needw: used += 4
                s.over[i] = s.over.get(i, 0) + (max(16, used + 8) if sub < 2 else max(32, used + 8))
                if sub < 2: carry = max(0, carry + max(used, 8) - nom)
                sub += 1
                if sub < 2: continue
                mq = None
                for q in s.queues:
                    it = s.head(q, i)
                    if isinstance(it, str) and it.startswith("v_mfma") and s.ready(q, it, i) is not None: mq = q; break
                if mq is None: break
                P(mq["L"].pop(0))
            hs = [h for c, _, h in rd_h if c == i + 1 and h in P.lg]
            if hs: P.wait_for(hs + [h for c, sl, h in rd_h if sl <= i + 1 - LAT])
        P.cur = n
        if stamps and n in stamps: stamps[n](P)
        left = [len(q["L"]) for q in s.queues]
        for q in s.queues:
            while True:
                it = s.head(q, n, tail=True)
                if it is None: break
                q["L"].pop(0); s.emit(it)
        assert not any(q["L"] for q in s.queues) and not RD and not s.dq, ([q['L'][:2] for q in s.queues], RD[:2], s.dq[:2], s.marks)
        return left

_npoll = [0]
def poll_check(P, regs, stok, reload, mid=None, post=()):
    k = _npoll[0]; _npoll[0] += 1
    def chk():
        L = []
        if len(regs) == 1: L.append(f"v_cmp_ne_u32 vcc, s{stok}, v{regs[0]}")
        else:
            for r_ in regs: L.append(f"v_xor_b32 v{r_}, s{stok}, v{r_}")
            if len(regs) == 3: L.append(f"v_or3_b32 v{regs[0]}, v{regs[0]}, v{regs[1]}, v{regs[2]}")
            else: L.append(f"v_or_b32 v{regs[0]}, v{regs[0]}, v{regs[1]}")
            L.append(f"v_cmp_ne_u32 vcc, 0, v{regs[0]}")
        L.append(f"s_cbranch_vccnz L_spin{k}")
        return L
    for t in chk():
        if mid and t.startswith("s_cbranch"): mid()
        P(t)
    P.label(f"L_back{k}")
    P.tail += [f"L_spin{k}:", "s_cmp_eq_u32 s3, 0", f"s_cbranch_scc1 L_back{k}", "s_sub_u32 s3, s3, 1", "s_sleep 1"] + reload + ["s_waitcnt vmcnt(0)"] + list(post) + chk() + [f"s_branch L_back{k}"]

def tag_pre(regs, t, stok):
    regs = regs[::-1]
    L = [f"v_xor_b32 v{t}, s{stok}, v{regs[0]}"]
    for k in range(1, len(regs), 2):
        L += [f"v_xor_b32 v{t+1}, s{stok}, v{regs[k]}", f"v_xor_b32 v{t+2}, s{stok}, v{regs[k+1]}", f"v_or3_b32 v{t}, v{t}, v{t+1}, v{t+2}"]
    return L
def tag_check(P, pre, t, sm, reload, mid=None):
    k = _npoll[0]; _npoll[0] += 1
    chk = [f"v_cmp_lt_u32 vcc, s{sm}, v{t}", f"s_cbranch_vccnz L_spin{k}"]
    for x in chk:
        if mid and x.startswith("s_cbranch"): mid()
        P(x)
    P.label(f"L_back{k}")
    P.tail += [f"L_spin{k}:", "s_cmp_eq_u32 s3, 0", f"s_cbranch_scc1 L_back{k}", "s_sub_u32 s3, s3, 1", "s_sleep 2"] + reload + ["s_waitcnt vmcnt(0)"] + pre + chk + [f"s_branch L_back{k}"]
```

```python
import sys
from common import *
import rows2, rows3, col2
import fused as F
from stream import *
NAME = "parallel_sum__spectral_gfnet__dense_activation_gelu__prompt"
HEAD = open(f"cdna_kernels/{NAME}.s.ref").read().split("; Override launch")[0]
STAMPS = len(sys.argv) > 2 and sys.argv[2] == "1"
OPT = eval(sys.argv[3]) if len(sys.argv) > 3 else {}
O = dict(gapG=20, gapW=48, gapW2=40, wlag=3, xpos=32, plag=3, xat=[((0, 0), (0, 0)), ((0, 4), (0, 5)), ((1, 4), (1, 5))], preG=3, tF4=44, stY=35, stX=38, acky=30, f1gap=280, w2pf=[25, 58, 90, 123])
O.update(OPT)
if "rot" in O: F.ROTC = O["rot"]
if O.get("r22"):
    F.RMASK = 7; F.ROTC = [f"s_add_u32 s{F.S_ROT}, s{F.S_MT}, s{F.S_J}", f"s_and_b32 s{F.S_ROT}, s{F.S_ROT}, 3", f"s_lshl_b32 s{F.S_ROT}, s{F.S_ROT}, 1"]
if O.get("r2j"):
    F.ROTC = [f"s_lshl1_add_u32 s{F.S_ROT}, s{F.S_MT}, s{F.S_J}"]
F.FAKE = O.get("fake", 0)
F.FULLF = O.get("fullf", 0)
F.HDUP = O.get("hdup", 0)
F.ALIAS = O.get("alias", 0)
F.SWP = O.get("swp", 0)
F.RP = O.get("rp", 0)
F.STAG = O.get("stag", 0)
F.WEARLY = O.get("wearly", 0)
if F.ALIAS & 1: F.W_YBUF = F.W_XBUF
F.ROT2 = O.get("rot2", 0)
F.WSH = O.get("wsh", 2)
F.HPOL = O.get("hpol", " sc1")
col2.WSW = O.get("wsw", 0)
WS = F.WS

STG = O.get("st", ["k1", "c0", "r0", "r1", -1, 80, 160, 240, 320, 388, 453, 518, 584, 648, 712, 776, 808, 836, 864, 892, 920, 948, 976, 1004, 1032]) + \
      O.get("stf", ["fa", "fb", "w1>", "w2>", "f1", "w3>", "f8", "fp", "f3", "f4", (0, 0), (1, 0), (2, 0), (3, 0), "fe", "f6", "f7"])
class NS:
    def __init__(s, S, names): s.S = S; s.m = {n: i for i, n in enumerate(names)}
    def __call__(s, P, name):
        if name in s.m: s.S(P, s.m[name])
def tok(P):
    P(f"s_and_b32 s{F.S_TOK}, s{F.S_TOK}, -16"); P(f"s_add_u32 s{F.S_TOK}, s{F.S_TOK}, 0x{F.TOKINC:x}")

def rows_inv(S, g0, bar, O, TW):
    R = Rec()
    R.add(At(g0 + O.get("tIF", 1))); R.add(After("gelu3"))
    rows2.inv_fetch(R, TW)
    R(f"v_min_u32 v4, 7, v0"); R(f"v_lshlrev_b32 v4, 9, v4")
    R.add(Bar())
    rl = [f"buffer_load_dword v5, v4, {WS}, s{F.S_F4P} offen sc1"]
    R.add(At(bar[O["stY"]] - O["tF4"] - 20)); R(rl[0])
    R.add(Gap(20)); R.add(S.poll("F4", [5], F.S_TOK, rl))
    R.add(Mark("f4c"))
    R.add(Fn(lambda P: S.push_dma(rows2.inv_dma(), O["stY"]), 0))
    R.add(After("ct15")); F.tile_voff(R, 2, False); R.add(Mark("xv")); R.add(Bar())
    R.add(Fn(lambda P: S.push_dma(F.tile_dma(F.S_X, F.S_XD, F.L_ST), O["stX"]), 0)); R.add(Mark("xd"))
    S.queues.insert(1, {"L": R.L, "hold": -1, "vmlat": 0})
    R = Rec()
    R.add(After("xv")); R.add(After("hs71")); R.add(At(bar[O["stY"]] + 1))
    rows2.inv_data(R, TW)
    R.add(At(bar[O["stX"]] + 1))
    R.add(Mark("rows_valu"))
    S.queue(R.L, vmlat=0)
    R = Rec()
    rows2.inv_stores(R)
    R.add(Mark("rows_inv_done"))
    R.add(Gap(O["acky"])); R.add(S.wait_tag("yst")); R(F.flag_store(F.S_F5F)); R.add(Mark("f5"))
    S.queue(R.L, vmlat=0)

def code_pf(P):
    P("s_getpc_b64 s[66:67]")
    P.label("L_pc")
    P(f"s_lshr_b32 s{F.S_T0}, s2, 3"); P(f"s_lshl2_add_u32 s{F.S_T0}, s{F.S_T0}, s{F.S_WAVE}")
    P(f"s_lshl_b32 s{F.S_T0}, s{F.S_T0}, 7")
    P(f"v_lshl_add_u32 v55, v0, 14, s{F.S_T0}")
    P(f"v_min_u32 v55, L_code_end-L_pc-4, v55")
    P(f"s_mov_b64 exec, 127")
    P(f"global_load_dword v55, v55, s[66:67]")
    P(f"s_mov_b64 exec, -1")

def w_pf(P):
    P(f"s_lshr_b32 s{F.S_T0}, s2, 3"); P(f"s_lshl_b32 s{F.S_T0}, s{F.S_T0}, 2"); P(f"s_add_u32 s{F.S_T0}, s{F.S_T0}, s{F.S_WAVE}")
    if O.get("wr2"): P(f"s_mul_i32 s{F.S_E0}, s{F.S_T0}, {-4*2052}"); P(f"s_add_u32 s{F.S_E0}, s{F.S_E0}, {512*2052}")
    P(f"s_mul_i32 s{F.S_T0}, s{F.S_T0}, {8*2052}")
    P(f"s_and_b32 s{F.S_T1}, s2, 1"); P(f"s_mul_i32 s{F.S_T1}, s{F.S_T1}, 1028"); P(f"s_add_u32 s{F.S_T0}, s{F.S_T0}, s{F.S_T1}")
    P(f"s_lshl_b32 s{F.S_T1}, s{F.S_KQ}, 8"); P(f"s_add_u32 s{F.S_T0}, s{F.S_T0}, s{F.S_T1}")
    P(f"v_and_b32 v53, 3, v0"); P(f"v_bfe_u32 v54, v0, 2, 3"); P(f"v_mul_u32_u24 v54, 2052, v54")
    P(f"v_lshlrev_b32 v53, 7, v53")
    P(f"v_min_u32 v53, 252, v53")
    P(f"v_add3_u32 v54, v53, v54, s{F.S_T0}")
    if O.get("wr2"): P(f"v_add_u32 v52, s{F.S_E0}, v54")
    if O.get("wpf", 1) == 1:
        P(f"s_mov_b64 exec, 0x77777777")
        for t in WPF: P(t)
        P(f"s_mov_b64 exec, -1")
WPF = ["global_load_dword v53, v54, s[4:5]", "global_load_dword v54, v54, s[6:7]"]

def tlb(P, d):
    sh = O.get("tlbs", 20)
    P(f"v_min_u32 v{d}, {min(63, (0x2e00000 >> sh) - 1)}, v0"); P(f"v_lshlrev_b32 v{d}, {sh}, v{d}")
    P(f"buffer_load_dword v{d}, v{d}, {WS}, 0 offen offset:2048")

def build(name):
    P = Prog()
    S = Probe(*O["probe"]) if "probe" in O else Stamps(STAMPS, 0)
    S.rt = O.get("rt", 0)
    P(f"s_load_dwordx2 s[{F.S_X}:{F.S_X+1}], s[0:1], 0")
    P(f"s_load_dwordx2 s[{F.S_WS}:{F.S_WS+1}], s[0:1], 80")
    P("s_load_dwordx8 s[8:15], s[0:1], 32")
    P(f"s_load_dwordx2 s[{F.S_OUT}:{F.S_OUT+1}], s[0:1], 64")
    P("s_load_dwordx4 s[4:7], s[0:1], 8")
    S.begin(P)
    N = NS(S, STG)
    P("s_cmp_ge_u32 s2, 256")
    P(f"s_cbranch_scc1 L_end")
    if O.get("scr"):
        P("s_and_b32 s3, s2, 7"); P("s_lshl_b32 s3, s3, 5"); P("s_lshr_b32 s2, s2, 3"); P("s_or_b32 s2, s2, s3")
    P("s_mov_b32 s3, 0x20000")
    F.ids(P)
    if O.get("cpf", 1): code_pf(P)
    P(f"s_mov_b32 s{F.S_X+2}, 0x400000"); P(f"s_mov_b32 s{F.S_X+3}, 0x20000")
    P(f"s_mov_b32 s{F.S_WS+2}, 0x10000000"); P(f"s_mov_b32 s{F.S_WS+3}, 0x20000")
    P(f"s_mov_b32 s{F.S_OUT+2}, 0x400000"); P(f"s_mov_b32 s{F.S_OUT+3}, 0x20000")
    L = rows3.fwd_issue(P)
    FC = Rec(); rows3.fwd_consts(FC)
    n0, n1 = O.get("pre0", 0), O.get("pre1", 100)
    for t in FC.L[:n0]: P(t)
    E = O.get("early", 0)
    if E and not O.get("elate"): F.g1_setup_dma(P)
    N(P, "k0")
    P.wait(lg=0)
    N(P, "k1")
    hr = [P(t) for t in L]
    P(f"s_load_dword s{F.S_TOK}, s[{F.S_WS}:{F.S_WS+1}], {F.W_EPOCH}")
    D0 = F.dma1(0); he = []; W0 = col2.w_dma(0); hf = []
    if E:
        if O.get("ewf"):
            k = next(i for i, t in enumerate(D0) if is_vm(t))
            D0 = D0[1:k-2] + D0[k+4:] + D0[:1] + D0[k-2:k+4]
        for t in FC.L[n0:n0+O.get("eat", 0)]: P(t)
        n0 += O.get("eat", 0)
        P("s_cmp_ge_u32 s2, 224")
        P(f"s_cbranch_scc1 L_noearly")
        if O.get("elate"): F.g1_setup_dma(P)
        srd(P, F.S_W, 8, 1024*3584*2)
        while len(he) < E:
            h = P(D0.pop(0))
            if h.kind == "vmem": he.append(h)
        if O.get("fe"):
            P("s_branch L_early2")
            P.label("L_noearly")
            srd(P, col2.S_FW, 4, 2048*513*2)
            col2.col_ids(P); col2.w_setup(P)
            while len(hf) < O["fe"]:
                h = P(W0.pop(0))
                if h.kind == "vmem": hf.append(h)
            P.label("L_early2")
        else: P.label("L_noearly")
    for t in FC.L[n0:n1]: P(t)
    rows3.nq_issue(P)
    if O.get("wpf", 1): w_pf(P)
    for t in FC.L[n1:]: P(t)
    tok(P)
    N(P, "c0")
    P("s_cmp_ge_u32 s2, 224")
    P(f"s_cbranch_scc1 L_fft")
    vm0, lg0, pend0 = [h for h in P.vm if h not in he], list(P.lg), getattr(S, "pend", None)
    P.vm = [h for h in P.vm if h not in hf]
    if O.get("dlg"):
        P("s_cmp_lg_u32 s2, 77"); P("s_cbranch_scc1 L_nodl")
        for _ in range(O["dlg"]): P("s_sleep 127")
        P.label("L_nodl")
    if not E:
        F.g1_setup_dma(P)
        srd(P, F.S_W, 8, 1024*3584*2)
    srd(P, F.S_B, 10, 3584*2)
    St = Stream(P)
    I = rows3.Inter(P); I.gap = O["gapG"]
    for st in range(4): St.dma_h[st] = []
    if O.get("c3", 0) & 3: F.c3_setup(P)
    if O.get("c3", 0) & 1:
        for t in F.c3_w(0, 48) + F.c3_x(0, 52): P(t)
    for st in range(O["preG"]):
        if st == 0: St.dma_h[0] += he
        I.push(F.dma1(st) if st else D0, St.dma_h[st])
        if O.get("c3", 0) & 1 and st == O.get("c3s", 1): I.push(F.c3_w(1, 63) + F.c3_x(1, 23), [])
        if O.get("wpf", 1) == 2 + st: I.push(WPF, [])
    F.g1_setup_rest(I)
    N(P, "c1")
    class Skip:
        def __init__(s, P, n): s.__dict__.update(P=P, n=n)
        def __call__(s, t):
            if t.startswith(("v_", "ds_")) and not (t.startswith("v_lshl_add_u32 v62") or t.startswith("v_lsh") or t.startswith("v_and_b32 v250")):
                s.__dict__["n"] -= 1
                if s.n < 0: return None
            return s.P(t)
        def __getattr__(s, k): return getattr(s.P, k)
        def __setattr__(s, k, v_): setattr(s.P, k, v_)
    hs = rows3.fwd_data(Skip(I, O["skiprow"]) if "skiprow" in O else I, hr, stamp=N)
    I.flush()
    if O.get("tlb", 0) & 1: tlb(P, 63)
    if O.get("wpf", 1) == 9:
        for t in WPF: P(t)
    for st in range(O["preG"], 4): St.push_dma(F.dma1(st), st)
    if O.get("wpi"):
        Q = []
        for n_, (sl_, k_, m_) in enumerate(O["wpi"]):
            Q += [At(sl_), Fn(lambda P, k_=k_, m_=m_, n_=n_: (P(f"s_mov_b64 exec, 0x{m_:x}"), P(f"global_load_dword v{[53, 52, 48, 55][n_]}, v54, s[{4+2*k_}:{5+2*k_}]"), P("s_mov_b64 exec, -1")), 16)]
        if O.get("wr2"): Q = [At(O["wr2"]), Fn(lambda P: (P("s_mov_b64 exec, 0x7777"), P("global_load_dword v52, v52, s[4:5]"), P("s_mov_b64 exec, -1")), 16), Mark("wr2")] + Q
        St.queue(Q, vmlat=0)
    if O.get("c3q"):
        Q = Rec(); Q.add(At(O.get("c3t", 4)))
        F.c3_setup(Q, F.blk(5), F.S_PF + 3, {k_ for _, k_, _ in O["c3q"]})
        for n_, (sl_, k_, h_) in enumerate(O["c3q"]):
            Q.add(At(sl_))
            last = not any(x[1] == k_ for x in O["c3q"][n_+1:])
            if k_ == "w":
                Q(f"s_mov_b32 s{F.S_PF+3}, {512*7168*h_}")
                Q(f"buffer_load_dword v{F.V_C3+1}, v{F.V_C3+1}, s[{F.S_W}:{F.S_W+3}], s{F.S_PF+3} offen offset:384")
            else:
                if h_ == 2: Q(f"v_xor_b32 v{F.V_C3}, 0x40000, v{F.V_C3}")
                for t in F.c3_x(h_ & 1, F.V_C3 if last else 127): Q(t)
        St.queue(Q.L, vmlat=0)
    o = dict(O); o.update(f1=hs, rows_inv=rows_inv, inv_consts=lambda R: rows2.inv_consts(R, F.blk(4)))
    St.nstamp = N
    cm = lambda k: k if not O.get("csx") or k <= 36 else (k - 28 if k >= 288 else k - (k - 36) // 9)
    o["ptsd"] = {cm(k): i for k, i in N.m.items() if isinstance(k, int)}
    F.build_stream(P, St, o, stamp=S if S.on else None)
    if O.get("wr2"): assert St.marks["wr2"] < St.marks["consts"] - 4
    assert all(k_ == 1 and sl_ < 200 for sl_, k_, _ in O.get("wpi", []))
    S.save(P)
    P(f"s_or_b32 s{F.S_T0}, s2, s{F.S_WAVE}")
    P(f"s_cmp_lg_u32 s{F.S_T0}, 0")
    P(f"s_cbranch_scc1 L_noep")
    P(f"s_mov_b32 s{F.S_T0}, {F.W_EPOCH}")
    P(F.flag_store(F.S_T0))
    P.label(f"L_noep")
    S.end(P, F.S_WAVE, ws=F.S_WS)
    P.label(f"L_end")
    P("s_endpgm")
    P.label(f"L_fft")
    P.vm, P.lg, S.pend = list(vm0), list(lg0), pend0
    P.cur = -1000
    C = col2
    for _ in range(O.get("dly", 0)): P("s_sleep 127")
    def own():
        P(f"s_mov_b64 exec, 0x77777777")
        for t in WPF[O.get("wpo", 0):]: P(t)
        if O.get("wr2"): P("s_mov_b64 exec, 0x7777"); P(f"buffer_load_dword v52, v52, s[{C.S_FW}:{C.S_FW+3}], 0 offen")
        P(f"s_mov_b64 exec, -1")
    if O.get("wpf", 1) > 1 and not O.get("wpl"): own()
    if O.get("tlb", 0) & 2: tlb(P, 22)
    srd(P, C.S_FW + 4, 6, 2048*513*2)
    if not O.get("fe"):
        srd(P, C.S_FW, 4, 2048*513*2)
        C.col_ids(P); C.w_setup(P)
    I = rows3.Inter(P); I.gap = O["gapW"]
    hw = list(hf)
    for sl in range(4): I.push(C.w_dma(sl) if sl else W0, hw)
    R = Rec(); C.w_read_setup(R); C.x_setup(R); F.flag_regs(R)
    R(f"v_lshlrev_b32 v1, 7, v0")
    pre = R.L
    R = Rec()
    R(f"s_lshr_b32 s{F.S_E1}, s{C.S_SF}, 3"); R(f"s_lshl_b32 s{F.S_E1}, s{F.S_E1}, 15"); R(f"s_lshl_b32 s{F.S_T0}, s{F.S_WAVE}, 13")
    R(f"s_add_u32 s{F.S_E1}, s{F.S_E1}, s{F.S_T0}"); R(f"s_add_u32 s{F.S_E1}, s{F.S_E1}, {F.W_F1}")
    rl = [f"buffer_load_dword v{F.V_FL}, v1, {WS}, s{F.S_E1} offen sc1"]
    R(f"s_lshl_b32 s{F.S_FX}, s{F.S_WAVE}, 5"); R(f"s_add_u32 s{F.S_FX}, s{F.S_FX}, s{C.S_SF}")
    R(f"s_lshl_b32 s{F.S_FX}, s{F.S_FX}, 9"); R(f"s_add_u32 s{F.S_FX}, s{F.S_FX}, {F.W_F4}")
    CR = Rec(); C.consts(CR, parts=True)
    R.L += sum(CR.parts, [])
    cuts = [len(R.L)]
    F.hbase(R); F.g2_setup(R, True); F.g2_setup_b(R); cuts.append(len(R.L)); F.epi_setup(R)
    cuts.append(len(R.L))
    rows2.inv_consts(R, C.BLK[0][1])
    cuts.append(len(R.L))
    work = R.L
    for t in pre: I(t)
    hs = rows3.fwd_data(I, hr, stamp=N)
    I.gap = O["gapW2"]
    rd = []; ns = 0; st8 = 0
    hx = [[] for _ in range(4)]
    def slot_in():
        nonlocal ns, rd
        if C.WSW and ns == 0: rd += C.w_reads(0); ns = 1
        N(P, f'w{ns}<'); P.wait_for(hw[8 * ns + 7]); P.barrier(); N(P, f'w{ns}>')
        rd += C.w_reads(ns); ns += 1
    def x0():
        N(P, 'fp')
        poll_check(P, [F.V_FL], F.S_TOK, rl)
        P.wait(lg=0); P.barrier()
        N(P, 'f3')
        n0 = C.nyq_load(P)
        for t in C.x_dma(0):
            h = P(t)
            if h.kind == "vmem": hx[0].append(h)
        if not F.STAG: P(F.flag_store(F.S_FX))
        return n0
    def events(k):
        nonlocal st8, n0
        if "gapC" in O: I.gap = O["gapC"] if len(hw) < O.get("nC", 16) else O["gapW2"]
        if ns < 3 and len(hw) >= 8 * max(ns, C.WSW) + 8 + (O["wlag"] if ns or "wl0" not in O else O["wl0"]) and not rd: slot_in()
        if st8 == 0 and len(hw) >= O["xpos"] - O["plag"]: N(P, 'f1'); P(rl[0]); st8 = 1
        if st8 == 1 and len(hw) >= O["xpos"] and len(hw) % 4 == 0 and (ns >= 2 and len(rd) <= 8 or ns == 1 and not rd) and k > O["f1gap"]: n0 = x0(); st8 = 2
    n0 = None
    for k in range(len(work)):
        if k == O["f1gap"]:
            N(P, 'fa'); P.wait_for(hs); P(F.flag_store(F.S_RS)); N(P, 'fb')
        events(k)
        if k == O.get("wpl"): own()
        if work[k].startswith("ds_write"): assert ns > 0
        I(work[k])
        if rd and k % 4 == 0: I(rd.pop(0))
    print("W instrs left", 32 - len(hw), "slots read", ns, "state", st8, "work", len(work))
    while I.side or st8 < 2 or ns < 3:
        events(9999)
        for t in rd: P(t)
        rd = []
        if I.side: I.one()
    wf = C.w_fill(0)
    for t in F.f3_addr() + wf[:24]: P(t)
    slot_in()
    for t in rd: P(t)
    C.flush_setup(P)
    for t in wf[24:]: P(t)
    C.pre_main(P, n0)
    pfl = []
    if O.get("fpf"):
        T0, T1, KW = F.S_T0, F.S_T1, F.S_KW
        P("v_lshrrev_b32 v28, 1, v0"); P("v_lshlrev_b32 v28, 4, v28"); P("v_and_b32 v29, 1, v0"); P("v_add_u32 v28, v28, v29"); P("v_lshlrev_b32 v28, 7, v28")
        P(f"s_bfe_u32 s{T0}, s2, 0x20003"); P(f"s_lshl2_add_u32 s{T0}, s{T0}, s{F.S_WAVE}")
        P(f"s_lshr_b32 s{T1}, s{T0}, 1"); P(f"s_and_b32 s{T0}, s{T0}, 1"); P(f"s_lshl_b32 s{T0}, s{T0}, 8"); P(f"s_add_u32 s{T0}, s{T0}, s{T1}")
        P(f"s_lshl_b32 s{T0}, s{T0}, 8"); P(f"s_lshl_b32 s{KW}, s{T1}, 18")
        P(f"s_mul_i32 s{T1}, s{F.S_KQ}, {896*2048}"); P(f"s_add_u32 s{T0}, s{T0}, s{T1}"); P(f"v_add_u32 v29, s{T0}, v28")
        P(f"s_lshl_b32 s{T0}, s{F.S_KQ}, 1"); P(f"s_add_u32 s{T0}, s{T0}, s{F.S_WAVE}"); P(f"s_add_u32 s{T0}, s{T0}, 6"); P(f"s_and_b32 s{T0}, s{T0}, 7")
        P(f"s_lshl3_add_u32 s{T0}, s{F.S_MT}, s{T0}"); P(f"s_lshl_b32 s6, s{T0}, 16")
        kx = kw = 0
        for n_, c in O["fpf"]:
            d = 30 + (kx + kw) % 8
            if c == "x":
                pfl.append((n_, [f"buffer_load_dword v{d}, v28, s[{F.S_X}:{F.S_X+3}], s6 offen offset:{kx*256}"])); kx += 1
            else:
                L = [f"s_add_u32 s{KW}, s{KW}, 0x20000"] if kw else []
                if kw % 2 == 0: L += [f"s_sub_u32 s7, s{KW}, {14*0x20000}", f"s_min_u32 s{KW}, s{KW}, s7"]
                pfl.append((n_, L + [f"buffer_load_dword v{d}, v29, s[{F.S_W}:{F.S_W+3}], s{KW} offen"])); kw += 1
    late = []
    if O.get("fpp"):
        l0, nl = O.get("fpl", (40, 60))
        P(f"v_min_u32 v28, {nl-1}, v0"); P("v_lshlrev_b32 v28, 7, v28")
        P(f"s_sub_u32 s6, s2, 224"); P(f"s_lshl2_add_u32 s6, s6, s{F.S_WAVE}"); P(f"s_mul_i32 s6, s6, {8*15360}"); P(f"s_add_u32 s6, s6, {F.W_PART+l0*128}")
        for k, n_ in enumerate(O["fpp"]):
            L = ([f"s_add_u32 s6, s6, 15360"] if k else []) + [f"buffer_load_dword v{30+k}, v28, {WS}, s6 offen sc1"]
            if n_ < 32: pfl.append((n_, L))
            else: late += L
    N(P, 'f4')
    P.wait_for(hx[0]); P.barrier()
    xd = lambda q: [Fn(lambda P, t=t: hx[q].append(P(t)), 8) if is_vm(t) else t for t in C.x_dma(q)]
    extra = {(3, 0): F.dma2_w(24), (3, 4): F.dma2_w(25)}
    for q, (a_, b_) in zip((1, 2, 3), O["xat"]):
        extra.setdefault(a_, []).extend(xd(q)[:6]); extra.setdefault(b_, []).extend(xd(q)[6:])
    for k, (n_, c) in enumerate(pfl):
        extra.setdefault((n_ // 8, n_ % 8), []).extend(c)
    St = Stream(P)
    if O.get("fearly"):
        a_, b_, c_, d_ = O["fearly"]
        P("v_min_u32 v29, 27, v0"); P("v_lshlrev_b32 v29, 9, v29")
        r3 = [f"buffer_load_dword v{F.V_FL}, v29, {WS}, s{F.S_F3} offen offset:128 sc1"]
        trk = lambda L, st: [Fn(lambda P, t=t: St.dma_h.setdefault(st, []).append(P(t)), 8) if is_vm(t) else t for t in L]
        extra.setdefault(a_, []).extend(r3)
        extra.setdefault(b_, []).append(Fn(lambda P: (N(P, 'f8'), poll_check(P, [F.V_FL], F.S_TOK, r3), N(P, 'f7')), 12))
        extra.setdefault(c_, []).extend(trk(F.dma2_h4(24), 24)); extra.setdefault(d_, []).extend(trk(F.dma2_h4(25), 25))
        C.main(P, hx, extra, lambda P: None, stamp=N, BUD=O.get("cbud", 24))
        N(P, 'fe')
        for t in C.flush_reads(3): P(t)
        if O.get("fst"):
            P.wait(lg=0)
            fs = C.flush_stores(3); d26 = F.dma2_w(26) + F.dma2_h4(26)
            n_ = O["fst"]
            St.push_dma(fs[:n_] + d26[:6] + fs[n_:] + d26[6:], 26)
            hy = lambda: [h for h in St.dma_h[26] if "store" in h.text]
            St.queue([DmaDone(26), Gap(O.get("tF4s", 12)), Fn(lambda P: P.wait_for(hy())), F.flag_store(F.S_FX, 384), Mark("f6")], vmlat=0)
        else:
            St.dma_h[26] = [P(t) for t in F.dma2_w(26) + F.dma2_h4(26)][-4:]
            hy = [P(t) for t in C.flush_stores(3)]
            St.queue([At(O.get("tF4s", 24)), Fn(lambda P: P.wait_for(hy)), F.flag_store(F.S_FX, 384), Mark("f6")], vmlat=0)
        St.push_dma(F.dma2_w(27) + F.dma2_h4(27), 27)
    else:
        C.main(P, hx, extra, lambda P: None, stamp=N, BUD=O.get("cbud", 24))
        N(P, 'fe')
        for t in C.flush_reads(3) + F.dma2_w(26) + F.f3_reload(1): P(t)
        hy = [P(t) for t in C.flush_stores(3)]
        for t in late: P(t)
        N(P, 'f8')
        poll_check(P, [F.V_FL], F.S_TOK, F.f3_reload(1), post=[F.flag_store(F.S_FX, 384)])
        P.barrier()
        N(P, 'f7')
        for st in (24, 25): St.dma_h[st] = [P(t) for t in F.dma2_h4(st)][-4:]
        P.wait_for(hy)
        P(F.flag_store(F.S_FX, 384))
        N(P, 'f6')
        St.push_dma(F.dma2_h4(26), 26); St.push_dma(F.dma2_w(27) + F.dma2_h4(27), 27)
    o = dict(O); o.update(O["fo"]); o.update(rows_inv=rows_inv)
    St.nstamp = N
    o["ptsd"] = {k - 560: i for k, i in N.m.items() if isinstance(k, int) and k >= 560}
    F.build_stream(P, St, o, stamp=S if S.on else None, fft=True)
    S.save(P)
    P("s_branch L_noep")
    return P

out = [HEAD.rstrip("\n")]
out.append(f"; @launch grid=(256,1,1) block=(256,1,1) lds=163840")
if STAMPS: out.append(f"; STAMPS {STG}")
if O.get("rt"): out.append("; RTSTAMPS")
out.append('.amdgcn_target "amdgcn-amd-amdhsa--gfx950"\n.text')
n = NAME + "_kernel"
P = build(n); print(P.count(), "instrs", P.nnop, "nops")
out.append(kernel_header(n) + P.text() + "L_code_end:\n")
out.append('.section .rodata,"a"')
out.append(kernel_desc(n, 512, 256))
txt = "\n".join(out) + "\n"
if O.get("al"):
    import align
    txt = align.align(txt, sys.argv[1] + ".al", **(O["al"] if isinstance(O["al"], dict) else {}))
open(sys.argv[1], "w").write(txt)
```
